```python
import torch

def _softmax(x, axis=-1):
    return torch.softmax(x, dim=axis)
def _gelu(x):
    return torch.nn.functional.gelu(x, approximate="tanh")
def _silu(x):
    return torch.nn.functional.silu(x)
def _sigmoid(x):
    return torch.sigmoid(x)
def _layernorm(x, axis=-1, eps=1e-5):
    m = x.mean(dim=axis, keepdim=True)
    v = x.var(dim=axis, keepdim=True, unbiased=False)
    return (x - m) / torch.sqrt(v + eps)
def _scatter_add(tgt, idx, src, axis=0):
    return tgt.clone().index_add_(axis, idx, src)
def _segment_sum(src, seg, n):
    out = torch.zeros((n,) + src.shape[1:], dtype=src.dtype)
    return out.index_add_(0, seg, src)
def _pad(x, pw):
    flat = tuple(v for pair in reversed(pw) for v in pair)
    return torch.nn.functional.pad(x, flat)

kernel_name = 'parallel_sum__compressed_kv_cla__moe_arch_mod__prompt'

def setup_inputs():

    _w = (lambda a: (lambda t: t.to(torch.bfloat16) if t.is_floating_point() else t)(torch.as_tensor(a)))
    def _A_setup():
        B, H, Sq, Sk, D, M = 1, 32, 2048, 2048, 128, 576
        Dc = 4 * D
        return {
            "x": _w((lambda *s: torch.randn(*s, dtype=torch.bfloat16) * 0.05)(B, Sq, M)),
            "c_kv": _w((lambda *s: torch.randn(*s, dtype=torch.bfloat16) * 1.6)(B, Sk, Dc)),
            "w_q": _w((lambda *s: torch.randn(*s, dtype=torch.bfloat16) * 0.8)(M, H, D) * (M ** -0.5)),
            "w_uk": _w((lambda *s: torch.randn(*s, dtype=torch.bfloat16) * 0.8)(Dc, H, D) * (Dc ** -0.5)),
            "w_uv": _w((lambda *s: torch.randn(*s, dtype=torch.bfloat16) * 1.6)(Dc, H, D) * (Dc ** -0.5)),
            "w_o": _w((lambda *s: torch.randn(*s, dtype=torch.bfloat16) * 1.6)(H, D, M) * ((H * D) ** -0.5)),
        }
    _A_in = _A_setup()

    def _B_setup():
        B, S, D, F, C = 1, 2048, 576, 4608, 8
        return {
            "x": _w((lambda *s: torch.randn(*s, dtype=torch.bfloat16) * 0.05)(B, S, D)),
            "w_r": _w((lambda *s: torch.randn(*s, dtype=torch.bfloat16) * 0.05)(D)),
            "w_gate": _w((lambda *s: torch.randn(*s, dtype=torch.bfloat16) * 0.05)(D, F)),
            "w_up": _w((lambda *s: torch.randn(*s, dtype=torch.bfloat16) * 0.05)(D, F)),
            "w_down": _w((lambda *s: torch.randn(*s, dtype=torch.bfloat16) * 0.05)(F, D)),
        }
    _B_in = _B_setup()

    return {
        "A_x": _A_in["x"],
        "A_c_kv": _A_in["c_kv"],
        "A_w_q": _A_in["w_q"],
        "A_w_uk": _A_in["w_uk"],
        "A_w_uv": _A_in["w_uv"],
        "A_w_o": _A_in["w_o"],
        "B_x": _B_in["x"],
        "B_w_r": _B_in["w_r"],
        "B_w_gate": _B_in["w_gate"],
        "B_w_up": _B_in["w_up"],
        "B_w_down": _B_in["w_down"],
    }

def reference(A_x, A_c_kv, A_w_q, A_w_uk, A_w_uv, A_w_o, B_x, B_w_r, B_w_gate, B_w_up, B_w_down):
    def _A_ref(x, c_kv, w_q, w_uk, w_uv, w_o):
        B, Sq, M = x.shape[0], x.shape[1], x.shape[2]
        Sk = c_kv.shape[1]
        H, D = w_q.shape[1], w_q.shape[2]
        q = torch.einsum("bqm,mhd->bhqd", x, w_q)
        k = torch.einsum("bkc,chd->bhkd", c_kv, w_uk)
        v = torch.einsum("bkc,chd->bhkd", c_kv, w_uv)
        scores = torch.einsum("bhqd,bhkd->bhqk", q, k) * (D ** -0.5)
        off = Sk - Sq
        qi = torch.arange(Sq)[:, None]
        kj = torch.arange(Sk)[None, :]
        cmask = kj <= (qi + off)
        scores = torch.where(cmask[None, None], scores, -1e9)
        p = _softmax(scores, axis=-1)
        ctx = torch.einsum("bhqk,bhkd->bhqd", p, v)
        return torch.einsum("bhqd,hdm->bqm", ctx, w_o)

    def _B_ref(x, w_r, w_gate, w_up, w_down):
        B, S, D = x.shape
        C = 8
        r = x @ w_r
        idx = torch.argsort(-r, axis=-1)[:, :C]
        idx_e = (lambda x, n, axis: torch.repeat_interleave(x, n, dim=axis))(idx.reshape(B, C, 1), D, axis=2)
        x_sel = (lambda x, i, axis: torch.take_along_dim(x, i, dim=axis))(x, idx_e, axis=1)
        g = _silu(x_sel @ w_gate)
        u = x_sel @ w_up
        y = (g * u) @ w_down
        r_sel = _sigmoid((lambda x, i, axis: torch.take_along_dim(x, i, dim=axis))(r, idx, axis=1))
        y = y * r_sel.reshape(B, C, 1)
        b_off = (torch.arange(B) * S).reshape(B, 1)
        flat_idx = (idx + b_off).reshape(B * C)
        zero = (x * 0.0).reshape(B * S, D)
        upd = _scatter_add(zero, flat_idx, y.reshape(B * C, D), axis=0)
        return x + upd.reshape(B, S, D)

    x = A_x
    xn = _layernorm(x, axis=-1)
    return x + _A_ref(xn, A_c_kv, A_w_q, A_w_uk, A_w_uv, A_w_o) + _B_ref(xn, B_w_r, B_w_gate, B_w_up, B_w_down)
```

```python
class Asm:
    def __init__(self):
        self.lines = []
        self.uid = 0
    def __call__(self, s):
        for l in s.strip("\n").split("\n"):
            self.lines.append("    " + l.strip())
    def label(self, name):
        self.lines.append(name + ":")
    def newlabel(self, base):
        self.uid += 1
        return "%s_%d" % (base, self.uid)
    def comment(self, s):
        self.lines.append("    ; " + s)
    def raw(self, s):
        self.lines.append(s)
    def text(self):
        return "\n".join(self.lines) + "\n"

def v(i, n=1):
    return "v%d" % i if n == 1 else "v[%d:%d]" % (i, i + n - 1)
def s(i, n=1):
    return "s%d" % i if n == 1 else "s[%d:%d]" % (i, i + n - 1)

def kernel_begin(a, name):
    a.raw(".text")
    a.raw(".globl %s" % name)
    a.raw(".p2align 8")
    a.raw(".type %s,@function" % name)
    a.label(name)

def kernel_desc(a, name, vgpr, sgpr=102):
    acc = (vgpr + 3) // 4 * 4
    a.raw('.section .rodata,"a"')
    a.raw(".p2align 6")
    a.raw(".amdhsa_kernel %s" % name)
    a.raw("  .amdhsa_next_free_vgpr %d" % vgpr)
    a.raw("  .amdhsa_next_free_sgpr %d" % sgpr)
    a.raw("  .amdhsa_accum_offset %d" % min(acc, 256))
    a.raw("  .amdhsa_group_segment_fixed_size 0")
    a.raw("  .amdhsa_kernarg_size 112")
    a.raw("  .amdhsa_user_sgpr_count 2")
    a.raw("  .amdhsa_user_sgpr_kernarg_segment_ptr 1")
    a.raw("  .amdhsa_system_sgpr_workgroup_id_x 1")
    a.raw("  .amdhsa_float_denorm_mode_32 3")
    a.raw(".end_amdhsa_kernel")

def srd(a, d, base, nbytes):
    a("s_mov_b32 %s, %s" % (s(d), s(base)))
    a("s_and_b32 %s, %s, 0xffff" % (s(d + 1), s(base + 1)))
    a("s_mov_b32 %s, 0x%x" % (s(d + 2), nbytes))
    a("s_mov_b32 %s, 0x20000" % s(d + 3))

def wave_sum(a, r):
    for sh in (1, 2, 4, 8):
        a("s_nop 1")
        a("v_add_f32_dpp %s, %s, %s row_shr:%d row_mask:0xf bank_mask:0xf" % (v(r), v(r), v(r), sh))
    a("s_nop 1")
    a("v_add_f32_dpp %s, %s, %s row_bcast:15 row_mask:0xa bank_mask:0xf" % (v(r), v(r), v(r)))
    a("s_nop 1")
    a("v_add_f32_dpp %s, %s, %s row_bcast:31 row_mask:0xc bank_mask:0xf" % (v(r), v(r), v(r)))

WS_XNF = 0x0
WS_RKEY = 0x240000
WS_YP = 0x250000
WS_SEL = 0x4E0000
WS_XNR = 0x500000
WS_KV = 0x800000
WS_CTX = 0x2800000
WS_STAMP = 0x4000000
WS_BYTES = 0x10000000

KA_X, KA_CKV, KA_WQ, KA_WUK, KA_WUV, KA_WO, KA_BX, KA_WR, KA_WG, KA_WU, KA_WD, KA_OUT, KA_DBG, KA_WS = [8 * i for i in range(14)]
```

```python
from asmlib import *

def gen_k1(a, name="k1_kernel", NS=5, stamps=False):
    nst = [0]
    def stamp():
        if stamps:
            a("s_memtime %s" % s(52 + 2 * nst[0], 2)); a("s_memrealtime %s" % s(70 + 2 * nst[0], 2)); nst[0] += 1

    NIT = 16
    STG = 32768
    ACC = 0
    BUF = [128, 152]
    VA = [176, 177]
    VW = [178, 179]
    VWIN = [[176, 177, 178, 179], [180, 181, 182, 183], [184, 185, 186, 187]]
    VDA, VDW0, VDW1, VST, VTID = 188, 189, 190, 191, 192
    S_W, S_TYPE, S_MT, S_HP = 36, 37, 38, 39
    S_KA0, S_KA1, S_KW = 40, 41, 42
    S_M0A, S_M0W = 43, 44
    S_T0, S_T1, S_T2, S_ROW = 46, 47, 48, 49
    kernel_begin(a, name)
    a("s_cmp_ge_u32 s2, 256")
    a("s_cbranch_scc1 %s_end" % name)
    a("s_load_dwordx2 s[4:5], s[0:1], %d" % KA_X)
    a("s_load_dwordx2 s[6:7], s[0:1], %d" % KA_CKV)
    a("s_load_dwordx2 s[8:9], s[0:1], %d" % KA_WUK)
    a("s_load_dwordx2 s[10:11], s[0:1], %d" % KA_WUV)
    a("s_load_dwordx2 s[12:13], s[0:1], %d" % KA_WR)
    a("s_load_dwordx2 s[14:15], s[0:1], %d" % KA_WS)
    stamp()
    a("v_mov_b32 %s, v0" % v(VTID))
    a("v_lshrrev_b32 v1, 6, v0")
    a("v_and_b32 v2, 63, v0")
    a("v_readfirstlane_b32 %s, v1" % s(S_W))
    a("s_and_b32 %s, s2, 7" % s(S_T0))
    a("s_lshr_b32 %s, s2, 3" % s(S_T1))
    a("s_bfe_u32 %s, %s, 0x10001" % (s(S_TYPE), s(S_T1)))
    a("s_and_b32 %s, %s, 1" % (s(S_T2), s(S_T1)))
    a("s_lshl_b32 %s, %s, 1" % (s(S_HP), s(S_T0)))
    a("s_add_u32 %s, %s, %s" % (s(S_HP), s(S_HP), s(S_T2)))
    a("s_lshr_b32 %s, %s, 2" % (s(S_MT), s(S_T1)))
    a("s_waitcnt lgkmcnt(0)")
    srd(a, 16, 6, 2048 * 512 * 2)
    a("s_cmp_eq_u32 %s, 0" % s(S_TYPE))
    a("s_cselect_b32 s8, s8, s10")
    a("s_cselect_b32 s9, s9, s11")
    srd(a, 20, 8, 512 * 4096 * 2)
    srd(a, 24, 14, WS_BYTES)
    srd(a, 28, 4, 2048 * 576 * 2)
    srd(a, 32, 12, 576 * 2)
    a("s_lshl_b32 %s, s2, 3" % s(S_ROW))
    a("s_add_u32 %s, %s, %s" % (s(S_ROW), s(S_ROW), s(S_W)))
    a("s_mul_i32 %s, %s, 1152" % (s(S_T0), s(S_ROW)))
    a("v_lshlrev_b32 v3, 5, v2")
    a("v_mov_b32 v4, 0x40000000")
    a("v_cmp_gt_u32 vcc, 36, v2")
    a("s_nop 1")
    a("v_cndmask_b32 v3, v4, v3, vcc")
    a("buffer_load_dwordx4 v[200:203], v3, s[28:31], %s offen" % s(S_T0))
    a("buffer_load_dwordx4 v[204:207], v3, s[28:31], %s offen offset:16" % s(S_T0))
    a("buffer_load_dwordx4 v[208:211], v3, s[32:35], 0 offen")
    a("buffer_load_dwordx4 v[212:215], v3, s[32:35], 0 offen offset:16")
    a("v_lshrrev_b32 v4, 2, v2")
    a("v_lshlrev_b32 v4, 10, v4")
    a("v_and_b32 v5, 3, v2")
    a("v_lshrrev_b32 v6, 4, v2")
    a("v_xor_b32 v5, v5, v6")
    a("v_lshl_add_u32 v4, v5, 4, v4")
    a("s_lshl_b32 %s, %s, 18" % (s(S_T0), s(S_MT)))
    a("s_lshl_b32 %s, %s, 15" % (s(S_T1), s(S_W)))
    a("s_add_u32 %s, %s, %s" % (s(S_T0), s(S_T0), s(S_T1)))
    a("v_add_u32 %s, %s, v4" % (v(VDA), s(S_T0)))
    a("v_lshrrev_b32 v4, 5, v2")
    a("v_bfe_u32 v5, v2, 2, 3")
    a("v_and_b32 v6, 3, v2")
    a("s_lshl_b32 %s, %s, 15" % (s(S_T0), s(S_W)))
    a("s_lshl_b32 %s, %s, 9" % (s(S_T1), s(S_HP)))
    a("s_add_u32 %s, %s, %s" % (s(S_T0), s(S_T0), s(S_T1)))
    for e, vd in ((0, VDW0), (1, VDW1)):
        a("v_add_u32 v7, %d, v4" % (2 * e))
        a("v_xor_b32 v24, v5, v7")
        a("v_lshl_add_u32 v24, v24, 2, v6")
        a("v_lshlrev_b32 v24, 4, v24")
        a("v_lshl_add_u32 v24, v7, 13, v24")
        a("v_add_u32 %s, %s, v24" % (v(vd), s(S_T0)))
    a("s_lshl_b32 %s, %s, 11" % (s(S_M0A), s(S_W)))
    a("s_add_u32 %s, %s, 16384" % (s(S_M0W), s(S_M0A)))
    a("s_mov_b32 %s, 0" % s(S_KA0))
    a("s_mov_b32 %s, 16384" % s(S_KA1))
    a("s_mov_b32 %s, 0" % s(S_KW))

    def dma(stage):
        base = (stage % NS) * STG
        g = []
        g.append(["s_add_u32 m0, %s, %d" % (s(S_M0A), base), "s_nop 0",
                  "buffer_load_dwordx4 %s, s[16:19], %s offen lds" % (v(VDA), s(S_KA0))])
        g.append(["s_add_u32 m0, %s, %d" % (s(S_M0A), base + 1024), "s_add_u32 %s, %s, 64" % (s(S_KA0), s(S_KA0)),
                  "buffer_load_dwordx4 %s, s[16:19], %s offen lds" % (v(VDA), s(S_KA1))])
        g.append(["s_add_u32 m0, %s, %d" % (s(S_M0W), base), "s_add_u32 %s, %s, 64" % (s(S_KA1), s(S_KA1)),
                  "buffer_load_dwordx4 %s, s[20:23], %s offen lds" % (v(VDW0), s(S_KW))])
        g.append(["s_add_u32 m0, %s, %d" % (s(S_M0W), base + 1024), "s_nop 0",
                  "buffer_load_dwordx4 %s, s[20:23], %s offen lds" % (v(VDW1), s(S_KW)),
                  "s_add_u32 %s, %s, %d" % (s(S_KW), s(S_KW), 32 * 8192)])
        return g
    for st in range(NS - 1):
        for g in dma(st):
            for l in g: a(l)
    a("v_and_b32 v4, 31, v2")
    a("v_lshlrev_b32 v4, 6, v4")
    a("v_lshrrev_b32 v5, 5, v2")
    a("v_bfe_u32 v6, v2, 2, 2")
    a("v_xor_b32 v5, v5, v6")
    a("s_and_b32 %s, %s, 1" % (s(S_T0), s(S_W)))
    a("s_lshl_b32 %s, %s, 13" % (s(S_T0), s(S_T0)))
    a("v_add_u32 v4, %s, v4" % s(S_T0))
    a("v_lshl_add_u32 %s, v5, 4, v4" % v(VWIN[0][0]))
    a("v_xor_b32 v5, 2, v5")
    a("v_lshl_add_u32 %s, v5, 4, v4" % v(VWIN[0][1]))
    a("v_bfe_u32 v4, v2, 2, 2")
    a("v_lshrrev_b32 v5, 5, v2")
    a("v_lshl_add_u32 v5, v5, 3, v4")
    a("v_lshlrev_b32 v5, 9, v5")
    a("v_bfe_u32 v6, v2, 4, 1")
    a("v_lshl_add_u32 v5, v6, 5, v5")
    a("v_and_b32 v6, 3, v2")
    a("v_lshl_add_u32 v5, v6, 3, v5")
    a("v_add_u32 v5, 16384, v5")
    a("s_lshr_b32 %s, %s, 1" % (s(S_T0), s(S_W)))
    a("s_lshl_b32 %s, %s, 1" % (s(S_T0), s(S_T0)))
    for nb in range(2):
        a("s_add_u32 %s, %s, %d" % (s(S_T1), s(S_T0), nb))
        a("v_xor_b32 v6, %s, v4" % s(S_T1))
        a("v_lshl_add_u32 %s, v6, 6, v5" % v(VWIN[0][2 + nb]))
    for wdw in (1, 2):
        for k in range(4):
            a("v_add_u32 %s, 0x%x, %s" % (v(VWIN[wdw][k]), 65536 * wdw, v(VWIN[0][k])))
    a("v_lshlrev_b32 %s, 4, v2" % v(VST))

    def reads(it, ks, buf):
        base = (it % NS) * STG
        wdw, off = base // 65536, base % 65536
        B = BUF[buf]
        r = []
        for mb in range(4):
            r.append("ds_read_b128 %s, %s offset:%d" % (v(B + 4 * mb, 4), v(VWIN[wdw][ks]), off + mb * 2048))
        for nb in range(2):
            for h in range(2):
                r.append("ds_read_b64_tr_b16 %s, %s offset:%d" % (v(B + 16 + 4 * nb + 2 * h, 2), v(VWIN[wdw][2 + nb]), off + ks * 8192 + h * 2048))
        return [r[4], r[5], r[0], r[6], r[7], r[1], r[2], r[3]]

    def mfmas(buf, typ, first):
        B = BUF[buf]
        m = []
        for mb in range(4):
            for nb in range(2):
                d = ACC + (mb * 2 + nb) * 16
                af, wf = v(B + 4 * mb, 4), v(B + 16 + 4 * nb, 4)
                c = "0" if first else v(d, 16)
                if typ == 0: m.append("v_mfma_f32_32x32x16_bf16 %s, %s, %s, %s" % (v(d, 16), wf, af, c))
                else:        m.append("v_mfma_f32_32x32x16_bf16 %s, %s, %s, %s" % (v(d, 16), af, wf, c))
        return m

    stamp()
    a("s_waitcnt vmcnt(%d)" % (4 * (NS - 2)))
    a("s_barrier")
    stamp()
    a("s_waitcnt lgkmcnt(0)") if stamps else None
    for l in reads(0, 0, 0): a(l)
    a("s_cmp_eq_u32 %s, 0" % s(S_TYPE))
    a("s_cbranch_scc0 %s_vtype" % name)
    for typ in range(2):
        if typ == 1: a.label("%s_vtype" % name)
        for it in range(NIT):
            last_issued = min(it + NS - 2, NIT - 1)
            allow = max(0, last_issued - (it + 1)) * 4
            a("s_waitcnt vmcnt(%d) lgkmcnt(0)" % allow)
            a("s_barrier")
            rd = reads(it, 1, 1)
            dm = dma(it + NS - 1) if it + NS - 1 < NIT else []
            mm = mfmas(0, typ, it == 0)
            for i in range(8):
                a(mm[i]); a(rd[i])
                if i % 2 == 1 and dm:
                    for l in dm[i // 2]: a(l)
            a("s_waitcnt lgkmcnt(0)")
            rd = reads(it + 1, 0, 0) if it + 1 < NIT else [None] * 8
            mm = mfmas(1, typ, False)
            for i in range(8):
                a(mm[i])
                if rd[i]: a(rd[i])
        if typ == 0: a("s_branch %s_epi" % name)
    a.label("%s_epi" % name)
    stamp()
    a("s_lshr_b32 %s, %s, 2" % (s(S_T0), s(S_W)))
    a("s_lshl_b32 %s, %s, 1" % (s(S_T1), s(S_HP)))
    a("s_add_u32 %s, %s, %s" % (s(S_T0), s(S_T0), s(S_T1)))
    a("s_lshl_b32 %s, %s, 6" % (s(S_T0), s(S_T0)))
    a("s_lshl_b32 %s, %s, 3" % (s(S_T1), s(S_MT)))
    a("s_add_u32 %s, %s, %s" % (s(S_T0), s(S_T0), s(S_T1)))
    a("s_and_b32 %s, %s, 1" % (s(S_T1), s(S_W)))
    a("s_lshl_b32 %s, %s, 2" % (s(S_T1), s(S_T1)))
    a("s_add_u32 %s, %s, %s" % (s(S_T0), s(S_T0), s(S_T1)))
    a("s_lshl_b32 %s, %s, 14" % (s(S_T0), s(S_T0)))
    a("s_lshl_b32 %s, %s, 13" % (s(S_T1), s(S_TYPE)))
    a("s_add_u32 %s, %s, %s" % (s(S_T0), s(S_T0), s(S_T1)))
    a("s_bfe_u32 %s, %s, 0x10001" % (s(S_T1), s(S_W)))
    a("s_lshl_b32 %s, %s, 12" % (s(S_T1), s(S_T1)))
    a("s_add_u32 %s, %s, %s" % (s(S_T0), s(S_T0), s(S_T1)))
    a("s_add_u32 %s, %s, 0x%x" % (s(S_T0), s(S_T0), WS_KV))
    a("s_mov_b32 %s, 0x%08x" % (s(S_T1), f32bits(math.log2(math.e) / math.sqrt(128.0))))
    a("s_cmp_eq_u32 %s, 0" % s(S_TYPE))
    a("s_cselect_b32 %s, %s, 1.0" % (s(S_T1), s(S_T1)))
    a("s_nop 4")
    for mb in range(4):
        for nb in range(2):
            d = ACC + (mb * 2 + nb) * 16
            o = 128 + ((mb * 2 + nb) % 4) * 8
            for i in range(16):
                a("v_mul_f32 %s, %s, %s" % (v(d + i), s(S_T1), v(d + i)))
            for i in range(8):
                a("v_cvt_pk_bf16_f32 %s, %s, %s" % (v(o + i), v(d + 2 * i), v(d + 2 * i + 1)))
            a("buffer_store_dwordx4 %s, %s, s[24:27], %s offen offset:%d" % (v(o, 4), v(VST), s(S_T0), nb * 2048))
            a("buffer_store_dwordx4 %s, %s, s[24:27], %s offen offset:%d" % (v(o + 4, 4), v(VST), s(S_T0), nb * 2048 + 1024))
        a("s_add_u32 %s, %s, 16384" % (s(S_T0), s(S_T0)))
    stamp()
    a("v_and_b32 v2, 63, %s" % v(VTID))
    X = 32
    for i in range(8):
        a("v_lshlrev_b32 %s, 16, %s" % (v(X + 2 * i), v(200 + i)))
        a("v_and_b32 %s, 0xffff0000, %s" % (v(X + 2 * i + 1), v(200 + i)))
        a("v_lshlrev_b32 %s, 16, %s" % (v(48 + 2 * i), v(208 + i)))
        a("v_and_b32 %s, 0xffff0000, %s" % (v(48 + 2 * i + 1), v(208 + i)))
    a("v_add_f32 v24, %s, %s" % (v(X), v(X + 1)))
    for i in range(2, 16):
        a("v_add_f32 v24, v24, %s" % v(X + i))
    wave_sum(a, 24)
    a("s_nop 1")
    a("v_readlane_b32 %s, v24, 63" % s(S_T0))
    a("v_mov_b32 v25, 0x%08x" % f32bits(1.0 / 576))
    a("s_nop 1")
    a("v_mul_f32 v25, %s, v25" % s(S_T0))
    a("v_sub_f32 v26, %s, v25" % v(X))
    a("v_mul_f32 v24, v26, v26")
    for i in range(1, 16):
        a("v_sub_f32 v26, %s, v25" % v(X + i))
        a("v_fmac_f32 v24, v26, v26")
    a("v_cmp_gt_u32 vcc, 36, v2")
    a("s_nop 1")
    a("v_cndmask_b32 v24, 0, v24, vcc")
    wave_sum(a, 24)
    a("s_nop 1")
    a("v_readlane_b32 %s, v24, 63" % s(S_T0))
    a("v_mov_b32 v26, 0x%08x" % f32bits(1.0 / 576))
    a("s_nop 1")
    a("v_mul_f32 v26, %s, v26" % s(S_T0))
    a("v_cvt_pk_bf16_f32 v27, v25, v26")
    a("v_lshlrev_b32 v25, 16, v27")
    a("v_and_b32 v26, 0xffff0000, v27")
    a("v_add_f32 v26, 0x%08x, v26" % f32bits(1e-5))
    a("v_cvt_pk_bf16_f32 v26, v26, v26")
    a("v_lshlrev_b32 v26, 16, v26")
    a("v_sqrt_f32 v26, v26")
    a("s_nop 0")
    a("v_cvt_pk_bf16_f32 v26, v26, v26")
    a("v_lshlrev_b32 v26, 16, v26")
    a("v_rcp_f32 v27, v26")
    a("v_mov_b32 v24, 0")
    for i in range(8):
        x0, x1 = X + 2 * i, X + 2 * i + 1
        a("v_sub_f32 %s, %s, v25" % (v(x0), v(x0)))
        a("v_sub_f32 %s, %s, v25" % (v(x1), v(x1)))
        a("v_cvt_pk_bf16_f32 v28, %s, %s" % (v(x0), v(x1)))
        a("v_lshlrev_b32 %s, 16, v28" % v(x0))
        a("v_and_b32 %s, 0xffff0000, v28" % v(x1))
        for x in (x0, x1):
            a("v_mul_f32 v29, %s, v27" % v(x))
            a("v_fma_f32 v30, -v29, v26, %s" % v(x))
            a("v_fma_f32 %s, v30, v27, v29" % v(x))
        a("v_cvt_pk_bf16_f32 %s, %s, %s" % (v(8 + i), v(x0), v(x1)))
        a("v_lshlrev_b32 %s, 16, %s" % (v(x0), v(8 + i)))
        a("v_and_b32 %s, 0xffff0000, %s" % (v(x1), v(8 + i)))
        a("v_fmac_f32 v24, %s, %s" % (v(x0), v(48 + 2 * i)))
        a("v_fmac_f32 v24, %s, %s" % (v(x1), v(48 + 2 * i + 1)))
    a("s_lshr_b32 %s, %s, 5" % (s(S_T0), s(S_ROW)))
    a("s_mul_i32 %s, %s, %d" % (s(S_T0), s(S_T0), 36 * 1024))
    a("s_and_b32 %s, %s, 31" % (s(S_T1), s(S_ROW)))
    a("s_lshl_b32 %s, %s, 4" % (s(S_T1), s(S_T1)))
    a("s_add_u32 %s, %s, %s" % (s(S_T0), s(S_T0), s(S_T1)))
    if WS_XNF: a("s_add_u32 %s, %s, 0x%x" % (s(S_T0), s(S_T0), WS_XNF))
    a("v_lshlrev_b32 v3, 10, v2")
    a("v_mov_b32 v4, 0x40000000")
    a("v_cndmask_b32 v3, v4, v3, vcc")
    a("buffer_store_dwordx4 v[8:11], v3, s[24:27], %s offen" % s(S_T0))
    a("buffer_store_dwordx4 v[12:15], v3, s[24:27], %s offen offset:512" % s(S_T0))
    a("s_mul_i32 %s, %s, 1152" % (s(S_T0), s(S_ROW)))
    a("s_add_u32 %s, %s, 0x%x" % (s(S_T0), s(S_T0), WS_XNR))
    a("v_lshlrev_b32 v3, 5, v2")
    a("v_cndmask_b32 v3, v4, v3, vcc")
    a("buffer_store_dwordx4 v[8:11], v3, s[24:27], %s offen" % s(S_T0))
    a("buffer_store_dwordx4 v[12:15], v3, s[24:27], %s offen offset:16" % s(S_T0))
    wave_sum(a, 24)
    a("s_nop 1")
    a("v_cvt_pk_bf16_f32 v24, v24, v24")
    a("v_and_b32 v24, 0xffff, v24")
    a("v_xor_b32 v25, 0xffff, v24")
    a("v_or_b32 v26, 0x8000, v24")
    a("v_cmp_lt_u32 vcc, v24, 0x8000") if False else None
    a("v_mov_b32 v27, 0x8000")
    a("v_cmp_lt_u32 vcc, v24, v27")
    a("s_sub_u32 %s, 2047, %s" % (s(S_T1), s(S_ROW)))
    a("s_nop 0")
    a("v_cndmask_b32 v24, v25, v26, vcc")
    a("v_lshlrev_b32 v24, 16, v24")
    a("v_or_b32 v24, %s, v24" % s(S_T1))
    a("v_mov_b32 v4, 0x40000000")
    a("v_mov_b32 v3, 0")
    a("v_cmp_eq_u32 vcc, 63, v2")
    a("s_lshl_b32 %s, %s, 2" % (s(S_T0), s(S_ROW)))
    a("s_add_u32 %s, %s, 0x%x" % (s(S_T0), s(S_T0), WS_RKEY))
    a("v_cndmask_b32 v3, v4, v3, vcc")
    a("buffer_store_dword v24, v3, s[24:27], %s offen" % s(S_T0))

    if stamps:
        stamp()
        a("s_waitcnt vmcnt(0)")
        stamp()
        a("s_waitcnt lgkmcnt(0)")
        a("s_lshl_b32 %s, %s, 6" % (s(S_T0), s(S_ROW)))
        a("s_add_u32 %s, %s, 0x%x" % (s(S_T0), s(S_T0), WS_STAMP))
        a("v_mov_b32 v1, 0")
        for i in range(nst[0]):
            a("v_mov_b32 v2, %s" % s(52 + 2 * i))
            a("buffer_store_dword v2, v1, s[24:27], %s offen offset:%d" % (s(S_T0), 4 * i))
            a("v_mov_b32 v2, %s" % s(70 + 2 * i))
            a("buffer_store_dword v2, v1, s[24:27], %s offen offset:%d" % (s(S_T0), 32 + 4 * i))
    a.label("%s_end" % name)
    a("s_endpgm")
    return dict(name=name, grid=256, block=512, lds=NS * STG, vgpr=216)

import struct, math
def f32bits(x):
    return struct.unpack("<I", struct.pack("<f", x))[0]
```

```python
from asmlib import *
import struct, math
def f32bits(x): return struct.unpack("<I", struct.pack("<f", x))[0]

class VM:
    def __init__(self): self.q = []
    def issue(self, tag): self.q.append(tag)
    def need(self, tag):
        idx = max(i for i, t in enumerate(self.q) if t == tag)
        return len(self.q) - 1 - idx

O, S, NEGM, P, Q, FR, T = 0, [64, 80], 96, [112, 120], 128, 160, 192
QACC = 64
VL, VTS, VRB, VL16, VLQ, VDW, VNINF, VTMP = 240, 241, 242, 243, 244, 245, 246, 247
VWB = [248, 249, 250, 251]
VTM2, VTM3 = 252, 253
NXN = 12
XN = lambda k: 192 + 4 * (k % NXN)
S_W, S_H, S_I, S_QB, S_N, S_CNT, S_SLOT, S_SRC, S_DST, S_JL, S_J = 36, 37, 38, 39, 40, 41, 42, 43, 44, 45, 46
S_T0, S_T1, S_T2, S_RET = 47, 48, 49, 50
S_TH = 52
S_U0, S_SRC4, S_XN = 53, 54, 55
SLOT = 32768
THRESH = 65536.0

def gen_k2(a, name="k2_kernel", stamps=False):
    L = lambda x: "%s_%s" % (name, x)
    nst = [0]
    def stamp():
        if stamps:
            a("s_memtime %s" % s(56 + 2 * nst[0], 2)); a("s_memrealtime %s" % s(74 + 2 * nst[0], 2)); nst[0] += 1
    kernel_begin(a, name)
    a("s_cmp_ge_u32 s2, 256")
    a("s_cbranch_scc1 %s" % L("end"))
    a("s_load_dwordx2 s[4:5], s[0:1], %d" % KA_WQ)
    a("s_load_dwordx2 s[6:7], s[0:1], %d" % KA_WS)
    stamp()
    a("v_lshrrev_b32 v1, 6, v0")
    a("v_and_b32 v2, 63, v0")
    a("v_readfirstlane_b32 %s, v1" % s(S_W))
    a("s_and_b32 %s, s2, 7" % s(S_T0))
    a("s_lshr_b32 %s, s2, 3" % s(S_T1))
    a("s_and_b32 %s, %s, 3" % (s(S_T2), s(S_T1)))
    a("s_lshl_b32 %s, %s, 2" % (s(S_H), s(S_T0)))
    a("s_add_u32 %s, %s, %s" % (s(S_H), s(S_H), s(S_T2)))
    a("s_lshr_b32 %s, %s, 2" % (s(S_I), s(S_T1)))
    a("s_lshl_b32 %s, %s, 2" % (s(S_T0), s(S_I)))
    a("s_add_u32 %s, %s, %s" % (s(S_T0), s(S_T0), s(S_W)))
    a("s_sub_u32 %s, 67, %s" % (s(S_T1), s(S_T0)))
    a("s_cmp_lt_u32 %s, 4" % s(S_W))
    a("s_cselect_b32 %s, %s, %s" % (s(S_QB), s(S_T0), s(S_T1)))
    a("s_add_u32 %s, %s, 1" % (s(S_N), s(S_QB)))
    a("s_lshl_b32 %s, %s, 1" % (s(S_T0), s(S_I)))
    a("s_sub_u32 %s, 32, %s" % (s(S_JL), s(S_T0)))
    a("v_lshlrev_b32 %s, 4, v2" % v(VL16))
    a("v_lshrrev_b32 v3, 4, v2")
    a("v_bfe_u32 v4, v2, 2, 2")
    a("v_xor_b32 v4, v4, v3")
    a("v_and_b32 v5, 3, v2")
    a("v_lshl_add_u32 v4, v4, 2, v5")
    a("v_lshlrev_b32 v4, 4, v4")
    a("v_lshl_add_u32 %s, v3, 13, v4" % v(VDW))
    a("s_mul_i32 %s, %s, %d" % (s(S_XN), s(S_QB), 36 * 1024))
    if WS_XNF: a("s_add_u32 %s, %s, 0x%x" % (s(S_XN), s(S_XN), WS_XNF))
    a("s_lshl_b32 %s, %s, 13" % (s(S_DST), s(S_W)))
    a("s_lshl_b32 %s, %s, 18" % (s(S_SRC), s(S_W)))
    a("s_lshl_b32 %s, %s, 8" % (s(S_T0), s(S_H)))
    a("s_add_u32 %s, %s, %s" % (s(S_SRC), s(S_SRC), s(S_T0)))
    a("s_and_b32 %s, %s, 0x7ffff" % (s(S_SRC4), s(S_SRC)))
    a("s_lshl_b32 %s, %s, 20" % (s(S_T0), s(S_H)))
    a("s_add_u32 %s, %s, 0x%x" % (s(S_T0), s(S_T0), WS_KV))
    a("s_cmp_lt_u32 %s, 4" % s(S_W))
    a("s_waitcnt lgkmcnt(0)")
    a("s_mov_b32 s8, s4"); a("s_mov_b32 s9, s5"); a("s_mov_b32 s10, 0x%x" % (576 * 8192)); a("s_mov_b32 s11, 0x20000")
    a("s_mov_b32 s12, s6"); a("s_mov_b32 s13, s7"); a("s_mov_b32 s14, 0x%x" % WS_BYTES); a("s_mov_b32 s15, 0x20000")
    a("s_cbranch_scc0 %s" % L("B"))

    def xn_load(k):
        g = []
        if k % 4 == 0 and k: g.append("s_add_u32 %s, %s, 4096" % (s(S_XN), s(S_XN)))
        g.append("buffer_load_dwordx4 %s, %s, s[12:15], %s offen offset:%d" % (v(XN(k), 4), v(VL16), s(S_XN), (k % 4) * 1024))
        return g
    def wq_dma(u):
        g = []
        for q in range(8):
            g.append(["s_add_u32 m0, %s, %d" % (s(S_DST), (u % 4) * SLOT + q * 1024),
                      "s_add_u32 %s, %s, %d" % (s(S_T2), s(S_SRC if u < 4 else S_SRC4), (u * 128 + q * 4) * 8192),
                      "buffer_load_dwordx4 %s, s[8:11], %s offen lds" % (v(VDW), s(S_T2))])
        return g
    def kv_dma():
        g = []
        for q in range(8):
            pre = []
            if q == 0: pre = ["s_mov_b32 m0, %s" % s(S_DST), "s_max_i32 %s, %s, 0" % (s(S_U0), s(S_SRC)), "s_add_u32 %s, %s, 4096" % (s(S_T2), s(S_U0))]
            if q == 4: pre = ["s_add_u32 m0, %s, 4096" % s(S_DST), "s_add_u32 %s, %s, %d" % (s(S_DST), s(S_DST), SLOT)]
            ins = "buffer_load_dwordx4 %s, s[16:19], %s offen offset:%d lds" % (v(VL16), s(S_U0) if q < 4 else s(S_T2), (q % 4) * 1024)
            post = []
            if q == 7: post = ["s_add_u32 %s, %s, 32768" % (s(S_SRC), s(S_SRC)), "s_and_b32 %s, %s, 0x1ffff" % (s(S_DST), s(S_DST))]
            g.append(pre + [ins] + post)
        return g
    def emit(gs):
        for g in gs:
            for l in g: a(l)
    def misc_setup():
        a("s_add_u32 s16, s6, %s" % s(S_T0))
        a("s_addc_u32 s17, s7, 0")
        a("s_mov_b32 s18, 0x100000")
        a("s_mov_b32 s19, 0x20000")
        a("s_mov_b32 %s, 0x%08x" % (s(S_TH), f32bits(THRESH)))
        a("v_bfe_u32 v4, v2, 2, 2")
        a("v_lshrrev_b32 v5, 5, v2")
        a("v_lshl_add_u32 v6, v5, 3, v4")
        a("v_lshlrev_b32 v6, 8, v6")
        a("v_bfe_u32 v7, v2, 4, 1")
        a("v_lshl_add_u32 v6, v7, 5, v6")
        a("v_and_b32 v7, 3, v2")
        a("v_lshl_add_u32 v6, v7, 3, v6")
        for db in range(4):
            a("v_xor_b32 v7, %d, v4" % db)
            a("v_lshl_add_u32 %s, v7, 6, v6" % v(VWB[db]))
        a("v_and_b32 v7, 31, v2")
        a("v_lshlrev_b32 v5, 2, v5")
        a("v_sub_u32 %s, v7, v5" % v(VLQ))
        a("v_mov_b32 %s, 0xff800000" % v(VNINF))

    def mask_block():
        for r in range(16):
            a("v_cmp_le_i32 vcc, %d, %s" % (8 * (r // 4) + r % 4, v(VLQ)))
            a("s_nop 1")
            a("v_cndmask_b32 %s, %s, %s, vcc" % (v(NEGM + r), v(VNINF), v(NEGM + r)))
        a("s_nop 1")

    def qk(p, g, c0=None):
        c = (c0 or v(NEGM, 16)) if g == 0 else v(S[p], 16)
        return "v_mfma_f32_32x32x16_bf16 %s, %s, %s, %s" % (v(S[p], 16), v(FR + 4 * g, 4), v(Q + 4 * g, 4), c)
    def pv(p, g):
        db, st = g % 4, g // 4
        return "v_mfma_f32_32x32x16_bf16 %s, %s, %s, %s" % (v(O + 16 * db, 16), v(FR + 4 * g, 4), v(P[p] + 4 * st, 4), v(O + 16 * db, 16))
    def rd_k(g, off):
        return "ds_read_b128 %s, %s offset:%d" % (v(FR + 4 * g, 4), v(VRB), off + g * 1024)
    def rd_v(g, off):
        return "ds_read_b128 %s, %s offset:%d" % (v(FR + 4 * g, 4), v(VRB), off + (g % 4) * 2048 + (g // 4) * 1024)
    stubs = []
    def sm_gaps(p):
        e = lambda i: v(T + i % 8)
        g = [[] for _ in range(16)]
        cnt = [1, 1, 2, 1, 2, 1, 2, 1, 1, 1, 1, 1, 1] if p == 0 else [2, 1, 2, 1, 1, 1, 2, 1, 1, 1, 1, 1, 1]
        i = 0; done = []
        for gi, c in enumerate(cnt):
            for _ in range(c): g[gi].append("v_exp_f32 %s, %s" % (e(i), v(S[p] + i))); i += 1
            done.append(i)
        for k in range(8):
            gi = next(x for x in range(13) if done[x] >= 2 * k + 2) + 1
            g[gi].append("v_cvt_pk_bf16_f32 %s, %s, %s" % (v(P[p] + k), e(2 * k), e(2 * k + 1)))
        for i in range(1, 16):
            gi = next(x for x in range(13) if done[x] >= i + 1) + 1
            g[gi].append("v_add_f32 %s, %s, %s" % (v(VTS), v(VTS) if i > 1 else e(0), e(i)))
        lb = a.newlabel(L("chk"))
        g[14].append("v_cmp_nge_f32 vcc, %s, %s" % (s(S_TH), v(VTS)))
        g[15] = ["s_cbranch_vccnz %s_slow" % lb, "@" + lb + "_back", "v_add_f32 %s, %s, %s" % (v(VL), v(VL), v(VTS))]
        stubs.append((lb, p))
        return g
    slot_salu = ["s_add_u32 %s, %s, %d" % (s(S_SLOT), s(S_SLOT), SLOT), "s_and_b32 %s, %s, 0x1ffff" % (s(S_SLOT), s(S_SLOT))]
    set_rb = "v_add_u32 %s, %s, %s" % (v(VRB), s(S_SLOT), v(VL16))
    def half(p, isA, dma=None):
        voff = 16384 if p == 0 else 24576
        koff = 0 if p == 0 else 8192
        gaps = sm_gaps(p)
        o = []
        for g in range(16):
            if g % 4 == 0:
                o.append("s_waitcnt vmcnt(8) lgkmcnt(4)" if (isA and p == 0 and g == 0) else "s_waitcnt lgkmcnt(4)")
            o.append(qk(1 - p, g) if g < 8 else pv(1 - p, g - 8))
            if p == 0 and g == 0: o += ["s_barrier", set_rb]
            rd = rd_v(g, voff) if g < 8 else rd_k(g - 8, koff)
            if g == 15: o += gaps[g][:2] + [rd] + gaps[g][2:]
            else: o += [rd] + gaps[g]
            if p == 1 and g == 11: o += slot_salu
            if dma and 1 <= g <= 8: o += dma[g - 1]
        return o
    def put(lst):
        for l in lst:
            if l.startswith("@"): a.label(l[1:])
            else: a(l)
    def half_tail(p):
        voff = 16384 if p == 0 else 24576
        gaps = sm_gaps(p)
        for g in range(8): a(rd_v(g, voff))
        for g in range(8): put(gaps[g])
        for g in range(8, 16):
            if g % 4 == 0: a("s_waitcnt lgkmcnt(%d)" % (12 - g))
            a(pv(1 - p, g - 8))
            put(gaps[g])
    def final_pv(p, voff):
        for g in range(8): a(rd_v(g, voff))
        for g in range(8):
            if g % 2 == 0: a("s_waitcnt lgkmcnt(%d)" % (6 - g))
            a(pv(p, g))

    for team in "AB":
        isA = team == "A"
        TL = lambda x: L(team + "_" + x)
        if not isA: a.label(L("B"))
        vm = VM()
        D = 6
        barpos = lambda u: max(32 * u - D, -1)
        items = []
        for k in range(36):
            items.append((4 * (k - NXN) + 3 if k >= NXN else -1, 4 * k - 40, "x%d" % k, xn_load(k)))
        if isA:
            for u in range(1, 7):
                gs = wq_dma(u) if u < 5 else kv_dma()
                if u == 5:
                    gs[0] = ["s_mul_i32 %s, %s, 16384" % (s(S_T0), s(S_W)),
                             "s_add_u32 %s, %s, %d" % (s(S_T1), s(S_T0), (-73728) & 0xffffffff),
                             "s_cmp_lt_u32 %s, 2" % s(S_W),
                             "s_cselect_b32 %s, %s, %s" % (s(S_SRC), s(S_T0), s(S_T1)),
                             "s_add_u32 %s, %s, %d" % (s(S_DST), s(S_DST), SLOT)] + gs[0]
                for q, g in enumerate(gs):
                    items.append((barpos(u - 2) if u >= 4 else -1, 32 * u - 48 + q * 0.01, "u%d" % u, g))
        items.sort(key=lambda x: x[1])
        if isA:
            for g in wq_dma(0):
                put(g); vm.issue("u0")
        def pop_item(f):
            for it in items:
                if it[0] <= f:
                    items.remove(it); put(it[3]); vm.issue(it[2]); return True
            return False
        for _ in range(4 if isA else 8): pop_item(-1)
        misc_setup()
        stamp() if isA else None
        def q_read(f):
            ks, db = f // 4, f % 4
            u, kk = ks // 8, ks % 8
            if kk == 0 and db == 0:
                if isA: a("s_waitcnt vmcnt(%d)" % vm.need("u%d" % u))
                a("s_barrier")
                if u == 2:
                    for b in VWB: a("v_add_u32 %s, 0x10000, %s" % (v(b), v(b)))
                if u == 4:
                    for b in VWB: a("v_subrev_u32 %s, 0x10000, %s" % (v(b), v(b)))
            off = (u % 2) * SLOT + kk * 4096
            for h in range(2):
                a("ds_read_b64_tr_b16 %s, %s offset:%d" % (v(FR + 4 * (f % 8) + 2 * h, 2), v(VWB[db]), off + h * 1024))
        for f in range(D): q_read(f)
        for f in range(144):
            ks, db = f // 4, f % 4
            if f % 2 == 0:
                nout = 2 * max(min(f + D, 144) - f - 2, 0)
                w = "s_waitcnt lgkmcnt(%d)" % nout
                if db == 0: w = "s_waitcnt vmcnt(%d) lgkmcnt(%d)" % (min(vm.need("x%d" % ks), 63), nout)
                a(w)
            c = "0" if ks == 0 else v(QACC + 16 * db, 16)
            a("v_mfma_f32_32x32x16_bf16 %s, %s, %s, %s" % (v(QACC + 16 * db, 16), v(FR + 4 * (f % 8), 4), v(XN(ks), 4), c))
            if f + D < 144: q_read(f + D)
            pop_item(f)
            if 8 <= f < 72: a("v_mov_b32 %s, 0" % v(O + f - 8))
        assert not items
        stamp() if isA else None
        if isA: a("s_waitcnt vmcnt(%d)" % vm.need("u5"))
        a("s_barrier")
        a("s_mov_b32 %s, %d" % (s(S_SLOT), 2 * SLOT))
        a("v_add_u32 %s, %d, %s" % (v(VRB), SLOT, v(VL16)))
        for g in range(8): a(rd_k(g, 0))
        a("v_mov_b32 %s, 0" % v(VL))
        a("s_lshr_b32 %s, %s, 1" % (s(S_CNT), s(S_N)))
        for i in range(32):
            a("v_cvt_pk_bf16_f32 %s, %s, %s" % (v(Q + i), v(QACC + 2 * i), v(QACC + 2 * i + 1)))
        for i in range(8): a("v_mov_b32 %s, 0" % v(P[1] + i))
        for i in range(16): a("v_mov_b32 %s, 0" % v(NEGM + i))
        a("s_cmp_eq_u32 %s, 1" % s(S_N))
        a("s_cbranch_scc0 %s" % TL("nomask0"))
        mask_block()
        a.label(TL("nomask0"))
        dm = kv_dma() if isA else None
        for g in range(8):
            if g % 4 == 0: a("s_waitcnt lgkmcnt(4)")
            a(qk(0, g))
            a(rd_k(g, 8192))
            if dm: put(dm[g])
        a("s_nop 15")
        a("v_max3_f32 %s, %s, %s, %s" % (v(VTMP), v(S[0]), v(S[0] + 1), v(S[0] + 2)))
        for i in range(3, 15, 2):
            a("v_max3_f32 %s, %s, %s, %s" % (v(VTMP), v(VTMP), v(S[0] + i), v(S[0] + i + 1)))
        a("v_max_f32 %s, %s, %s" % (v(VTMP), v(VTMP), v(S[0] + 15)))
        a("v_mov_b32 %s, %s" % (v(VTM2), v(VTMP)))
        a("s_nop 1")
        a("v_permlane32_swap_b32 %s, %s" % (v(VTMP), v(VTM2)))
        a("s_nop 1")
        a("v_max_f32 %s, %s, %s" % (v(VTMP), v(VTMP), v(VTM2)))
        for i in range(16): a("v_sub_f32 %s, 0, %s" % (v(NEGM + i), v(VTMP)))
        for i in range(16): a("v_sub_f32 %s, %s, %s" % (v(S[0] + i), v(S[0] + i), v(VTMP)))
        stamp() if isA else None
        a("s_mov_b32 %s, %s" % (s(S_J), s(S_CNT)))
        a("s_cmp_eq_u32 %s, 0" % s(S_CNT))
        a("s_cbranch_scc1 %s" % TL("seqO2"))
        a("s_sub_u32 %s, %s, 1" % (s(S_CNT), s(S_CNT)))
        a("s_cmp_eq_u32 %s, 0" % s(S_CNT))
        a("s_cbranch_scc1 %s" % TL("endseq"))
        a("s_branch %s" % TL("h0"))
        def period_split():
            b = half(0, isA, kv_dma() if isA else None) + half(1, isA)
            idx = [i for i, l in enumerate(b) if "mfma" in l]
            b.insert(idx[16 + 13], "s_cmp_lg_u32 %s, 0" % s(S_CNT))
            b.insert(idx[16 + 9] + 1, "s_sub_u32 %s, %s, 1" % (s(S_CNT), s(S_CNT)))
            cut = idx[16 + 13] + 3
            assert "mfma" in b[cut - 1]
            return b[:cut], b[cut:]
        head, tail = period_split()
        a.raw(".p2align 6")
        a.label(TL("rot"))
        put(tail)
        a.label(TL("h0"))
        put(head)
        a("s_cbranch_scc1 %s" % TL("rot"))
        _, tail2 = period_split()
        stubs.pop(-2)
        put(tail2)
        a.label(TL("endseq"))
        a("s_bitcmp1_b32 %s, 0" % s(S_N))
        a("s_cbranch_scc1 %s" % TL("seqO"))
        mask_block()
        put(half(0, isA, kv_dma() if isA else None))
        half_tail(1)
        put(slot_salu)
        if isA: a("s_waitcnt vmcnt(8)")
        a("s_barrier")
        a(set_rb)
        if isA: emit(kv_dma())
        final_pv(1, 16384)
        a("s_branch %s" % TL("epi"))
        a.label(TL("seqO"))
        put(half(0, isA, kv_dma() if isA else None))
        mask_block()
        put(half(1, isA))
        a.label(TL("seqO2"))
        if isA: a("s_waitcnt vmcnt(8)")
        a("s_barrier")
        a(set_rb)
        if isA: emit(kv_dma())
        half_tail(0)
        final_pv(0, 24576)
        a.label(TL("epi"))
        a("v_mov_b32 %s, %s" % (v(VTM2), v(VL)))
        a("s_nop 1")
        a("v_permlane32_swap_b32 %s, %s" % (v(VL), v(VTM2)))
        a("s_lshl_b32 %s, %s, 5" % (s(S_T0), s(S_QB)))
        a("s_add_u32 %s, %s, %s" % (s(S_T0), s(S_T0), s(S_H)))
        a("v_add_f32 %s, %s, %s" % (v(VL), v(VL), v(VTM2)))
        a("v_rcp_f32 %s, %s" % (v(VL), v(VL)))
        a("s_lshl_b32 %s, %s, 13" % (s(S_T0), s(S_T0)))
        a("s_add_u32 %s, %s, 0x%x" % (s(S_T0), s(S_T0), WS_CTX))
        a("s_add_u32 %s, %s, 4096" % (s(S_T1), s(S_T0)))
        a("s_nop 7")
        for c in range(8):
            for i in range(8):
                a("v_mul_f32 %s, %s, %s" % (v(O + 8 * c + i), v(O + 8 * c + i), v(VL)))
            for i in range(4):
                a("v_cvt_pk_bf16_f32 %s, %s, %s" % (v(64 + 4 * c + i), v(O + 8 * c + 2 * i), v(O + 8 * c + 2 * i + 1)))
            a("buffer_store_dwordx4 %s, %s, s[12:15], %s offen offset:%d" % (v(64 + 4 * c, 4), v(VL16), s(S_T0) if c < 4 else s(S_T1), (c % 4) * 1024))
        stamp() if isA else None
        if isA:
            a("s_waitcnt vmcnt(16)")
            a("s_branch %s" % TL("ld_in"))
            a.label(TL("ld"))
            a("s_waitcnt vmcnt(8)")
            a.label(TL("ld_in"))
            a("s_barrier")
            a("s_add_u32 %s, %s, 1" % (s(S_J), s(S_J)))
            a("s_add_u32 %s, %s, 2" % (s(S_T0), s(S_J)))
            a("s_cmp_gt_u32 %s, %s" % (s(S_T0), s(S_JL)))
            a("s_cbranch_scc1 %s" % TL("ld_drain"))
            emit(kv_dma())
            a("s_branch %s" % TL("ld"))
            a.label(TL("ld_drain"))
            a("s_cmp_ge_u32 %s, %s" % (s(S_J), s(S_JL)))
            a("s_cbranch_scc1 %s" % TL("done"))
            a("s_waitcnt vmcnt(0)")
            a("s_barrier")
            a.label(TL("done"))
        if stamps:
            if not isA:
                nst[0] = 6 - 1
                for i in range(1, 5):
                    a("s_mov_b64 %s, s[56:57]" % s(56 + 2 * i, 2)); a("s_mov_b64 %s, s[74:75]" % s(74 + 2 * i, 2))
            stamp()
            a("s_waitcnt vmcnt(0)")
            stamp()
            a("s_waitcnt lgkmcnt(0)")
            a("s_lshl_b32 %s, s2, 3" % s(S_T0))
            a("s_add_u32 %s, %s, %s" % (s(S_T0), s(S_T0), s(S_W)))
            a("s_lshl_b32 %s, %s, 6" % (s(S_T0), s(S_T0)))
            a("s_add_u32 %s, %s, 0x%x" % (s(S_T0), s(S_T0), WS_STAMP))
            a("v_mov_b32 v1, 0")
            for i in range(nst[0]):
                a("v_mov_b32 v2, %s" % s(56 + 2 * i))
                a("buffer_store_dword v2, v1, s[12:15], %s offen offset:%d" % (s(S_T0), 4 * i))
                a("v_mov_b32 v2, %s" % s(74 + 2 * i))
                a("buffer_store_dword v2, v1, s[12:15], %s offen offset:%d" % (s(S_T0), 32 + 4 * i))
        a("s_endpgm")
    for lb, p in stubs:
        a.label(lb + "_slow")
        a("s_call_b64 %s, %s" % (s(S_RET, 2), L("slow%d" % p)))
        a("s_branch %s_back" % lb)
    for p in range(2):
        a.label(L("slow%d" % p))
        C, Nx = S[p], S[1 - p]
        a("s_nop 15")
        a("v_max3_f32 %s, %s, %s, %s" % (v(VTMP), v(C), v(C + 1), v(C + 2)))
        for i in range(3, 15, 2):
            a("v_max3_f32 %s, %s, %s, %s" % (v(VTMP), v(VTMP), v(C + i), v(C + i + 1)))
        a("v_max3_f32 %s, %s, %s, 0" % (v(VTMP), v(VTMP), v(C + 15)))
        a("v_mov_b32 %s, %s" % (v(VTM2), v(VTMP)))
        a("s_nop 1")
        a("v_permlane32_swap_b32 %s, %s" % (v(VTMP), v(VTM2)))
        a("s_nop 1")
        a("v_max_f32 %s, %s, %s" % (v(VTMP), v(VTMP), v(VTM2)))
        a("v_exp_f32 %s, -%s" % (v(VTM2), v(VTMP)))
        for i in range(16):
            a("v_sub_f32 %s, %s, %s" % (v(C + i), v(C + i), v(VTMP)))
            a("v_sub_f32 %s, %s, %s" % (v(Nx + i), v(Nx + i), v(VTMP)))
            a("v_sub_f32 %s, %s, %s" % (v(NEGM + i), v(NEGM + i), v(VTMP)))
        for i in range(64):
            a("v_mul_f32 %s, %s, %s" % (v(O + i), v(O + i), v(VTM2)))
        a("v_mul_f32 %s, %s, %s" % (v(VL), v(VL), v(VTM2)))
        a("v_mov_b32 %s, 0" % v(VTS))
        for k in range(8):
            a("v_exp_f32 %s, %s" % (v(T), v(C + 2 * k)))
            a("v_exp_f32 %s, %s" % (v(T + 1), v(C + 2 * k + 1)))
            a("v_add_f32 %s, %s, %s" % (v(VTS), v(VTS), v(T)))
            a("v_add_f32 %s, %s, %s" % (v(VTS), v(VTS), v(T + 1)))
            a("v_cvt_pk_bf16_f32 %s, %s, %s" % (v(P[p] + k), v(T), v(T + 1)))
        a("s_nop 1")
        a("s_setpc_b64 %s" % s(S_RET, 2))
    a.label(L("end"))
    a("s_endpgm")
    return dict(name=name, grid=256, block=512, lds=4 * SLOT, vgpr=256)
```

```python
from asmlib import *
from k2 import VM, f32bits

NPART = 144
def gen_k3(a, name="k3_kernel", stamps=False):
    L = lambda x: "%s_%s" % (name, x)
    ACC, CR, WF = 0, 96, [160, 172]
    VL16, VWOFF, VTR, VT = 184, [185, 186, 187], 188, 189
    RES = 192
    VTID, VRO, VLR = 216, 217, 218
    S_W, S_MT, S_NT, S_C0, S_C1, S_WS, S_LB, S_CNT, S_T0, S_T1, S_T2 = 36, 37, 38, 39, 40, 41, 42, 43, 44, 45, 46
    PD, RW = 7, 8
    WREG = RW * 3072
    ROW = 400
    kernel_begin(a, name)
    a("s_cmp_ge_u32 s2, 192")
    a("s_cbranch_scc1 %s" % L("end"))
    a("s_load_dwordx2 s[4:5], s[0:1], %d" % KA_WO)
    a("s_load_dwordx2 s[6:7], s[0:1], %d" % KA_WS)
    a("s_load_dwordx2 s[20:21], s[0:1], %d" % KA_X)
    a("s_load_dwordx2 s[22:23], s[0:1], %d" % KA_OUT)
    a("v_mov_b32 %s, v0" % v(VTID))
    a("v_lshrrev_b32 v1, 6, v0")
    a("v_and_b32 v2, 63, v0")
    a("v_readfirstlane_b32 %s, v1" % s(S_W))
    a("s_and_b32 %s, s2, 7" % s(S_T0))
    a("s_lshr_b32 %s, s2, 3" % s(S_T1))
    a("s_mul_i32 %s, %s, 43" % (s(S_T2), s(S_T1)))
    a("s_lshr_b32 %s, %s, 8" % (s(S_T2), s(S_T2)))
    a("s_lshl_b32 %s, %s, 2" % (s(S_MT), s(S_T0)))
    a("s_add_u32 %s, %s, %s" % (s(S_MT), s(S_MT), s(S_T2)))
    a("s_mul_i32 %s, %s, 6" % (s(S_T2), s(S_T2)))
    a("s_sub_u32 %s, %s, %s" % (s(S_NT), s(S_T1), s(S_T2)))
    a("v_lshlrev_b32 %s, 4, v2" % v(VL16))
    for q in range(3):
        a("v_add_u32 v3, %d, v2" % (64 * q))
        a("v_mul_u32_u24 v4, 0x5556, v3")
        a("v_lshrrev_b32 v4, 18, v4")
        a("v_mul_u32_u24 v5, 12, v4")
        a("v_sub_u32 v5, v3, v5")
        a("v_mul_u32_u24 v4, 1152, v4")
        a("v_lshl_add_u32 v4, v5, 4, v4")
        a("v_subrev_u32 %s, %d, v4" % (v(VWOFF[q]), 1024 * q))
    a("s_lshl_b32 %s, %s, 19" % (s(S_C0), s(S_MT)))
    a("s_lshl_b32 %s, %s, 16" % (s(S_T0), s(S_W)))
    a("s_add_u32 %s, %s, %s" % (s(S_C0), s(S_C0), s(S_T0)))
    a("s_add_u32 %s, %s, 0x%x" % (s(S_C0), s(S_C0), WS_CTX))
    a("s_add_u32 %s, %s, 0x40000" % (s(S_C1), s(S_C0)))
    a("s_mul_i32 %s, %s, %d" % (s(S_WS), s(S_W), 64 * 18432))
    a("s_mul_i32 %s, %s, 192" % (s(S_T0), s(S_NT)))
    a("s_add_u32 %s, %s, %s" % (s(S_WS), s(S_WS), s(S_T0)))
    a("s_mul_i32 %s, %s, %d" % (s(S_LB), s(S_W), WREG))
    a("s_waitcnt lgkmcnt(0)")
    a("s_mov_b32 s8, s4"); a("s_mov_b32 s9, s5"); a("s_mov_b32 s10, 0x%x" % (4096 * 1152)); a("s_mov_b32 s11, 0x20000")
    a("s_mov_b32 s12, s6"); a("s_mov_b32 s13, s7"); a("s_mov_b32 s14, 0x%x" % WS_BYTES); a("s_mov_b32 s15, 0x20000")
    def loads(k):
        g = []
        g.append(["s_add_u32 m0, %s, %d" % (s(S_LB), (k % RW) * 3072), "s_nop 0",
                  "buffer_load_dwordx4 %s, s[8:11], %s offen lds" % (v(VWOFF[0]), s(S_WS))])
        g.append(["buffer_load_dwordx4 %s, s[8:11], %s offen offset:1024 lds" % (v(VWOFF[1]), s(S_WS))])
        g.append(["buffer_load_dwordx4 %s, s[8:11], %s offen offset:2048 lds" % (v(VWOFF[2]), s(S_WS)),
                  "s_add_u32 %s, %s, 18432" % (s(S_WS), s(S_WS))])
        g.append(["buffer_load_dwordx4 %s, %s, s[12:15], %s offen offset:%d" % (v(CR + 8 * (k % 8), 4), v(VL16), s(S_C0), (k % 4) * 1024)])
        last = ["buffer_load_dwordx4 %s, %s, s[12:15], %s offen offset:%d" % (v(CR + 8 * (k % 8) + 4, 4), v(VL16), s(S_C1), (k % 4) * 1024)]
        if k % 4 == 3: last += ["s_add_u32 %s, %s, 4096" % (s(S_C0), s(S_C0)), "s_add_u32 %s, %s, 4096" % (s(S_C1), s(S_C1))]
        g.append(last)
        return g
    for k in range(PD):
        for g in loads(k):
            for l in g: a(l)
    a("v_bfe_u32 v4, v2, 2, 2")
    a("v_lshrrev_b32 v5, 5, v2")
    a("v_lshl_add_u32 v4, v5, 2, v4")
    a("v_mul_u32_u24 v4, 192, v4")
    a("v_bfe_u32 v5, v2, 4, 1")
    a("v_lshl_add_u32 v4, v5, 5, v4")
    a("v_and_b32 v5, 3, v2")
    a("v_lshl_add_u32 v4, v5, 3, v4")
    a("v_add_u32 %s, %s, v4" % (v(VTR), s(S_LB)))
    a("s_mov_b32 s16, s20"); a("s_mov_b32 s17, s21"); a("s_mov_b32 s18, 0x%x" % (2048 * 1152)); a("s_mov_b32 s19, 0x20000")
    a("s_mov_b32 s24, s22"); a("s_mov_b32 s25, s23"); a("s_mov_b32 s26, 0x%x" % (2048 * 1152)); a("s_mov_b32 s27, 0x20000")
    a("s_add_u32 s28, s6, 0x%x" % WS_SEL)
    a("s_addc_u32 s29, s7, 0")
    a("s_load_dwordx16 s[48:63], s[28:29], 0")
    a("v_lshrrev_b32 v3, 2, %s" % v(VTID))
    a("v_and_b32 v4, 3, %s" % v(VTID))
    a("v_mul_u32_u24 v5, 1152, v3")
    a("v_mul_u32_u24 v6, 48, v4")
    a("v_add_u32 v5, v5, v6")
    a("s_mul_i32 %s, %s, %d" % (s(S_T0), s(S_MT), 64 * 1152))
    a("s_mul_i32 %s, %s, 192" % (s(S_T1), s(S_NT)))
    a("s_add_u32 %s, %s, %s" % (s(S_T0), s(S_T0), s(S_T1)))
    a("v_add_u32 %s, %s, v5" % (v(VRO), s(S_T0)))
    a("v_mul_u32_u24 v5, %d, v3" % ROW)
    a("v_lshl_add_u32 %s, v6, 1, v5" % v(VLR))
    for i in range(96): a("v_mov_b32 %s, 0" % v(ACC + i)) if i >= 8 else None
    for i in range(8): a("v_mov_b32 %s, 0" % v(ACC + i))
    def trreads(k):
        b = WF[k % 2]
        r = []
        for mb in range(3):
            for h in range(2):
                r.append("ds_read_b64_tr_b16 %s, %s offset:%d" % (v(b + 4 * mb + 2 * h, 2), v(VTR), (k % RW) * 3072 + mb * 64 + h * 8 * 192))
        return r
    def step(k, nvm, do_load, do_read):
        a("s_waitcnt vmcnt(%d) lgkmcnt(0)" % nvm)
        rd = trreads(k + 1) if do_read else []
        ld = loads(k + PD) if do_load else []
        i = 0
        for mb in range(3):
            for qb in range(2):
                d = ACC + (mb * 2 + qb) * 16
                a("v_mfma_f32_32x32x16_bf16 %s, %s, %s, %s" % (v(d, 16), v(WF[k % 2] + 4 * mb, 4), v(CR + 8 * (k % 8) + 4 * qb, 4), v(d, 16)))
                if rd: a(rd[i])
                if ld and i < 5:
                    for l in ld[i]: a(l)
                i += 1
    a("s_waitcnt vmcnt(%d) lgkmcnt(0)" % (5 * (PD - 1)))
    for l in trreads(0): a(l)
    a("s_mov_b32 %s, 7" % s(S_CNT))
    a.raw(".p2align 6")
    a.label(L("loop"))
    for k in range(8): step(k, 5 * (PD - 2), True, True)
    a("s_sub_u32 %s, %s, 1" % (s(S_CNT), s(S_CNT)))
    a("s_cmp_lg_u32 %s, 0" % s(S_CNT))
    a("s_cbranch_scc1 %s" % L("loop"))
    for k in range(56, 64):
        lastiss = min(k + PD - 1, 63)
        n = 5 * max(lastiss - (k + 1), 0) + (6 if k > 56 else 0)
        step(k, n, k + PD <= 63, k + 1 <= 63)
        if k == 56:
            for i in range(3):
                a("buffer_load_dwordx4 %s, %s, s[16:19], 0 offen offset:%d" % (v(RES + 4 * i, 4), v(VRO), 16 * i))
            a("s_mov_b32 %s, 0x%x" % (s(S_T0), WS_XNR))
            for i in range(3):
                a("buffer_load_dwordx4 %s, %s, s[12:15], %s offen offset:%d" % (v(RES + 12 + 4 * i, 4), v(VRO), s(S_T0), 16 * i))
    a("v_and_b32 v100, 31, %s" % v(VTID))
    a("v_bfe_u32 v101, %s, 5, 1" % v(VTID))
    a("v_mul_u32_u24 v100, %d, v100" % ROW)
    a("v_lshl_add_u32 v100, v101, 4, v100")
    a("s_mul_i32 %s, %s, %d" % (s(S_T0), s(S_W), 64 * ROW))
    a("v_add_u32 v100, %s, v100" % s(S_T0))
    a("s_nop 4")
    a("s_barrier")
    for mb in range(3):
        for qb in range(2):
            d = ACC + (mb * 2 + qb) * 16
            for r4 in range(4):
                a("ds_write_b128 v100, %s offset:%d" % (v(d + 4 * r4, 4), qb * 32 * ROW + mb * 128 + r4 * 32))
    a("s_waitcnt lgkmcnt(0)")
    a("s_barrier")
    a("v_add_u32 v101, %d, %s" % (2 * 64 * ROW, v(VLR)))
    for w in range(4):
        for j in range(6):
            a("ds_read_b128 %s, %s offset:%d" % (v(w * 24 + 4 * j, 4), v(VLR) if w < 2 else "v101", (w % 2) * 64 * ROW + 16 * j))
        if w == 1: a("s_waitcnt lgkmcnt(3)")
    a("s_waitcnt lgkmcnt(0)")
    for i in range(24): a("v_add_f32 %s, %s, %s" % (v(i), v(i), v(24 + i)))
    for i in range(24): a("v_add_f32 %s, %s, %s" % (v(48 + i), v(48 + i), v(72 + i)))
    for i in range(24): a("v_add_f32 %s, %s, %s" % (v(i), v(i), v(48 + i)))
    a("s_waitcnt vmcnt(0)")
    for i in range(12):
        for src in (RES, RES + 12):
            a("v_lshlrev_b32 v24, 16, %s" % v(src + i))
            a("v_and_b32 v25, 0xffff0000, %s" % v(src + i))
            a("v_add_f32 %s, %s, v24" % (v(2 * i), v(2 * i)))
            a("v_add_f32 %s, %s, v25" % (v(2 * i + 1), v(2 * i + 1)))
    a("s_lshl_b32 %s, %s, 6" % (s(S_T2), s(S_MT)))
    a("v_lshrrev_b32 v102, 2, %s" % v(VTID))
    for j in range(8):
        a("s_sub_u32 %s, %s, %s" % (s(S_T0), s(48 + j), s(S_T2)))
        a("s_cmp_lt_u32 %s, 64" % s(S_T0))
        a("s_cbranch_scc0 %s" % L("moe%d" % j))
        a("s_mov_b32 s64, %d" % j)
        a("s_mov_b32 s65, %s" % s(56 + j))
        a("s_call_b64 s[66:67], %s" % L("moe"))
        a.label(L("moe%d" % j))
    for i in range(12):
        a("v_cvt_pk_bf16_f32 %s, %s, %s" % (v(24 + i), v(2 * i), v(2 * i + 1)))
    for i in range(3):
        a("buffer_store_dwordx4 %s, %s, s[24:27], 0 offen offset:%d" % (v(24 + 4 * i, 4), v(VRO), 16 * i))
    a.label(L("end"))
    a("s_endpgm")
    a.label(L("moe"))
    a("v_mul_u32_u24 v104, 0xaab, %s" % v(VTID))
    a("v_lshrrev_b32 v104, 16, v104")
    a("v_mul_u32_u24 v105, 24, v104")
    a("v_sub_u32 v105, %s, v105" % v(VTID))
    a("v_mul_u32_u24 v106, %d, v104" % (8 * 2304))
    a("v_lshl_add_u32 v106, v105, 4, v106")
    a("v_mov_b32 v107, 0x40000000")
    a("v_cmp_gt_u32 vcc, 10, v104")
    a("s_mul_i32 %s, s64, 2304" % s(S_T1))
    a("s_mul_i32 s68, %s, 384" % s(S_NT))
    a("v_cndmask_b32 v106, v107, v106, vcc")
    a("s_add_u32 %s, %s, s68" % (s(S_T1), s(S_T1)))
    a("s_add_u32 %s, %s, 0x%x" % (s(S_T1), s(S_T1), WS_YP))
    for it in range(15):
        if it == 14:
            a("v_cmp_gt_u32 vcc, 4, v104")
            a("s_nop 1")
            a("v_cndmask_b32 v106, v107, v106, vcc")
        a("buffer_load_dwordx4 %s, v106, s[12:15], %s offen" % (v(108 + 4 * it, 4), s(S_T1)))
        a("s_add_u32 %s, %s, %d" % (s(S_T1), s(S_T1), 10 * 8 * 2304))
    a("s_waitcnt vmcnt(0)")
    for it in range(1, 15):
        for i in range(4): a("v_add_f32 %s, %s, %s" % (v(108 + i), v(108 + i), v(108 + 4 * it + i)))
    a("v_mul_u32_u24 v104, 384, v104")
    a("v_lshl_add_u32 v104, v105, 4, v104")
    a("s_barrier")
    a("ds_write_b128 v104, v[108:111]")
    a("s_waitcnt lgkmcnt(0)")
    a("s_barrier")
    a("v_and_b32 v104, 3, %s" % v(VTID))
    a("v_mul_u32_u24 v104, 96, v104")
    a("v_cmp_eq_u32 vcc, %s, v102" % s(S_T0))
    a("v_mov_b32 v105, s65")
    a("s_nop 0")
    a("v_cndmask_b32 v105, 0, v105, vcc")
    for j in range(6):
        for g in range(10):
            a("ds_read_b128 %s, v104 offset:%d" % (v(108 + 4 * g, 4), g * 384 + j * 16))
        a("s_waitcnt lgkmcnt(0)")
        for g in range(1, 10):
            for i in range(4): a("v_add_f32 %s, %s, %s" % (v(108 + i), v(108 + i), v(108 + 4 * g + i)))
        for i in range(4): a("v_fmac_f32 %s, %s, v105" % (v(4 * j + i), v(108 + i)))
    a("s_setpc_b64 s[66:67]")
    return dict(name=name, grid=192, block=256, lds=4 * 64 * ROW, vgpr=224)
```

```python
from asmlib import *
from k2 import f32bits
import math

def wave_max_u32(a, r):
    for sh in (1, 2, 4, 8):
        a("s_nop 1")
        a("v_max_u32_dpp %s, %s, %s row_shr:%d row_mask:0xf bank_mask:0xf" % (v(r), v(r), v(r), sh))
    a("s_nop 1")
    a("v_max_u32_dpp %s, %s, %s row_bcast:15 row_mask:0xa bank_mask:0xf" % (v(r), v(r), v(r)))
    a("s_nop 1")
    a("v_max_u32_dpp %s, %s, %s row_bcast:31 row_mask:0xc bank_mask:0xf" % (v(r), v(r), v(r)))

def gen_km(a, name="km_kernel"):
    L = lambda x: "%s_%s" % (name, x)
    S_W, S_T0, S_T1, S_T2, S_WIN = 36, 37, 38, 39, 40
    LG, LU, LD, LR = 0, 36864, 73728, 110592
    kernel_begin(a, name)
    a("s_cmp_ge_u32 s2, 144")
    a("s_cbranch_scc1 %s" % L("end"))
    a("s_load_dwordx2 s[4:5], s[0:1], %d" % KA_WG)
    a("s_load_dwordx2 s[6:7], s[0:1], %d" % KA_WU)
    a("s_load_dwordx2 s[8:9], s[0:1], %d" % KA_WD)
    a("s_load_dwordx2 s[10:11], s[0:1], %d" % KA_WS)
    a("v_lshrrev_b32 v1, 6, v0")
    a("v_and_b32 v2, 63, v0")
    a("v_readfirstlane_b32 %s, v1" % s(S_W))
    a("v_lshlrev_b32 v3, 4, v2")
    a("v_lshrrev_b32 v4, 2, v2")
    a("v_mul_u32_u24 v4, 9216, v4")
    a("v_and_b32 v5, 3, v2")
    a("v_lshl_add_u32 v4, v5, 4, v4")
    a("s_waitcnt lgkmcnt(0)")
    srd(a, 12, 4, 576 * 9216); srd(a, 16, 6, 576 * 9216); srd(a, 20, 8, 4608 * 1152); srd(a, 24, 10, WS_BYTES)
    a("s_mov_b32 %s, 0x%x" % (s(S_T0), WS_RKEY))
    a("s_add_u32 %s, %s, 4096" % (s(S_T1), s(S_T0)))
    for i in range(8):
        a("buffer_load_dwordx4 %s, v3, s[24:27], %s offen offset:%d" % (v(32 + 4 * i, 4), s(S_T0) if i < 4 else s(S_T1), (i % 4) * 1024))
    a("s_mul_i32 %s, %s, %d" % (s(S_T0), s(S_W), 144 * 9216))
    a("s_lshl_b32 %s, s2, 6" % s(S_T1))
    a("s_add_u32 %s, %s, %s" % (s(S_T0), s(S_T0), s(S_T1)))
    a("s_mul_i32 %s, %s, 9216" % (s(S_T1), s(S_W)))
    for q in range(9):
        for lb, sr in ((LG, 12), (LU, 16)):
            a("s_add_u32 m0, %s, %d" % (s(S_T1), lb + q * 1024))
            a("s_nop 0")
            a("buffer_load_dwordx4 v4, %s, %s offen lds" % (s(sr, 4), s(S_T0)))
        a("s_add_u32 %s, %s, %d" % (s(S_T0), s(S_T0), 16 * 9216))
    a("s_mul_i32 %s, s2, 36864" % s(S_T0))
    a("s_add_u32 %s, %s, %s" % (s(S_T0), s(S_T0), s(S_T1)))
    for q in range(9):
        a("s_add_u32 m0, %s, %d" % (s(S_T1), LD + q * 1024))
        a("s_nop 0")
        a("buffer_load_dwordx4 v3, s[20:23], %s offen lds" % s(S_T0))
        a("s_add_u32 %s, %s, 1024" % (s(S_T0), s(S_T0)))
    a("s_waitcnt vmcnt(27)")
    a("v_mov_b32 v10, 0")
    for rnd in range(8):
        if rnd:
            for i in range(32): a("v_subrev_u32 %s, %s, %s" % (v(32 + i), s(S_T0), v(32 + i)))
        a("v_max3_u32 v8, v32, v33, v34")
        for i in range(35, 63, 2): a("v_max3_u32 v8, v8, %s, %s" % (v(i), v(i + 1)))
        a("v_max_u32 v8, v8, v63")
        wave_max_u32(a, 8)
        a("s_nop 1")
        a("v_readlane_b32 %s, v8, 63" % s(S_T0))
        if rnd:
            a("s_nop 3")
            a("s_add_u32 %s, %s, %s" % (s(S_WIN), s(S_WIN), s(S_T0)))
        else:
            a("s_nop 3")
            a("s_mov_b32 %s, %s" % (s(S_WIN), s(S_T0)))
        a("v_writelane_b32 v10, %s, %d" % (s(S_WIN), rnd))
    a("v_and_b32 v11, 7, v2")
    a("v_lshlrev_b32 v11, 2, v11")
    a("ds_bpermute_b32 v12, v11, v10")
    a("s_waitcnt lgkmcnt(0)")
    a("v_and_b32 v13, 0xffff, v12")
    a("v_sub_u32 v13, 2047, v13")
    a("v_lshrrev_b32 v14, 16, v12")
    a("v_and_b32 v15, 0x7fff, v14")
    a("v_xor_b32 v16, 0xffff, v14")
    a("v_cmp_lt_u32 vcc, 0x7fff, v14")
    a("s_nop 1")
    a("v_cndmask_b32 v14, v16, v15, vcc")
    a("v_lshlrev_b32 v14, 16, v14")
    a("v_mul_f32 v14, 0x%08x, v14" % f32bits(-math.log2(math.e)))
    a("v_exp_f32 v14, v14")
    a("s_nop 0")
    a("v_add_f32 v14, 1.0, v14")
    a("v_rcp_f32 v14, v14")
    a("s_nop 0")
    a("v_cvt_pk_bf16_f32 v14, v14, v14")
    a("v_and_b32 v14, 0xffff0000, v14")
    a("v_lshlrev_b32 v15, 2, v0")
    a("v_mov_b32 v16, 0x40000000")
    a("v_cmp_gt_u32 vcc, 8, v0")
    a("s_cmp_eq_u32 s2, 0")
    a("s_cselect_b32 %s, 0x%x, %s" % (s(S_T0), WS_SEL, "-1")) if False else None
    a("s_nop 0")
    a("v_cndmask_b32 v15, v16, v15, vcc")
    a("s_cbranch_scc0 %s" % L("nosel"))
    a("s_mov_b32 %s, 0x%x" % (s(S_T0), WS_SEL))
    a("buffer_store_dword v13, v15, s[24:27], %s offen" % s(S_T0))
    a("buffer_store_dword v14, v15, s[24:27], %s offen offset:32" % s(S_T0))
    a.label(L("nosel"))
    a("v_lshrrev_b32 v14, 5, v13")
    a("v_mul_u32_u24 v14, 36864, v14")
    a("v_and_b32 v15, 31, v13")
    a("v_lshl_add_u32 v14, v15, 4, v14")
    a("v_lshrrev_b32 v15, 5, v2")
    a("v_lshl_add_u32 v14, v15, 9, v14")
    a("s_mul_i32 %s, %s, 9216" % (s(S_T0), s(S_W)))
    if WS_XNF: a("s_add_u32 %s, %s, 0x%x" % (s(S_T0), s(S_T0), WS_XNF))
    for k in range(9):
        a("buffer_load_dwordx4 %s, v14, s[24:27], %s offen" % (v(32 + 4 * k, 4), s(S_T0)))
        a("s_add_u32 %s, %s, 1024" % (s(S_T0), s(S_T0)))
    a("v_bfe_u32 v16, v2, 2, 2")
    a("v_lshl_add_u32 v17, v15, 3, v16")
    a("v_lshlrev_b32 v17, 6, v17")
    a("v_bfe_u32 v18, v2, 4, 1")
    a("v_lshlrev_b32 v18, 5, v18")
    a("v_and_b32 v19, 3, v2")
    a("v_lshl_add_u32 v18, v19, 3, v18")
    a("v_add3_u32 v17, v17, v18, %s" % s(S_T1))
    a("v_lshl_add_u32 v19, v15, 2, v16")
    a("v_mul_u32_u24 v19, 1152, v19")
    a("v_add_u32 v19, v19, v18")
    a("s_lshl_b32 %s, %s, 6" % (s(S_T0), s(S_W)))
    a("s_add_u32 %s, %s, %d" % (s(S_T0), s(S_T0), LD))
    a("v_add_u32 v19, %s, v19" % s(S_T0))
    a("s_waitcnt vmcnt(0)")
    G, U, WFR = 80, 96, 112
    for k in range(9):
        for m, lb in enumerate((LG, LU)):
            for h in range(2):
                a("ds_read_b64_tr_b16 %s, v17 offset:%d" % (v(WFR + 4 * m + 2 * h, 2), lb + k * 1024 + h * 256))
        a("s_waitcnt lgkmcnt(0)")
        for m, d in enumerate((G, U)):
            a("v_mfma_f32_32x32x16_bf16 %s, %s, %s, %s" % (v(d, 16), v(WFR + 4 * m, 4), v(32 + 4 * k, 4), "0" if k == 0 else v(d, 16)))
    a("s_lshl_b32 %s, %s, 13" % (s(S_T0), s(S_W)))
    a("s_add_u32 %s, %s, %d" % (s(S_T0), s(S_T0), LR))
    a("v_add_u32 v20, %s, v3" % s(S_T0))
    a("v_add_u32 v21, %d, v3" % LR)
    a("s_nop 15")
    for i in range(8): a("ds_write_b128 v20, %s offset:%d" % (v(G + 4 * i, 4), i * 1024))
    a("s_waitcnt lgkmcnt(0)")
    a("s_barrier")
    for w in range(4):
        for i in range(8):
            a("ds_read_b128 %s, v21 offset:%d" % (v(128 + 32 * (w % 2) + 4 * i, 4), w * 8192 + i * 1024))
        a("s_waitcnt lgkmcnt(0)")
        for i in range(32):
            if w == 0: a("v_mov_b32 %s, %s" % (v(G + i), v(128 + i)))
            else: a("v_add_f32 %s, %s, %s" % (v(G + i), v(G + i), v(128 + 32 * (w % 2) + i)))
    for i in range(8):
        a("v_cvt_pk_bf16_f32 v24, %s, %s" % (v(G + 2 * i), v(G + 2 * i + 1)))
        a("v_cvt_pk_bf16_f32 v25, %s, %s" % (v(U + 2 * i), v(U + 2 * i + 1)))
        a("v_lshlrev_b32 v26, 16, v24")
        a("v_and_b32 v27, 0xffff0000, v24")
        for x in (26, 27):
            a("v_mul_f32 v28, 0x%08x, v%d" % (f32bits(-math.log2(math.e)), x))
            a("v_exp_f32 v28, v28")
            a("s_nop 0")
            a("v_add_f32 v28, 1.0, v28")
            a("v_rcp_f32 v28, v28")
            a("s_nop 0")
            a("v_mul_f32 v%d, v%d, v28" % (x, x))
        a("v_cvt_pk_bf16_f32 v24, v26, v27")
        a("v_lshlrev_b32 v26, 16, v24")
        a("v_and_b32 v27, 0xffff0000, v24")
        a("v_lshlrev_b32 v28, 16, v25")
        a("v_and_b32 v29, 0xffff0000, v25")
        a("v_mul_f32 v26, v26, v28")
        a("v_mul_f32 v27, v27, v29")
        a("v_cvt_pk_bf16_f32 %s, v26, v27" % v(120 + i))
    a("v_and_b32 v24, 31, v2")
    a("v_mul_u32_u24 v25, 2304, v24")
    a("v_lshl_add_u32 v25, v15, 4, v25")
    a("v_mov_b32 v26, 0x40000000")
    a("v_cmp_gt_u32 vcc, 8, v24")
    a("s_mul_i32 %s, s2, %d" % (s(S_T0), 8 * 2304))
    a("s_lshl_b32 %s, %s, 7" % (s(S_T1), s(S_W)))
    a("v_cndmask_b32 v25, v26, v25, vcc")
    a("s_add_u32 %s, %s, %s" % (s(S_T0), s(S_T0), s(S_T1)))
    a("s_add_u32 %s, %s, 0x%x" % (s(S_T0), s(S_T0), WS_YP))
    for j in range(5):
        if j == 4:
            a("s_cmp_lt_u32 %s, 2" % s(S_W))
            a("s_cbranch_scc0 %s" % L("end"))
        D = 128 + 16 * (j % 2)
        for st in range(2):
            for h in range(2):
                a("ds_read_b64_tr_b16 %s, v19 offset:%d" % (v(WFR + 4 * st + 2 * h, 2), j * 256 + (st * 16 + h * 8) * 1152))
        a("s_waitcnt lgkmcnt(0)")
        for st in range(2):
            a("v_mfma_f32_32x32x16_bf16 %s, %s, %s, %s" % (v(D, 16), v(WFR + 4 * st, 4), v(120 + 4 * st, 4), "0" if st == 0 else v(D, 16)))
        a("s_nop 15")
        for r4 in range(4):
            a("buffer_store_dwordx4 %s, v25, s[24:27], %s offen offset:%d" % (v(D + 4 * r4, 4), s(S_T0), j * 512 + r4 * 32))
    a.label(L("end"))
    a("s_endpgm")
    return dict(name=name, grid=144, block=256, lds=LR + 32768, vgpr=192)
```

```python
import sys
from asmlib import *
import k1, k2, k3, km
def build(parts, out, header=""):
    body = Asm(); infos = []
    for p in parts:
        infos.append(p(body))
    hdr = Asm()
    for i in infos:
        hdr.raw("; @launch kernel=%s grid=(%d,1,1) block=(%d,1,1) lds=%d" % (i["name"], i["grid"], i["block"], i["lds"]))
    hdr.raw('.amdgcn_target "amdgcn-amd-amdhsa--gfx950"')
    for i in infos:
        kernel_desc(body, i["name"], i["vgpr"])
    open(out, "w").write(header + hdr.text() + body.text())
if __name__ == "__main__":
    ref = open("parallel_sum__compressed_kv_cla__moe_arch_mod__prompt.s.ref").read().split("\n")
    header = "\n".join(l for l in ref[:16] if l.startswith(";") and "@launch" not in l and "Override" not in l and "grid=ceil" not in l) + "\n"
    out = sys.argv[1] if len(sys.argv) > 1 else "full.s"
    build([lambda a: k2.gen_k2(a, name='k12_kernel', fused=True), k3.gen_k3], out, header)
```

```python
class Asm:
    def __init__(self):
        self.lines = []
        self.uid = 0
    def __call__(self, s):
        for l in s.strip("\n").split("\n"):
            self.lines.append("    " + l.strip())
    def label(self, name):
        self.lines.append(name + ":")
    def newlabel(self, base):
        self.uid += 1
        return "%s_%d" % (base, self.uid)
    def comment(self, s):
        self.lines.append("    ; " + s)
    def raw(self, s):
        self.lines.append(s)
    def text(self):
        return "\n".join(self.lines) + "\n"

def v(i, n=1):
    return "v%d" % i if n == 1 else "v[%d:%d]" % (i, i + n - 1)
def s(i, n=1):
    return "s%d" % i if n == 1 else "s[%d:%d]" % (i, i + n - 1)

def kernel_begin(a, name):
    a.raw(".text")
    a.raw(".globl %s" % name)
    a.raw(".p2align 8")
    a.raw(".type %s,@function" % name)
    a.label(name)

def kernel_desc(a, name, vgpr, sgpr=102):
    acc = (vgpr + 3) // 4 * 4
    a.raw('.section .rodata,"a"')
    a.raw(".p2align 6")
    a.raw(".amdhsa_kernel %s" % name)
    a.raw("  .amdhsa_next_free_vgpr %d" % vgpr)
    a.raw("  .amdhsa_next_free_sgpr %d" % sgpr)
    a.raw("  .amdhsa_accum_offset %d" % min(acc, 256))
    a.raw("  .amdhsa_group_segment_fixed_size 0")
    a.raw("  .amdhsa_kernarg_size 112")
    a.raw("  .amdhsa_user_sgpr_count 2")
    a.raw("  .amdhsa_user_sgpr_kernarg_segment_ptr 1")
    a.raw("  .amdhsa_system_sgpr_workgroup_id_x 1")
    a.raw("  .amdhsa_float_denorm_mode_32 3")
    a.raw(".end_amdhsa_kernel")

def srd(a, d, base, nbytes):
    a("s_mov_b32 %s, %s" % (s(d), s(base)))
    a("s_and_b32 %s, %s, 0xffff" % (s(d + 1), s(base + 1)))
    a("s_mov_b32 %s, 0x%x" % (s(d + 2), nbytes))
    a("s_mov_b32 %s, 0x20000" % s(d + 3))

def wave_sum(a, r):
    for sh in (1, 2, 4, 8):
        a("s_nop 1")
        a("v_add_f32_dpp %s, %s, %s row_shr:%d row_mask:0xf bank_mask:0xf" % (v(r), v(r), v(r), sh))
    a("s_nop 1")
    a("v_add_f32_dpp %s, %s, %s row_bcast:15 row_mask:0xa bank_mask:0xf" % (v(r), v(r), v(r)))
    a("s_nop 1")
    a("v_add_f32_dpp %s, %s, %s row_bcast:31 row_mask:0xc bank_mask:0xf" % (v(r), v(r), v(r)))

WS_XNF = 0x0
WS_RKEY = 0x240000
WS_YP = 0x250000
WS_SEL = 0x4E0000
WS_YF = 0x4F0000
WS_FLAG = 0x780000
WS_XNR = 0x500000
WS_KV = 0x800000
WS_CTX = 0x2800000
WS_PART = 0x3800000
WS_STAMP = 0x6000000
WS_BYTES = 0x10000000

KA_X, KA_CKV, KA_WQ, KA_WUK, KA_WUV, KA_WO, KA_BX, KA_WR, KA_WG, KA_WU, KA_WD, KA_OUT, KA_DBG, KA_WS = [8 * i for i in range(14)]

class Stamps:
    def __init__(self, a, on): self.a, self.on, self.n = a, on, 0
    def __call__(self):
        if self.on:
            self.a("s_memtime %s" % s(70 + 2 * self.n, 2)); self.a("s_memrealtime %s" % s(86 + 2 * self.n, 2)); self.n += 1
    def dump(self, srd_ws, s_id, s_tmp):
        if not self.on: return
        a = self.a
        a("s_waitcnt vmcnt(0)")
        self()
        a("s_waitcnt lgkmcnt(0)")
        a("s_lshl_b32 %s, %s, 6" % (s(s_tmp), s(s_id)))
        a("s_add_u32 %s, %s, 0x%x" % (s(s_tmp), s(s_tmp), WS_STAMP))
        a("v_mov_b32 v1, 0")
        for i in range(8):
            j = min(i, self.n - 1)
            a("v_mov_b32 v2, %s" % s(70 + 2 * j))
            a("buffer_store_dword v2, v1, %s, %s offen offset:%d" % (s(srd_ws, 4), s(s_tmp), 4 * i))
            a("v_mov_b32 v2, %s" % s(86 + 2 * j))
            a("buffer_store_dword v2, v1, %s, %s offen offset:%d" % (s(srd_ws, 4), s(s_tmp), 32 + 4 * i))
```

```python
from asmlib import *
from k2 import VM, f32bits
import math

def ln_code(S_ROW, S_T0, S_T1, VLANE, srd_ws, sc="", lds=None, S_W=36):
    a = Asm()
    X, XR, WR = 216, 200, 208
    t = [232 + i for i in range(8)]
    ACCV, MEAN, SD, RC, T0, T1, T2, OFF = t
    ST = s(S_T0)
    for i in range(8):
        a("v_lshlrev_b32 %s, 16, %s" % (v(X + 2 * i), v(XR + i)))
        a("v_and_b32 %s, 0xffff0000, %s" % (v(X + 2 * i + 1), v(XR + i)))
    a("v_add_f32 %s, %s, %s" % (v(ACCV), v(X), v(X + 1)))
    for i in range(2, 16): a("v_add_f32 %s, %s, %s" % (v(ACCV), v(ACCV), v(X + i)))
    wave_sum(a, ACCV)
    a("s_nop 1")
    a("v_readlane_b32 %s, %s, 63" % (ST, v(ACCV)))
    a("v_mov_b32 %s, 0x%08x" % (v(MEAN), f32bits(1.0 / 576)))
    a("s_nop 1")
    a("v_mul_f32 %s, %s, %s" % (v(MEAN), ST, v(MEAN)))
    a("v_sub_f32 %s, %s, %s" % (v(T0), v(X), v(MEAN)))
    a("v_mul_f32 %s, %s, %s" % (v(ACCV), v(T0), v(T0)))
    for i in range(1, 16):
        a("v_sub_f32 %s, %s, %s" % (v(T0), v(X + i), v(MEAN)))
        a("v_fmac_f32 %s, %s, %s" % (v(ACCV), v(T0), v(T0)))
    a("v_cmp_gt_u32 vcc, 36, %s" % v(VLANE))
    a("s_nop 1")
    a("v_cndmask_b32 %s, 0, %s, vcc" % (v(ACCV), v(ACCV)))
    wave_sum(a, ACCV)
    a("s_nop 1")
    a("v_readlane_b32 %s, %s, 63" % (ST, v(ACCV)))
    a("v_mov_b32 %s, 0x%08x" % (v(SD), f32bits(1.0 / 576)))
    a("s_nop 1")
    a("v_mul_f32 %s, %s, %s" % (v(SD), ST, v(SD)))
    a("v_cvt_pk_bf16_f32 %s, %s, %s" % (v(T0), v(MEAN), v(SD)))
    a("v_lshlrev_b32 %s, 16, %s" % (v(MEAN), v(T0)))
    a("v_and_b32 %s, 0xffff0000, %s" % (v(SD), v(T0)))
    a("v_add_f32 %s, 0x%08x, %s" % (v(SD), f32bits(1e-5), v(SD)))
    a("v_cvt_pk_bf16_f32 %s, %s, %s" % (v(SD), v(SD), v(SD)))
    a("v_lshlrev_b32 %s, 16, %s" % (v(SD), v(SD)))
    a("v_sqrt_f32 %s, %s" % (v(SD), v(SD)))
    a("s_nop 0")
    a("v_cvt_pk_bf16_f32 %s, %s, %s" % (v(SD), v(SD), v(SD)))
    a("v_lshlrev_b32 %s, 16, %s" % (v(SD), v(SD)))
    a("v_rcp_f32 %s, %s" % (v(RC), v(SD)))
    a("v_mov_b32 %s, 0" % v(ACCV))
    for i in range(8):
        x0, x1 = X + 2 * i, X + 2 * i + 1
        a("v_sub_f32 %s, %s, %s" % (v(x0), v(x0), v(MEAN)))
        a("v_sub_f32 %s, %s, %s" % (v(x1), v(x1), v(MEAN)))
        a("v_cvt_pk_bf16_f32 %s, %s, %s" % (v(T0), v(x0), v(x1)))
        a("v_lshlrev_b32 %s, 16, %s" % (v(x0), v(T0)))
        a("v_and_b32 %s, 0xffff0000, %s" % (v(x1), v(T0)))
        for x in (x0, x1):
            a("v_mul_f32 %s, %s, %s" % (v(T1), v(x), v(RC)))
            a("v_fma_f32 %s, -%s, %s, %s" % (v(T2), v(T1), v(SD), v(x)))
            a("v_fma_f32 %s, %s, %s, %s" % (v(x), v(T2), v(RC), v(T1)))
        a("v_cvt_pk_bf16_f32 %s, %s, %s" % (v(XR + i), v(x0), v(x1)))
        a("v_lshlrev_b32 %s, 16, %s" % (v(x0), v(XR + i)))
        a("v_and_b32 %s, 0xffff0000, %s" % (v(x1), v(XR + i)))
        a("v_lshlrev_b32 %s, 16, %s" % (v(T0), v(WR + i)))
        a("v_and_b32 %s, 0xffff0000, %s" % (v(T1), v(WR + i)))
        a("v_fmac_f32 %s, %s, %s" % (v(ACCV), v(x0), v(T0)))
        a("v_fmac_f32 %s, %s, %s" % (v(ACCV), v(x1), v(T1)))
    if lds is None:
        a("s_lshr_b32 %s, %s, 5" % (ST, s(S_ROW)))
        a("s_mul_i32 %s, %s, %d" % (ST, ST, 36 * 1024))
        a("s_and_b32 %s, %s, 31" % (s(S_T1), s(S_ROW)))
        a("s_lshl_b32 %s, %s, 4" % (s(S_T1), s(S_T1)))
        a("s_add_u32 %s, %s, %s" % (ST, ST, s(S_T1)))
        if WS_XNF: a("s_add_u32 %s, %s, 0x%x" % (ST, ST, WS_XNF))
        a("v_lshlrev_b32 %s, 10, %s" % (v(OFF), v(VLANE)))
        a("v_mov_b32 %s, 0x40000000" % v(T0))
        a("v_cndmask_b32 %s, %s, %s, vcc" % (v(OFF), v(T0), v(OFF)))
        a("buffer_store_dwordx4 %s, %s, %s, %s offen%s" % (v(XR, 4), v(OFF), s(srd_ws, 4), ST, sc))
        a("buffer_store_dwordx4 %s, %s, %s, %s offen offset:512%s" % (v(XR + 4, 4), v(OFF), s(srd_ws, 4), ST, sc))
    else:
        a("s_lshl_b32 %s, %s, 4" % (ST, s(S_W)))
        a("s_add_u32 %s, %s, %d" % (ST, ST, lds))
        a("v_min_u32 %s, 36, %s" % (v(OFF), v(VLANE)))
        a("v_lshl_add_u32 %s, %s, 8, %s" % (v(OFF), v(OFF), ST))
        a("v_mov_b32 %s, 0x40000000" % v(T0))
        a("ds_write_b128 %s, %s" % (v(OFF), v(XR, 4)))
        a("ds_write_b128 %s, %s offset:128" % (v(OFF), v(XR + 4, 4)))
    a("s_mul_i32 %s, %s, 1152" % (s(S_T1), s(S_ROW)))
    a("s_add_u32 %s, %s, 0x%x" % (s(S_T1), s(S_T1), WS_XNR))
    a("v_lshlrev_b32 %s, 5, %s" % (v(OFF), v(VLANE)))
    a("v_cndmask_b32 %s, %s, %s, vcc" % (v(OFF), v(T0), v(OFF)))
    a("buffer_store_dwordx4 %s, %s, %s, %s offen%s" % (v(XR, 4), v(OFF), s(srd_ws, 4), s(S_T1), sc if lds is None else ""))
    a("buffer_store_dwordx4 %s, %s, %s, %s offen offset:16%s" % (v(XR + 4, 4), v(OFF), s(srd_ws, 4), s(S_T1), sc if lds is None else ""))
    wave_sum(a, ACCV)
    a("s_nop 1")
    a("v_cvt_pk_bf16_f32 %s, %s, %s" % (v(ACCV), v(ACCV), v(ACCV)))
    a("v_and_b32 %s, 0xffff, %s" % (v(ACCV), v(ACCV)))
    a("v_xor_b32 %s, 0xffff, %s" % (v(T1), v(ACCV)))
    a("v_or_b32 %s, 0x8000, %s" % (v(T2), v(ACCV)))
    a("v_cmp_lt_u32 vcc, 0x7fff, %s" % v(ACCV))
    a("s_sub_u32 %s, 2047, %s" % (s(S_T1), s(S_ROW)))
    a("s_nop 0")
    a("v_cndmask_b32 %s, %s, %s, vcc" % (v(ACCV), v(T2), v(T1)))
    a("v_lshlrev_b32 %s, 16, %s" % (v(ACCV), v(ACCV)))
    a("v_or_b32 %s, %s, %s" % (v(ACCV), s(S_T1), v(ACCV)))
    if lds is None:
        a("v_cmp_eq_u32 vcc, 63, %s" % v(VLANE))
        a("s_lshl_b32 %s, %s, 2" % (ST, s(S_ROW)))
        a("s_add_u32 %s, %s, 0x%x" % (ST, ST, WS_RKEY))
        a("v_cndmask_b32 %s, %s, 0, vcc" % (v(OFF), v(T0))) if False else None
        a("v_mov_b32 %s, 0" % v(T1))
        a("v_cndmask_b32 %s, %s, %s, vcc" % (v(OFF), v(T0), v(T1)))
        a("buffer_store_dword %s, %s, %s, %s offen%s" % (v(ACCV), v(OFF), s(srd_ws, 4), ST, sc))
    else:
        a("v_cmp_eq_u32 vcc, 63, %s" % v(VLANE))
        a("s_lshl_b32 %s, %s, 2" % (ST, s(S_W)))
        a("s_add_u32 %s, %s, %d" % (ST, ST, lds + 9728))
        a("v_mov_b32 %s, %s" % (v(T1), ST))
        a("v_mov_b32 %s, %d" % (v(T2), lds + 9792))
        a("v_cndmask_b32 %s, %s, %s, vcc" % (v(OFF), v(T2), v(T1)))
        a("ds_write_b32 %s, %s" % (v(OFF), v(ACCV)))
    return [l.strip() for l in a.lines]

PF = [(KA_CKV, 2048 * 1024), (KA_WUK, 512 * 8192), (KA_WUV, 512 * 8192), (KA_WQ, 576 * 8192), (KA_WO, 4096 * 1152),
      (KA_WG, 576 * 9216), (KA_WU, 576 * 9216), (KA_WD, 4608 * 1152)]

def gen_k1(a, name="k1_kernel", NS=5, stamps=False, pf=True, stsc=""):
    st = Stamps(a, stamps)
    NIT = 16
    SIG_IT = 12
    VARR, VAOF = 195, 196
    STG = 32768
    ACC = 0
    BUF = [128, 152]
    VWIN = [[176, 177, 178, 179], [180, 181, 182, 183], [184, 185, 186, 187]]
    VDA, VDW0, VDW1, VST, VLANE, VPF, VPFD = 188, 189, 190, 191, 192, 193, 194
    S_W, S_TYPE, S_MT, S_HP = 36, 37, 38, 39
    S_KA0, S_KA1, S_KW = 40, 41, 42
    S_M0A, S_M0W = 43, 44
    S_T0, S_T1, S_T2, S_ROW, S_L0, S_L1, S_PFO = 46, 47, 48, 49, 50, 51, 45
    S_PTR = 52
    kernel_begin(a, name)
    a("s_cmp_ge_u32 s2, 256")
    a("s_cbranch_scc1 %s_end" % name)
    a("s_load_dwordx4 s[4:7], s[0:1], 0")
    a("s_load_dwordx4 s[8:11], s[0:1], %d" % KA_WUK)
    a("s_load_dwordx2 s[12:13], s[0:1], %d" % KA_WR)
    a("s_load_dwordx2 s[14:15], s[0:1], %d" % KA_WS)
    a("s_load_dwordx2 s[52:53], s[0:1], %d" % KA_WQ)
    a("s_load_dwordx2 s[54:55], s[0:1], %d" % KA_WO)
    a("s_load_dwordx4 s[56:59], s[0:1], %d" % KA_WG)
    a("s_load_dwordx2 s[60:61], s[0:1], %d" % KA_WD)
    a("s_load_dwordx2 s[64:65], s[0:1], %d" % KA_DBG)
    st()
    a("v_lshrrev_b32 v1, 6, v0")
    a("v_and_b32 v2, 63, v0")
    a("v_readfirstlane_b32 %s, v1" % s(S_W))
    a("v_mov_b32 %s, v2" % v(VLANE))
    a("s_and_b32 %s, s2, 7" % s(S_T0))
    a("s_lshr_b32 %s, s2, 3" % s(S_T1))
    a("s_bfe_u32 %s, %s, 0x10001" % (s(S_TYPE), s(S_T1)))
    a("s_and_b32 %s, %s, 1" % (s(S_T2), s(S_T1)))
    a("s_lshl_b32 %s, %s, 1" % (s(S_HP), s(S_T0)))
    a("s_add_u32 %s, %s, %s" % (s(S_HP), s(S_HP), s(S_T2)))
    a("s_lshr_b32 %s, %s, 2" % (s(S_MT), s(S_T1)))
    a("v_lshrrev_b32 v4, 2, v2")
    a("v_lshlrev_b32 v4, 10, v4")
    a("v_and_b32 v5, 3, v2")
    a("v_lshrrev_b32 v6, 4, v2")
    a("v_xor_b32 v5, v5, v6")
    a("v_lshl_add_u32 v4, v5, 4, v4")
    a("s_lshl_b32 %s, %s, 18" % (s(S_T0), s(S_MT)))
    a("s_lshl_b32 %s, %s, 15" % (s(S_T1), s(S_W)))
    a("s_add_u32 %s, %s, %s" % (s(S_T0), s(S_T0), s(S_T1)))
    a("v_add_u32 %s, %s, v4" % (v(VDA), s(S_T0)))
    a("v_lshrrev_b32 v4, 5, v2")
    a("v_bfe_u32 v5, v2, 2, 3")
    a("v_and_b32 v6, 3, v2")
    a("s_lshl_b32 %s, %s, 9" % (s(S_T0), s(S_HP)))
    a("s_add_u32 %s, %s, %s" % (s(S_T0), s(S_T0), s(S_T1)))
    for e, vd in ((0, VDW0), (1, VDW1)):
        a("v_add_u32 v7, %d, v4" % (2 * e))
        a("v_xor_b32 v24, v5, v7")
        a("v_lshl_add_u32 v24, v24, 2, v6")
        a("v_lshlrev_b32 v24, 4, v24")
        a("v_lshl_add_u32 v24, v7, 13, v24")
        a("v_add_u32 %s, %s, v24" % (v(vd), s(S_T0)))
    a("s_lshl_b32 %s, %s, 11" % (s(S_M0A), s(S_W)))
    a("s_add_u32 %s, %s, 16384" % (s(S_M0W), s(S_M0A)))
    a("s_mov_b32 %s, 0" % s(S_KA0))
    a("s_mov_b32 %s, 16384" % s(S_KA1))
    a("s_mov_b32 %s, 0" % s(S_KW))
    a("s_lshl_b32 %s, s2, 3" % s(S_ROW))
    a("s_add_u32 %s, %s, %s" % (s(S_ROW), s(S_ROW), s(S_W)))
    a("s_cmp_eq_u32 %s, 0" % s(S_TYPE))
    a("s_waitcnt lgkmcnt(0)")
    a("s_mov_b32 s16, s6"); a("s_mov_b32 s17, s7"); a("s_mov_b32 s18, 0x%x" % (2048 * 1024)); a("s_mov_b32 s19, 0x20000")
    a("s_cselect_b32 s20, s8, s10"); a("s_cselect_b32 s21, s9, s11"); a("s_mov_b32 s22, 0x%x" % (512 * 8192)); a("s_mov_b32 s23, 0x20000")

    def dma(stage):
        base = (stage % NS) * STG
        g = []
        g.append(["s_add_u32 m0, %s, %d" % (s(S_M0A), base), "s_nop 0",
                  "buffer_load_dwordx4 %s, s[16:19], %s offen lds" % (v(VDA), s(S_KA0))])
        g.append(["s_add_u32 m0, %s, %d" % (s(S_M0A), base + 1024), "s_add_u32 %s, %s, 64" % (s(S_KA0), s(S_KA0)),
                  "buffer_load_dwordx4 %s, s[16:19], %s offen lds" % (v(VDA), s(S_KA1))])
        g.append(["s_add_u32 m0, %s, %d" % (s(S_M0W), base), "s_add_u32 %s, %s, 64" % (s(S_KA1), s(S_KA1)),
                  "buffer_load_dwordx4 %s, s[20:23], %s offen lds" % (v(VDW0), s(S_KW))])
        g.append(["s_add_u32 m0, %s, %d" % (s(S_M0W), base + 1024), "s_nop 0",
                  "buffer_load_dwordx4 %s, s[20:23], %s offen lds" % (v(VDW1), s(S_KW)),
                  "s_add_u32 %s, %s, %d" % (s(S_KW), s(S_KW), 32 * 8192)])
        return g
    ptr = {KA_CKV: 6, KA_WUK: 8, KA_WUV: 10, KA_WQ: 52, KA_WO: 54, KA_WG: 56, KA_WU: 58, KA_WD: 60}
    def pf_item(k):
        ka, size = PF[k]
        return ["s_mov_b32 s32, %s" % s(ptr[ka]), "s_mov_b32 s33, %s" % s(ptr[ka] + 1), "s_mov_b32 s34, 0x%x" % size,
                "s_mul_i32 %s, %s, %d" % (s(S_PFO), s(S_ROW), size // 2048),
                "buffer_load_dword %s, %s, s[32:35], %s offen" % (v(VPFD), v(VPF), s(S_PFO))]
    vm0 = VM()
    def put(g):
        for l in g: a(l)
    for sg in range(2):
        for g in dma(sg): put(g); vm0.issue(sg)
    a("s_mov_b32 s24, s14"); a("s_mov_b32 s25, s15"); a("s_mov_b32 s26, 0x%x" % WS_BYTES); a("s_mov_b32 s27, 0x20000")
    a("s_mov_b32 s28, s4"); a("s_mov_b32 s29, s5"); a("s_mov_b32 s30, 0x%x" % (2048 * 1152)); a("s_mov_b32 s31, 0x20000")
    a("s_mov_b32 s32, s12"); a("s_mov_b32 s33, s13"); a("s_mov_b32 s34, 1152"); a("s_mov_b32 s35, 0x20000")
    a("s_mul_i32 %s, %s, 1152" % (s(S_T0), s(S_ROW)))
    a("v_lshlrev_b32 v3, 5, v2")
    a("v_mov_b32 v4, 0x40000000")
    a("v_cmp_gt_u32 vcc, 36, v2")
    a("v_lshlrev_b32 %s, 6, v2" % v(VPF))
    a("v_lshlrev_b32 %s, 4, v2" % v(VST))
    a("v_cndmask_b32 v3, v4, v3, vcc")
    a("buffer_load_dwordx4 v[200:203], v3, s[28:31], %s offen" % s(S_T0))
    a("buffer_load_dwordx4 v[204:207], v3, s[28:31], %s offen offset:16" % s(S_T0))
    a("buffer_load_dwordx4 v[208:211], v3, s[32:35], 0 offen")
    a("buffer_load_dwordx4 v[212:215], v3, s[32:35], 0 offen offset:16")
    for _ in range(4): vm0.issue("ln")
    a("v_and_b32 v4, 31, v2")
    a("v_lshlrev_b32 v4, 6, v4")
    a("v_lshrrev_b32 v5, 5, v2")
    a("v_bfe_u32 v6, v2, 2, 2")
    a("v_xor_b32 v5, v5, v6")
    a("s_and_b32 %s, %s, 1" % (s(S_T0), s(S_W)))
    a("s_lshl_b32 %s, %s, 13" % (s(S_T0), s(S_T0)))
    a("v_add_u32 v4, %s, v4" % s(S_T0))
    a("v_lshl_add_u32 %s, v5, 4, v4" % v(VWIN[0][0]))
    a("v_xor_b32 v5, 2, v5")
    a("v_lshl_add_u32 %s, v5, 4, v4" % v(VWIN[0][1]))
    a("v_bfe_u32 v4, v2, 2, 2")
    a("v_lshrrev_b32 v5, 5, v2")
    a("v_lshl_add_u32 v5, v5, 3, v4")
    a("v_lshlrev_b32 v5, 9, v5")
    a("v_bfe_u32 v6, v2, 4, 1")
    a("v_lshl_add_u32 v5, v6, 5, v5")
    a("v_and_b32 v6, 3, v2")
    a("v_lshl_add_u32 v5, v6, 3, v5")
    a("v_add_u32 v5, 16384, v5")
    a("s_lshr_b32 %s, %s, 1" % (s(S_T0), s(S_W)))
    a("s_lshl_b32 %s, %s, 1" % (s(S_T0), s(S_T0)))
    for nb in range(2):
        a("s_add_u32 %s, %s, %d" % (s(S_T1), s(S_T0), nb))
        a("v_xor_b32 v6, %s, v4" % s(S_T1))
        a("v_lshl_add_u32 %s, v6, 6, v5" % v(VWIN[0][2 + nb]))
    for wdw in (1, 2):
        for k in range(4):
            a("v_add_u32 %s, 0x%x, %s" % (v(VWIN[wdw][k]), 65536 * wdw, v(VWIN[0][k])))

    def reads(it, ks, buf):
        base = (it % NS) * STG
        wdw, off = base // 65536, base % 65536
        B = BUF[buf]
        r = []
        for mb in range(4):
            r.append("ds_read_b128 %s, %s offset:%d" % (v(B + 4 * mb, 4), v(VWIN[wdw][ks]), off + mb * 2048))
        for nb in range(2):
            for h in range(2):
                r.append("ds_read_b64_tr_b16 %s, %s offset:%d" % (v(B + 16 + 4 * nb + 2 * h, 2), v(VWIN[wdw][2 + nb]), off + ks * 8192 + h * 2048))
        return [r[4], r[5], r[0], r[6], r[7], r[1], r[2], r[3]]
    def mfmas(buf, typ, first):
        B = BUF[buf]
        m = []
        for mb in range(4):
            for nb in range(2):
                d = ACC + (mb * 2 + nb) * 16
                af, wf = v(B + 4 * mb, 4), v(B + 16 + 4 * nb, 4)
                c = "0" if first else v(d, 16)
                if typ == 0: m.append("v_mfma_f32_32x32x16_bf16 %s, %s, %s, %s" % (v(d, 16), wf, af, c))
                else:        m.append("v_mfma_f32_32x32x16_bf16 %s, %s, %s, %s" % (v(d, 16), af, wf, c))
        return m

    st()
    a("s_waitcnt vmcnt(%d)" % vm0.need(0))
    a("s_barrier")
    st()
    for l in reads(0, 0, 0): a(l)
    a("s_cmp_eq_u32 %s, 0" % s(S_TYPE))
    a("s_cbranch_scc0 %s_vtype" % name)
    for typ in range(2):
        if typ == 1: a.label("%s_vtype" % name)
        vm = VM(); vm.q = list(vm0.q)
        pend = [(sg, g) for sg in range(2, NS) for g in dma(sg)]
        pfl = [("pf", pf_item(3))] if pf else []
        ln = ln_code(S_ROW, S_L0, S_L1, VLANE, 24, stsc)
        for gk in range(2 * NIT):
            it, ks = gk // 2, gk % 2
            a("s_waitcnt lgkmcnt(0)")
            mm = mfmas(ks, typ, gk == 0)
            rd = reads((gk + 1) // 2, (gk + 1) % 2, 1 - ks) if gk + 1 < 2 * NIT else []
            for i in range(8):
                a(mm[i])
                if ks == 1 and i == 0 and it + 1 < NIT:
                    a("s_waitcnt vmcnt(%d)" % vm.need(it + 1))
                    a("s_barrier")
                    if it + NS < NIT: pend += [(it + NS, g) for g in dma(it + NS)]
                    if pfl and it >= 13: pend.append(pfl.pop(0))
                if i < 4:
                    for l in rd[2 * i:2 * i + 2]: a(l)
                elif pend and (i != 5 or it < 2):
                    sg, g = pend.pop(0); put(g); vm.issue(sg)
                if gk == 4 and i == 0: a("s_waitcnt vmcnt(%d)" % vm.need("ln"))
                if gk >= 4:
                    for _ in range(1 if i < 4 else 2):
                        if ln:
                            l = ln.pop(0); a(l)
                            if l.startswith("buffer_"): vm.issue("lnst")
        assert not pend and not ln and not pfl, (len(pend), len(ln))
        if typ == 0: a("s_branch %s_epi" % name)
    a.label("%s_epi" % name)
    st()
    a("s_lshr_b32 %s, %s, 2" % (s(S_T0), s(S_W)))
    a("s_lshl_b32 %s, %s, 1" % (s(S_T1), s(S_HP)))
    a("s_add_u32 %s, %s, %s" % (s(S_T0), s(S_T0), s(S_T1)))
    a("s_lshl_b32 %s, %s, 6" % (s(S_T0), s(S_T0)))
    a("s_lshl_b32 %s, %s, 3" % (s(S_T1), s(S_MT)))
    a("s_add_u32 %s, %s, %s" % (s(S_T0), s(S_T0), s(S_T1)))
    a("s_and_b32 %s, %s, 1" % (s(S_T1), s(S_W)))
    a("s_lshl_b32 %s, %s, 2" % (s(S_T1), s(S_T1)))
    a("s_add_u32 %s, %s, %s" % (s(S_T0), s(S_T0), s(S_T1)))
    a("s_lshl_b32 %s, %s, 14" % (s(S_T0), s(S_T0)))
    a("s_lshl_b32 %s, %s, 13" % (s(S_T1), s(S_TYPE)))
    a("s_add_u32 %s, %s, %s" % (s(S_T0), s(S_T0), s(S_T1)))
    a("s_bfe_u32 %s, %s, 0x10001" % (s(S_T1), s(S_W)))
    a("s_lshl_b32 %s, %s, 12" % (s(S_T1), s(S_T1)))
    a("s_add_u32 %s, %s, %s" % (s(S_T0), s(S_T0), s(S_T1)))
    a("s_add_u32 %s, %s, 0x%x" % (s(S_T0), s(S_T0), WS_KV))
    a("s_mov_b32 %s, 0x%08x" % (s(S_T1), f32bits(math.log2(math.e) / math.sqrt(128.0))))
    a("s_cmp_eq_u32 %s, 0" % s(S_TYPE))
    a("s_cselect_b32 %s, %s, 1.0" % (s(S_T1), s(S_T1)))
    for mb in range(4):
        for nb in range(2):
            d = ACC + (mb * 2 + nb) * 16
            o = 128 + ((mb * 2 + nb) % 4) * 8
            for i in range(16):
                a("v_mul_f32 %s, %s, %s" % (v(d + i), s(S_T1), v(d + i)))
            for i in range(8):
                a("v_cvt_pk_bf16_f32 %s, %s, %s" % (v(o + i), v(d + 2 * i), v(d + 2 * i + 1)))
            a("buffer_store_dwordx4 %s, %s, s[24:27], %s offen offset:%d%s" % (v(o, 4), v(VST), s(S_T0), nb * 2048, stsc))
            a("buffer_store_dwordx4 %s, %s, s[24:27], %s offen offset:%d%s" % (v(o + 4, 4), v(VST), s(S_T0), nb * 2048 + 1024, stsc))
        a("s_add_u32 %s, %s, 16384" % (s(S_T0), s(S_T0)))
    st()
    st.dump(24, S_ROW, S_T1)
    a.label("%s_end" % name)
    a("s_endpgm")
    return dict(name=name, grid=256, block=512, lds=NS * STG, vgpr=240)


S_KVO, S_SCL = 68, 69
S_NONCE, S_FB = 87, 67
def phase1(a, name, st, check_fn, NS=4, first_part=None, early=False):
    NIT, STG, ACC = 16, 32768, 0
    SP = NS * STG
    PUB_IT, SIG_IT, CHK_IT = (4, 6, 9) if early else (8, 11, 14)
    VL16 = 243
    BUF = [128, 152]
    VWIN = [[176, 177, 178, 179], [180, 181, 182, 183], [184, 185, 186, 187]]
    VDA, VDW0, VDW1, VTID, VLANE, VPF, VPFD, VARR, VAOF = 188, 189, 190, 191, 192, 193, 194, 195, 196
    S_W = 36
    fl2 = [(None, ["buffer_load_dword %s, %s, s[12:15], %s offen offset:0 sc1" % (v(200 + k), v(184 + k), s(S_FB))]) for k in range(4)]
    S_TYPE, S_MT, S_HP, S_KA0, S_KA1, S_KW, S_M0A, S_M0W, S_ROW, S_L0, S_L1 = range(76, 87)
    S_T0, S_T1, S_T2 = 47, 48, 49
    a("v_and_b32 v2, 63, v0")
    a("v_mov_b32 %s, v2" % v(VLANE))
    a("v_mov_b32 %s, v0" % v(VTID))
    a("s_and_b32 %s, s2, 7" % s(S_T0))
    a("s_lshr_b32 %s, s2, 3" % s(S_T1))
    a("s_bfe_u32 %s, %s, 0x10001" % (s(S_TYPE), s(S_T1)))
    a("s_and_b32 %s, %s, 1" % (s(S_T2), s(S_T1)))
    a("s_lshl_b32 %s, %s, 1" % (s(S_HP), s(S_T0)))
    a("s_add_u32 %s, %s, %s" % (s(S_HP), s(S_HP), s(S_T2)))
    a("s_lshr_b32 %s, %s, 2" % (s(S_MT), s(S_T1)))
    a("v_lshrrev_b32 v4, 2, v2")
    a("v_lshlrev_b32 v4, 10, v4")
    a("v_and_b32 v5, 3, v2")
    a("v_lshrrev_b32 v6, 4, v2")
    a("v_xor_b32 v5, v5, v6")
    a("v_lshl_add_u32 v4, v5, 4, v4")
    a("s_lshl_b32 %s, %s, 18" % (s(S_T0), s(S_MT)))
    a("s_lshl_b32 %s, %s, 15" % (s(S_T1), s(S_W)))
    a("s_add_u32 %s, %s, %s" % (s(S_T0), s(S_T0), s(S_T1)))
    a("v_add_u32 %s, %s, v4" % (v(VDA), s(S_T0)))
    a("v_lshrrev_b32 v4, 5, v2")
    a("v_bfe_u32 v5, v2, 2, 3")
    a("v_and_b32 v6, 3, v2")
    a("s_lshl_b32 %s, %s, 9" % (s(S_T0), s(S_HP)))
    a("s_add_u32 %s, %s, %s" % (s(S_T0), s(S_T0), s(S_T1)))
    for e, vd in ((0, VDW0), (1, VDW1)):
        a("v_add_u32 v7, %d, v4" % (2 * e))
        a("v_xor_b32 v24, v5, v7")
        a("v_lshl_add_u32 v24, v24, 2, v6")
        a("v_lshlrev_b32 v24, 4, v24")
        a("v_lshl_add_u32 v24, v7, 13, v24")
        a("v_add_u32 %s, %s, v24" % (v(vd), s(S_T0)))
    a("s_lshl_b32 %s, %s, 11" % (s(S_M0A), s(S_W)))
    a("s_add_u32 %s, %s, 16384" % (s(S_M0W), s(S_M0A)))
    a("s_mov_b32 %s, 0" % s(S_KA0))
    a("s_mov_b32 %s, 16384" % s(S_KA1))
    a("s_mov_b32 %s, 0" % s(S_KW))
    a("s_lshl_b32 %s, s2, 3" % s(S_ROW))
    a("s_add_u32 %s, %s, %s" % (s(S_ROW), s(S_ROW), s(S_W)))
    a("s_cmp_eq_u32 %s, 0" % s(S_TYPE))
    a("s_waitcnt lgkmcnt(0)")
    a("s_mov_b32 s16, s56"); a("s_mov_b32 s17, s57"); a("s_mov_b32 s18, 0x%x" % (2048 * 1152)); a("s_mov_b32 s19, 0x20000")
    a("s_mov_b32 s56, s58"); a("s_mov_b32 s57, s59"); a("s_mov_b32 s58, 0x%x" % (2048 * 1024)); a("s_mov_b32 s59, 0x20000")
    a("s_cselect_b32 s60, s60, s62"); a("s_cselect_b32 s61, s61, s63"); a("s_mov_b32 s62, 0x%x" % (512 * 8192)); a("s_mov_b32 s63, 0x20000")
    def dma(stage):
        base = (stage % NS) * STG
        g = []
        g.append(["s_add_u32 m0, %s, %d" % (s(S_M0A), base), "s_nop 0",
                  "buffer_load_dwordx4 %s, s[56:59], %s offen lds" % (v(VDA), s(S_KA0))])
        g.append(["s_add_u32 m0, %s, %d" % (s(S_M0A), base + 1024), "s_add_u32 %s, %s, 64" % (s(S_KA0), s(S_KA0)),
                  "buffer_load_dwordx4 %s, s[56:59], %s offen lds" % (v(VDA), s(S_KA1))])
        g.append(["s_add_u32 m0, %s, %d" % (s(S_M0W), base), "s_add_u32 %s, %s, 64" % (s(S_KA1), s(S_KA1)),
                  "buffer_load_dwordx4 %s, s[60:63], %s offen lds" % (v(VDW0), s(S_KW))])
        g.append(["s_add_u32 m0, %s, %d" % (s(S_M0W), base + 1024), "s_nop 0",
                  "buffer_load_dwordx4 %s, s[60:63], %s offen lds" % (v(VDW1), s(S_KW)),
                  "s_add_u32 %s, %s, %d" % (s(S_KW), s(S_KW), 32 * 8192)])
        return g
    vm0 = VM()
    def put(g):
        for l in g: a(l)
    for sg in range(2):
        for g in dma(sg): put(g); vm0.issue(sg)
    a("s_mov_b32 s20, s64"); a("s_mov_b32 s21, s65"); a("s_mov_b32 s22, 1152"); a("s_mov_b32 s23, 0x20000")
    a("s_mul_i32 %s, %s, 1152" % (s(S_T0), s(S_ROW)))
    a("v_lshlrev_b32 v3, 5, v2")
    a("v_mov_b32 v4, 0x40000000")
    a("v_cmp_gt_u32 vcc, 36, v2")
    a("v_lshlrev_b32 %s, 6, v2" % v(VPF))
    a("s_memrealtime s[64:65]")
    a("v_cndmask_b32 v3, v4, v3, vcc")
    a("v_cmp_eq_u32 vcc, 0, v0")
    a("buffer_load_dwordx4 v[200:203], v3, s[16:19], %s offen" % s(S_T0))
    a("buffer_load_dwordx4 v[204:207], v3, s[16:19], %s offen offset:16" % s(S_T0))
    a("buffer_load_dwordx4 v[208:211], v3, s[20:23], 0 offen")
    a("buffer_load_dwordx4 v[212:215], v3, s[20:23], 0 offen offset:16")
    a("v_mov_b32 v5, 0")
    a("v_cndmask_b32 %s, v4, v5, vcc" % v(VAOF))
    for _ in range(4): vm0.issue("ln")
    a("s_mov_b32 s74, 256"); a("s_mov_b32 s75, 0x20000")
    a("s_waitcnt lgkmcnt(0)")
    a("s_or_b32 s64, s64, 1")
    a("v_mov_b32 v198, s64")
    a("v_mov_b32 v199, 0")
    a("v_mov_b32 v197, s64")
    a("buffer_atomic_cmpswap v[198:199], %s, s[72:75], 0 offen sc0 sc1" % v(VAOF))
    vm0.issue("tag")
    a("v_and_b32 v4, 31, v2")
    a("v_lshlrev_b32 v4, 6, v4")
    a("v_lshrrev_b32 v5, 5, v2")
    a("v_bfe_u32 v6, v2, 2, 2")
    a("v_xor_b32 v5, v5, v6")
    a("s_and_b32 %s, %s, 1" % (s(S_T0), s(S_W)))
    a("s_lshl_b32 %s, %s, 13" % (s(S_T0), s(S_T0)))
    a("v_add_u32 v4, %s, v4" % s(S_T0))
    a("v_lshl_add_u32 %s, v5, 4, v4" % v(VWIN[0][0]))
    a("v_xor_b32 v5, 2, v5")
    a("v_lshl_add_u32 %s, v5, 4, v4" % v(VWIN[0][1]))
    a("v_bfe_u32 v4, v2, 2, 2")
    a("v_lshrrev_b32 v5, 5, v2")
    a("v_lshl_add_u32 v5, v5, 3, v4")
    a("v_lshlrev_b32 v5, 9, v5")
    a("v_bfe_u32 v6, v2, 4, 1")
    a("v_lshl_add_u32 v5, v6, 5, v5")
    a("v_and_b32 v6, 3, v2")
    a("v_lshl_add_u32 v5, v6, 3, v5")
    a("v_add_u32 v5, 16384, v5")
    a("s_lshr_b32 %s, %s, 1" % (s(S_T0), s(S_W)))
    a("s_lshl_b32 %s, %s, 1" % (s(S_T0), s(S_T0)))
    for nb in range(2):
        a("s_add_u32 %s, %s, %d" % (s(S_T1), s(S_T0), nb))
        a("v_xor_b32 v6, %s, v4" % s(S_T1))
        a("v_lshl_add_u32 %s, v6, 6, v5" % v(VWIN[0][2 + nb]))
    for wdw in (1,):
        for k in range(4):
            a("v_add_u32 %s, 0x%x, %s" % (v(VWIN[wdw][k]), 65536 * wdw, v(VWIN[0][k])))
    K = s(S_KVO)
    a("s_lshr_b32 %s, %s, 2" % (K, s(S_W)))
    a("s_lshl_b32 %s, %s, 1" % (s(S_T1), s(S_HP)))
    a("s_add_u32 %s, %s, %s" % (K, K, s(S_T1)))
    a("s_lshl_b32 %s, %s, 6" % (K, K))
    a("s_lshl_b32 %s, %s, 3" % (s(S_T1), s(S_MT)))
    a("s_add_u32 %s, %s, %s" % (K, K, s(S_T1)))
    a("s_and_b32 %s, %s, 1" % (s(S_T1), s(S_W)))
    a("s_lshl_b32 %s, %s, 2" % (s(S_T1), s(S_T1)))
    a("s_add_u32 %s, %s, %s" % (K, K, s(S_T1)))
    a("s_lshl_b32 %s, %s, 14" % (K, K))
    a("s_lshl_b32 %s, %s, 13" % (s(S_T1), s(S_TYPE)))
    a("s_add_u32 %s, %s, %s" % (K, K, s(S_T1)))
    a("s_bfe_u32 %s, %s, 0x10001" % (s(S_T1), s(S_W)))
    a("s_lshl_b32 %s, %s, 12" % (s(S_T1), s(S_T1)))
    a("s_add_u32 %s, %s, %s" % (K, K, s(S_T1)))
    a("s_add_u32 %s, %s, 0x%x" % (K, K, WS_KV))
    a("s_mov_b32 %s, 0x%08x" % (s(S_SCL), f32bits(math.log2(math.e) / math.sqrt(128.0))))
    a("s_cmp_eq_u32 %s, 0" % s(S_TYPE))
    a("s_cselect_b32 %s, %s, 1.0" % (s(S_SCL), s(S_SCL)))
    a("s_lshl_b32 s66, %s, 4" % s(S_HP))
    a("s_lshl_b32 s67, %s, 1" % s(S_MT))
    a("s_add_u32 s66, s66, s67")
    a("s_add_u32 s66, s66, %s" % s(S_TYPE))
    a("s_lshl_b32 s66, s66, 6")
    a("s_add_u32 s66, s66, 0x%x" % (WS_FLAG + 16384))
    a("s_mov_b32 %s, 0x%x" % (s(S_FB), WS_FLAG))
    a("s_cmp_eq_u32 %s, 4" % s(S_W))
    a("s_cselect_b32 %s, 0, 0x40000000" % s(S_T1))
    a("v_add_u32 v184, %s, %s" % (s(S_T1), v(VPF)))
    for k in range(1, 4): a("v_add_u32 %s, %d, v184" % (v(184 + k), 4096 * k))
    if first_part: first_part()

    def reads(it, ks, buf):
        base = (it % NS) * STG
        wdw, off = base // 65536, base % 65536
        B = BUF[buf]
        r = []
        for mb in range(4):
            r.append("ds_read_b128 %s, %s offset:%d" % (v(B + 4 * mb, 4), v(VWIN[wdw][ks]), off + mb * 2048))
        for nb in range(2):
            for h in range(2):
                r.append("ds_read_b64_tr_b16 %s, %s offset:%d" % (v(B + 16 + 4 * nb + 2 * h, 2), v(VWIN[wdw][2 + nb]), off + ks * 8192 + h * 2048))
        return [r[4], r[5], r[0], r[6], r[7], r[1], r[2], r[3]]
    def mfmas(buf, typ, first):
        B = BUF[buf]
        m = []
        for mb in range(4):
            for nb in range(2):
                d = ACC + (mb * 2 + nb) * 16
                af, wf = v(B + 4 * mb, 4), v(B + 16 + 4 * nb, 4)
                c = "0" if first else v(d, 16)
                if typ == 0: m.append("v_mfma_f32_32x32x16_bf16 %s, %s, %s, %s" % (v(d, 16), wf, af, c))
                else:        m.append("v_mfma_f32_32x32x16_bf16 %s, %s, %s, %s" % (v(d, 16), af, wf, c))
        return m
    a("s_waitcnt vmcnt(%d)" % vm0.need(0))
    a("s_barrier")
    st()
    for l in reads(0, 0, 0): a(l)
    a("s_cmp_eq_u32 %s, 0" % s(S_TYPE))
    a("s_cbranch_scc0 %s_vtype" % name)
    for typ in range(2):
        if typ == 1: a.label("%s_vtype" % name)
        vm = VM(); vm.q = list(vm0.q)
        pend = [(sg, g) for sg in range(2, NS) for g in dma(sg)]
        pfq = [("pf", ["buffer_load_dword %s, v185, s[8:11], s64 offen" % v(VPFD)])]
        pfx = [("pf", ["buffer_load_dword %s, v186, s[12:15], s65 offen" % v(VPFD)]),
               ("pf", ["buffer_load_dword %s, v187, s[12:15], s65 offen" % v(VPFD)])]
        pfs = ["v_lshrrev_b32 v185, 1, %s" % v(VLANE), "v_lshlrev_b32 v185, 13, v185", "v_and_b32 v186, 1, %s" % v(VLANE),
               "v_lshl_add_u32 v185, v186, 7, v185", "v_mov_b32 v187, 0x40000000", "v_cmp_gt_u32 vcc, 18, %s" % v(VLANE),
               "s_mul_i32 s64, s38, 72", "s_mul_i32 s65, %s, 9" % s(S_W), "v_cndmask_b32 v185, v187, v185, vcc",
               "s_add_u32 s64, s64, s65", "s_lshl_b32 s64, s64, 13", "s_lshl_b32 s65, s37, 8", "s_add_u32 s64, s64, s65",
               "v_lshlrev_b32 v186, 7, %s" % v(VLANE), "v_cmp_gt_u32 vcc, 8, %s" % v(VLANE), "v_add_u32 v232, 8192, v186",
               "s_lshr_b32 s65, s2, 3", "s_lshl_b32 s65, s65, 3", "v_cndmask_b32 v187, v187, v232, vcc",
               "s_add_u32 s65, s65, %s" % s(S_W), "s_mul_i32 s65, s65, 9216", "s_add_u32 s65, s65, 0x%x" % WS_XNF]
        ln = ln_code(S_ROW, S_L0, S_L1, VLANE, 12, lds=SP)
        tagw = ["v_cmp_eq_u32 s[64:65], 0, v198", "v_mov_b32 v199, %d" % (SP + 9856), "v_add_u32 v199, v199, %s" % v(VAOF),
                "v_cndmask_b32 v198, v198, v197, s[64:65]", "v_min_u32 v199, %d, v199" % (SP + 9860), "ds_write_b32 v199, v198"]
        pub = ["s_lshl_b32 %s, %s, 10" % (s(S_L0), s(S_W)),
               "v_add_u32 v232, %s, %s" % (s(S_L0), v(VL16)),
               "v_add_u32 v232, %d, v232" % SP,
               "ds_read_b128 v[200:203], v232",
               "v_mov_b32 v233, %d" % (SP + 8192),
               "v_add_u32 v233, v233, %s" % v(VL16),
               "ds_read_b128 v[204:207], v233",
               "v_mov_b32 v234, %d" % (SP + 9856),
               "ds_read_b32 v235, v234",
               "v_lshrrev_b32 v234, 2, %s" % v(VL16),
               "v_add_u32 v236, %d, v234" % (SP + 9728),
               "ds_read_b32 v236, v236",
               "v_lshrrev_b32 v232, 3, %s" % v(VLANE),
               "v_lshlrev_b32 v232, 9, v232",
               "v_and_b32 v233, 7, %s" % v(VLANE),
               "v_lshl_add_u32 v232, v233, 4, v232",
               "s_lshr_b32 %s, s2, 2" % s(S_L0),
               "s_mul_i32 %s, %s, 36864" % (s(S_L0), s(S_L0)),
               "s_and_b32 %s, s2, 3" % s(S_L1),
               "s_lshl_b32 %s, %s, 7" % (s(S_L1), s(S_L1)),
               "s_add_u32 %s, %s, %s" % (s(S_L0), s(S_L0), s(S_L1)),
               "s_add_u32 %s, %s, 0x%x" % (s(S_L0), s(S_L0), WS_XNF),
               "s_lshl_b32 %s, %s, 12" % (s(S_L1), s(S_W)),
               "s_add_u32 %s, %s, %s" % (s(S_L1), s(S_L1), s(S_L0)),
               "s_add_u32 %s, %s, 32768" % (s(S_L0), s(S_L0)),
               "v_mov_b32 v237, 0x40000000",
               "v_cmp_gt_u32 vcc, 64, %s" % v(VTID),
               "s_waitcnt lgkmcnt(0)",
               "buffer_store_dwordx4 v[200:203], v232, s[12:15], %s offen sc1" % s(S_L1),
               "v_cndmask_b32 v233, v237, v232, vcc",
               "v_readfirstlane_b32 %s, v235" % s(S_NONCE),
               "buffer_store_dwordx4 v[204:207], v233, s[12:15], %s offen sc1" % s(S_L0),
               "v_cmp_gt_u32 vcc, 8, %s" % v(VTID),
               "s_lshl_b32 %s, s2, 5" % s(S_L0),
               "s_add_u32 %s, %s, 0x%x" % (s(S_L0), s(S_L0), WS_RKEY),
               "v_cndmask_b32 v233, v237, v234, vcc",
               "buffer_store_dword v236, v233, s[12:15], %s offen sc1" % s(S_L0),
               "v_mov_b32 %s, %s" % (v(VARR), s(S_NONCE)),
               "s_lshl_b32 %s, s2, 6" % s(S_L0),
               "s_add_u32 %s, %s, 0x%x" % (s(S_L0), s(S_L0), WS_FLAG)]
        fl = [("fl", g) for _, g in fl2]
        for gk in range(2 * NIT):
            it, ks = gk // 2, gk % 2
            a("s_waitcnt lgkmcnt(0)")
            mm = mfmas(ks, typ, gk == 0)
            rd = reads((gk + 1) // 2, (gk + 1) % 2, 1 - ks) if gk + 1 < 2 * NIT else []
            for i in range(8):
                a(mm[i])
                if ks == 1 and i == 0 and it + 1 < NIT:
                    n = vm.need(it + 1)
                    if it == PUB_IT: assert not ln
                    if it == SIG_IT:
                        assert not ln
                        n = min(n, vm.need("lnst"))
                    if it == CHK_IT:
                        a("s_cmp_eq_u32 %s, 4" % s(S_W))
                        a("s_cbranch_scc0 %s_lnc%d" % (name, typ))
                        a("s_waitcnt vmcnt(%d)" % vm.need("fl"))
                        check_fn("ln%d" % typ, [200, 201, 202, 203], [g[0] for _, g in fl2])
                        a.label("%s_lnc%d" % (name, typ))
                    a("s_waitcnt vmcnt(%d)" % n)
                    a("s_barrier")
                    if it == PUB_IT: ln += pub
                    if it == SIG_IT:
                        a("buffer_store_dword %s, %s, s[12:15], %s offen sc1" % (v(VARR), v(VAOF), s(S_L0)))
                        vm.issue("arr")
                    if it + NS < NIT: pend += [(it + NS, g) for g in dma(it + NS)]
                    if it == CHK_IT - 1: pend += fl
                    if early:
                        if it == CHK_IT: ln += pfs
                        if it == CHK_IT + 1: pend += pfq + pfx
                    elif it == 12:
                        pend.append(("pf", ["s_mul_i32 %s, %s, %d" % (s(S_T2), s(S_ROW), 576 * 8192 // 2048),
                                            "buffer_load_dword %s, %s, s[8:11], %s offen" % (v(VPFD), v(VPF), s(S_T2))]))
                if gk == 6 and i == 0:
                    a("s_waitcnt vmcnt(%d)" % vm.need("tag"))
                    put(tagw)
                if i < 4:
                    for l in rd[2 * i:2 * i + 2]: a(l)
                elif pend:
                    sg, g = pend.pop(0); put(g); vm.issue(sg)
                g0 = 2 if early else 4
                if gk == g0 and i == 0: a("s_waitcnt vmcnt(%d)" % vm.need("ln"))
                if gk >= g0:
                    for _ in range((5 if i < 4 else 7) if early else (3 if i < 4 else 4)):
                        if ln:
                            l = ln.pop(0); a(l)
                            if l.startswith("buffer_"): vm.issue("lnst")
        assert not pend and not ln, (len(pend), len(ln))
        if typ == 0: a("s_branch %s_epi" % name)
    a.label("%s_epi" % name)
    st()

def kv_convert(a):
    for j in range(8):
        d = 16 * j
        for i in range(8):
            a("v_mul_f32 %s, %s, %s" % (v(d + 2 * i), s(S_SCL), v(d + 2 * i)))
            a("v_mul_f32 %s, %s, %s" % (v(d + 2 * i + 1), s(S_SCL), v(d + 2 * i + 1)))
            a("v_cvt_pk_bf16_f32 %s, %s, %s" % (v(8 * j + i), v(d + 2 * i), v(d + 2 * i + 1)))

def kv_store_items(VL16, sc=" sc1"):
    it = []
    for c in range(16):
        mb, nb, sx = c // 4, (c // 2) % 2, c % 2
        g = ["buffer_store_dwordx4 %s, %s, s[12:15], %s offen offset:%d%s" % (v(4 * c, 4), v(VL16), s(S_KVO), nb * 2048 + sx * 1024, sc)]
        if c % 4 == 3: g.append("s_add_u32 %s, %s, 16384" % (s(S_KVO), s(S_KVO)))
        it.append(g)
    return it
```

```python
from asmlib import *
import struct, math
def f32bits(x): return struct.unpack("<I", struct.pack("<f", x))[0]

class VM:
    def __init__(self): self.q = []
    def issue(self, tag): self.q.append(tag)
    def need(self, tag):
        idx = max(i for i, t in enumerate(self.q) if t == tag)
        return len(self.q) - 1 - idx

O, S, NEGM, P, Q, FR, T = 0, [64, 80], 96, [112, 120], 128, 160, 192
QACC = 64
VL, VTS, VRB, VL16, VLQ, VDW, VNINF, VTMP = 240, 241, 242, 243, 244, 245, 246, 247
VWB = [248, 249, 250, 251]
VTM2, VTM3 = 252, 253
NXN = 12
XN = lambda k: 192 + 4 * (k % NXN)
S_W, S_H, S_I, S_QB, S_N, S_CNT, S_SLOT, S_SRC, S_DST, S_JL, S_J = 36, 37, 38, 39, 40, 41, 42, 43, 44, 45, 46
S_T0, S_T1, S_T2, S_RET = 47, 48, 49, 50
S_TH = 52
S_U0, S_SRC4, S_XN = 53, 54, 55
S_PF, VPF = 32, 255
S_P0 = 34
SLOT = 32768
THRESH = 65536.0

def gen_k2(a, name="k2_kernel", stamps=False, pfs=2048, fused=False, st_span=96, sig_u=4, kvsc=" sc1", dmasc=True, kvf_pos=134, exp=''):
    L = lambda x: "%s_%s" % (name, x)
    nst = [0]
    def stamp():
        if stamps and fused:
            a("s_memrealtime %s" % s(88 + 2 * nst[0], 2)); nst[0] += 1
        elif stamps:
            a("s_memtime %s" % s(70 + 2 * nst[0], 2)); a("s_memrealtime %s" % s(86 + 2 * nst[0], 2)); nst[0] += 1
    kernel_begin(a, name)
    a("s_cmp_ge_u32 s2, 256")
    a("s_cbranch_scc1 %s" % L("end"))
    a("s_load_dwordx2 s[4:5], s[0:1], %d" % KA_WQ)
    a("s_load_dwordx2 s[6:7], s[0:1], %d" % KA_WS)
    a("s_load_dwordx2 s[24:25], s[0:1], %d" % KA_WO)
    a("s_load_dwordx4 s[28:31], s[0:1], %d" % KA_WG)
    a("s_load_dwordx2 s[26:27], s[0:1], %d" % KA_WD)
    ROT = 0
    if fused:
        a("s_load_dwordx4 s[56:59], s[0:1], 0")
        a("s_load_dwordx4 s[60:63], s[0:1], %d" % KA_WUK)
        a("s_load_dwordx2 s[64:65], s[0:1], %d" % KA_WR)
        a("s_load_dwordx2 s[72:73], s[0:1], %d" % KA_DBG)
    def check_fn(tag, regs, reload):
        lb = L("chk_" + tag)
        a("s_mov_b32 s35, 0x40000")
        a.label(lb)
        for r in regs: a("v_xor_b32 %s, s87, %s" % (v(r), v(r)))
        for r in regs[1:]: a("v_or_b32 %s, %s, %s" % (v(regs[0]), v(regs[0]), v(r)))
        a("v_cmp_ne_u32 vcc, 0, %s" % v(regs[0]))
        a("s_cbranch_vccz %s_ok" % lb)
        a("s_sub_u32 s35, s35, 1")
        a("s_cbranch_scc1 %s_ok" % lb)
        a("s_sleep 4")
        for l in reload: a(l)
        a("s_waitcnt vmcnt(0)")
        a("s_branch %s" % lb)
        a.label(lb + "_ok")
    LSC = " sc1" if (fused and exp != "nosc") else ""
    stamp()
    a("v_lshrrev_b32 v1, 6, v0")
    a("v_and_b32 v2, 63, v0")
    a("v_readfirstlane_b32 %s, v1" % s(S_W))
    mark0 = len(a.lines)
    a("s_and_b32 %s, s2, 7" % s(S_T0))
    a("s_lshr_b32 %s, s2, 3" % s(S_T1))
    a("s_and_b32 %s, %s, 3" % (s(S_T2), s(S_T1)))
    a("s_lshl_b32 %s, %s, 2" % (s(S_H), s(S_T0)))
    a("s_add_u32 %s, %s, %s" % (s(S_H), s(S_H), s(S_T2)))
    a("s_lshr_b32 %s, %s, 2" % (s(S_I), s(S_T1)))
    a("s_lshl_b32 %s, %s, 2" % (s(S_T0), s(S_I)))
    a("s_add_u32 %s, %s, %s" % (s(S_T0), s(S_T0), s(S_W)))
    a("s_sub_u32 %s, 67, %s" % (s(S_T1), s(S_T0)))
    a("s_cmp_lt_u32 %s, 4" % s(S_W))
    a("s_cselect_b32 %s, %s, %s" % (s(S_QB), s(S_T0), s(S_T1)))
    a("s_add_u32 %s, %s, 1" % (s(S_N), s(S_QB)))
    a("s_lshl_b32 %s, %s, 1" % (s(S_T0), s(S_I)))
    a("s_sub_u32 %s, 32, %s" % (s(S_JL), s(S_T0)))
    a("v_lshlrev_b32 %s, 4, v2" % v(VL16))
    a("v_lshrrev_b32 v3, 4, v2")
    a("v_bfe_u32 v4, v2, 2, 2")
    a("v_xor_b32 v4, v4, v3")
    a("v_and_b32 v5, 3, v2")
    a("v_lshl_add_u32 v4, v4, 2, v5")
    a("v_lshlrev_b32 v4, 4, v4")
    a("v_lshl_add_u32 %s, v3, 13, v4" % v(VDW))
    a("s_mul_i32 %s, %s, %d" % (s(S_XN), s(S_QB), 36 * 1024))
    if WS_XNF: a("s_add_u32 %s, %s, 0x%x" % (s(S_XN), s(S_XN), WS_XNF))
    a("s_lshl_b32 %s, %s, 13" % (s(S_DST), s(S_W)))
    a("s_lshl_b32 %s, %s, 18" % (s(S_SRC), s(S_W)))
    a("s_lshl_b32 %s, %s, 8" % (s(S_T0), s(S_H)))
    a("s_add_u32 %s, %s, %s" % (s(S_SRC), s(S_SRC), s(S_T0)))
    a("s_and_b32 %s, %s, 0x7ffff" % (s(S_SRC4), s(S_SRC)))
    a("s_lshl_b32 %s, %s, 20" % (s(S_T0), s(S_H)))
    a("s_add_u32 %s, %s, 0x%x" % (s(S_T0), s(S_T0), WS_KV))
    a("s_cmp_lt_u32 %s, 4" % s(S_W))
    a("s_waitcnt lgkmcnt(0)")
    a("s_mov_b32 s8, s4"); a("s_mov_b32 s9, s5"); a("s_mov_b32 s10, 0x%x" % (576 * 8192)); a("s_mov_b32 s11, 0x20000")
    a("s_mov_b32 s12, s6"); a("s_mov_b32 s13, s7"); a("s_mov_b32 s14, 0x%x" % WS_BYTES); a("s_mov_b32 s15, 0x20000")
    if not fused: a("s_cbranch_scc0 %s" % L("B"))
    setup_lines = a.lines[mark0:]
    if fused: del a.lines[mark0:]

    def xn_load(k):
        g = []
        if k % 4 == 0 and k: g.append("s_add_u32 %s, %s, 4096" % (s(S_XN), s(S_XN)))
        g.append("buffer_load_dwordx4 %s, %s, s[12:15], %s offen offset:%d%s" % (v(XN(k), 4), v(VL16), s(S_XN), (k % 4) * 1024, LSC))
        return g
    def wq_dma(u):
        g = []
        for q in range(8):
            g.append(["s_add_u32 m0, %s, %d" % (s(S_DST), ((u + ROT) % 4) * SLOT + q * 1024),
                      "s_add_u32 %s, %s, %d" % (s(S_T2), s(S_SRC if u < 4 else S_SRC4), (u * 128 + q * 4) * 8192),
                      "buffer_load_dwordx4 %s, s[8:11], %s offen lds" % (v(VDW), s(S_T2))])
        return g
    NV = 10 if pfs else 8
    def kv_dma(pf=bool(pfs)):
        g = []
        for q in range(8):
            pre = []
            if q == 0: pre = ["s_mov_b32 m0, %s" % s(S_DST), "s_max_i32 %s, %s, 0" % (s(S_U0), s(S_SRC)), "s_add_u32 %s, %s, 4096" % (s(S_T2), s(S_U0))]
            if q == 4: pre = ["s_add_u32 m0, %s, 4096" % s(S_DST), "s_add_u32 %s, %s, %d" % (s(S_DST), s(S_DST), SLOT)]
            ins = "buffer_load_dwordx4 %s, s[16:19], %s offen offset:%d%s lds" % (v(VL16), s(S_U0) if q < 4 else s(S_T2), (q % 4) * 1024, LSC if dmasc else "")
            post = []
            if q == 7: post = ["s_add_u32 %s, %s, 32768" % (s(S_SRC), s(S_SRC)), "s_and_b32 %s, %s, 0x1ffff" % (s(S_DST), s(S_DST))]
            g.append(pre + [ins] + post)
        if pf: g.append(["buffer_load_dword v254, %s, s[20:23], %s offen" % (v(VPF), s(S_PF)), "s_add_u32 %s, %s, %d" % (s(S_PF), s(S_PF), pfs)])
        return g
    def emit(gs):
        for g in gs:
            for l in g: a(l)
    def misc_setup(isA):
        a("s_add_u32 s16, s6, %s" % s(S_T0))
        a("s_addc_u32 s17, s7, 0")
        a("s_mov_b32 s18, 0x100000")
        a("s_mov_b32 s19, 0x20000")
        a("s_mov_b32 %s, 0x%08x" % (s(S_TH), f32bits(THRESH)))
        a("v_bfe_u32 v4, v2, 2, 2")
        a("v_lshrrev_b32 v5, 5, v2")
        a("v_lshl_add_u32 v6, v5, 3, v4")
        a("v_lshlrev_b32 v6, 8, v6")
        a("v_bfe_u32 v7, v2, 4, 1")
        a("v_lshl_add_u32 v6, v7, 5, v6")
        a("v_and_b32 v7, 3, v2")
        a("v_lshl_add_u32 v6, v7, 3, v6")
        for db in range(4):
            a("v_xor_b32 v7, %d, v4" % db)
            a("v_lshl_add_u32 %s, v7, 6, v6" % v(VWB[db]))
        a("v_and_b32 v7, 31, v2")
        a("v_lshlrev_b32 v5, 2, v5")
        a("v_sub_u32 %s, v7, v5" % v(VLQ))
        a("v_mov_b32 %s, 0xff800000" % v(VNINF))
        if isA and pfs:
            a("s_cmp_eq_u32 %s, 1" % s(S_W))
            a("s_cselect_b32 s20, s28, s24"); a("s_cselect_b32 s21, s29, s25")
            a("s_cmp_eq_u32 %s, 2" % s(S_W))
            a("s_cselect_b32 s20, s30, s20"); a("s_cselect_b32 s21, s31, s21")
            a("s_cmp_eq_u32 %s, 3" % s(S_W))
            a("s_cselect_b32 s20, s26, s20"); a("s_cselect_b32 s21, s27, s21")
            a("s_cmp_eq_u32 %s, 0" % s(S_W))
            a("s_cselect_b32 s33, 18432, 20736") if False else None
            a("s_mov_b32 s33, 20736")
            a("s_cselect_b32 s33, 18432, s33")
            a("s_mul_i32 %s, s2, s33" % s(S_PF))
            a("s_add_u32 s22, %s, s33" % s(S_PF))
            a("s_mov_b32 s23, 0x20000")
            a("v_lshlrev_b32 v4, 7, v2")
            a("v_mov_b32 v5, 0x40000000")
            a("v_cmp_gt_u32 vcc, %d, v2" % (pfs // 128))
            a("s_nop 1")
            a("v_cndmask_b32 %s, v5, v4, vcc" % v(VPF))

    def mask_block():
        for r in range(16):
            a("v_cmp_le_i32 vcc, %d, %s" % (8 * (r // 4) + r % 4, v(VLQ)))
            a("s_nop 1")
            a("v_cndmask_b32 %s, %s, %s, vcc" % (v(NEGM + r), v(VNINF), v(NEGM + r)))
        a("s_nop 1")

    def qk(p, g, c0=None):
        c = (c0 or v(NEGM, 16)) if g == 0 else v(S[p], 16)
        return "v_mfma_f32_32x32x16_bf16 %s, %s, %s, %s" % (v(S[p], 16), v(FR + 4 * g, 4), v(Q + 4 * g, 4), c)
    def pv(p, g):
        db, st = g % 4, g // 4
        return "v_mfma_f32_32x32x16_bf16 %s, %s, %s, %s" % (v(O + 16 * db, 16), v(FR + 4 * g, 4), v(P[p] + 4 * st, 4), v(O + 16 * db, 16))
    def rd_k(g, off):
        return "ds_read_b128 %s, %s offset:%d" % (v(FR + 4 * g, 4), v(VRB), off + g * 1024)
    def rd_v(g, off):
        return "ds_read_b128 %s, %s offset:%d" % (v(FR + 4 * g, 4), v(VRB), off + (g % 4) * 2048 + (g // 4) * 1024)
    stubs = []
    def sm_gaps(p):
        e = lambda i: v(T + i % 8)
        g = [[] for _ in range(16)]
        cnt = [1, 1, 2, 1, 2, 1, 2, 1, 1, 1, 1, 1, 1] if p == 0 else [2, 1, 2, 1, 1, 1, 2, 1, 1, 1, 1, 1, 1]
        i = 0; done = []
        for gi, c in enumerate(cnt):
            for _ in range(c): g[gi].append("v_exp_f32 %s, %s" % (e(i), v(S[p] + i))); i += 1
            done.append(i)
        for k in range(8):
            gi = next(x for x in range(13) if done[x] >= 2 * k + 2) + 1
            g[gi].append("v_cvt_pk_bf16_f32 %s, %s, %s" % (v(P[p] + k), e(2 * k), e(2 * k + 1)))
        for i in range(1, 16):
            gi = next(x for x in range(13) if done[x] >= i + 1) + 1
            g[gi].append("v_add_f32 %s, %s, %s" % (v(VTS), v(VTS) if i > 1 else e(0), e(i)))
        lb = a.newlabel(L("chk"))
        g[14].append("v_cmp_nge_f32 vcc, %s, %s" % (s(S_TH), v(VTS)))
        g[15] = ["s_cbranch_vccnz %s_slow" % lb, "@" + lb + "_back", "v_add_f32 %s, %s, %s" % (v(VL), v(VL), v(VTS))]
        stubs.append((lb, p))
        return g
    slot_salu = ["s_add_u32 %s, %s, %d" % (s(S_SLOT), s(S_SLOT), SLOT), "s_and_b32 %s, %s, 0x1ffff" % (s(S_SLOT), s(S_SLOT))]
    set_rb = "v_add_u32 %s, %s, %s" % (v(VRB), s(S_SLOT), v(VL16))
    def half(p, isA, dma=None):
        voff = 16384 if p == 0 else 24576
        koff = 0 if p == 0 else 8192
        gaps = sm_gaps(p)
        o = []
        for g in range(16):
            if g % 4 == 0:
                o.append("s_waitcnt vmcnt(%d) lgkmcnt(4)" % NV if (isA and p == 0 and g == 0) else "s_waitcnt lgkmcnt(4)")
            o.append(qk(1 - p, g) if g < 8 else pv(1 - p, g - 8))
            if p == 0 and g == 0: o += ["s_barrier", set_rb]
            rd = rd_v(g, voff) if g < 8 else rd_k(g - 8, koff)
            if g == 15: o += gaps[g][:2] + [rd] + gaps[g][2:]
            else: o += [rd] + gaps[g]
            if p == 1 and g == 11: o += slot_salu
            if dma and 1 <= g <= len(dma): o += dma[g - 1]
        return o
    def put(lst):
        for l in lst:
            if l.startswith("@"): a.label(l[1:])
            else: a(l)
    def half_tail(p):
        voff = 16384 if p == 0 else 24576
        gaps = sm_gaps(p)
        for g in range(8): a(rd_v(g, voff))
        for g in range(8): put(gaps[g])
        for g in range(8, 16):
            if g % 4 == 0: a("s_waitcnt lgkmcnt(%d)" % (12 - g))
            a(pv(1 - p, g - 8))
            put(gaps[g])
    def final_pv(p, voff):
        for g in range(8): a(rd_v(g, voff))
        for g in range(8):
            if g % 2 == 0: a("s_waitcnt lgkmcnt(%d)" % (6 - g))
            a(pv(p, g))

    if fused:
        import k1
        def first_part():
            a.lines.extend(setup_lines)
            misc_setup(True)
            a("s_lshr_b32 s70, %s, 1" % s(S_H))
            a("s_lshl_b32 s70, s70, 10")
            a("s_add_u32 s70, s70, 0x%x" % (WS_FLAG + 16384))
        k1.phase1(a, name + "_p1", stamp, check_fn, first_part=first_part)
        a("s_cmp_lt_u32 %s, 4" % s(S_W))
        a("s_cbranch_scc0 %s" % L("B"))
    for team in "AB":
        isA = team == "A"
        TL = lambda x: L(team + "_" + x)
        if not isA: a.label(L("B"))
        def qphase(w0):
            vm = VM()
            D = 6
            barpos = lambda u: max(32 * u - D, -1)
            items = []
            for k in range(36):
                items.append((4 * (k - NXN) + 3 if k >= NXN else -1, 4 * k - 40, "x%d" % k, xn_load(k)))
            if isA:
                kvsw = []
                for u in range(1, 7):
                    gs = wq_dma(u) if u < 5 else kv_dma(pf=bool(pfs) and u == 6)
                    if u == 5:
                        gs[0] = ["s_mul_i32 %s, %s, 16384" % (s(S_T0), s(S_W)),
                                 "s_add_u32 %s, %s, %d" % (s(S_T1), s(S_T0), (-73728) & 0xffffffff),
                                 "s_cmp_lt_u32 %s, 2" % s(S_W),
                                 "s_cselect_b32 %s, %s, %s" % (s(S_SRC), s(S_T0), s(S_T1)),
                                 "s_add_u32 %s, %s, %d" % (s(S_DST), s(S_DST), SLOT * (1 + ROT))] + gs[0]
                    if fused and u >= 5:
                        kvsw += [("u%d" % u if q < 8 else "pf", g) for q, g in enumerate(gs)]
                        continue
                    for q, g in enumerate(gs):
                        items.append((barpos(u - 2) if u >= 4 else (0 if (fused and u == 3) else -1), 32 * u - 48 + q * 0.01, "u%d" % u if q < 8 else "pf", g))
            if fused:
                for c, g in enumerate(k1.kv_store_items(VL16, kvsc)):
                    pos = c * st_span // 16
                    if exp == "nost": g = ["s_nop 0"]
                    items.append((pos, pos - 60, "kvst", g))
            kvfl = ["v_bfe_u32 %s, %s, 4, 4" % (v(XN(1)), v(VL16)), "v_lshlrev_b32 %s, 6, %s" % (v(XN(1)), v(XN(1))),
                    "buffer_load_dword %s, %s, s[12:15], s70 offen sc1" % (v(XN(0)), v(XN(1)))]
            if fused and isA: items.append((kvf_pos, 1000, "kvf", kvfl))
            extra = []
            if w0:
                import km
                for i in range(8):
                    items.append((-1, -30 + i * 0.01, "key", ["s_mov_b32 s58, 0x%x" % (WS_RKEY + (i // 4) * 4096),
                                  "buffer_load_dwordx4 %s, %s, s[12:15], s58 offen offset:%d%s" % (v(Q + 4 * i, 4), v(VL16), (i % 4) * 1024, LSC)]))
                ea = Asm()
                for r in range(8): km.top8_round(ea, r, Q, VTM2, VTM3, 56, 57)
                km.top8_store(ea, VTM2, Q, VL16, 12, 58, lds=4 * SLOT + km.SELL)
                extra = [l.strip() for l in ea.lines]
            items.sort(key=lambda x: x[1])
            if isA:
                for g in wq_dma(0):
                    put(g); vm.issue("u0")
            def pop_item(f):
                for it in items:
                    if it[0] <= f:
                        items.remove(it); put(it[3]); vm.issue(it[2]); return True
                return False
            for _ in range((12 if fused else 4) if isA else (12 if fused else 8)): pop_item(-1)
            if fused: k1.kv_convert(a)
            else: misc_setup(isA)
            def q_read(f):
                ks, db = f // 4, f % 4
                u, kk = ks // 8, ks % 8
                if kk == 0 and db == 0:
                    n = vm.need("u%d" % u) if isA else 63
                    if fused and u == sig_u:
                        assert vm.q.count("kvst") == 16
                        n = min(n, vm.need("kvst"))
                    if n < 63: a("s_waitcnt vmcnt(%d)" % n)
                    a("s_barrier")
                    if fused and u == sig_u and w0:
                        a("v_mov_b32 v254, s87")
                        a("s_mov_b64 exec, 1")
                        a("buffer_store_dword v254, off, s[12:15], s66 sc1")
                        a("s_mov_b64 exec, -1")
                        vm.issue("sig")
                    if u + ROT == 2:
                        for b in VWB: a("v_add_u32 %s, 0x10000, %s" % (v(b), v(b)))
                    if u + ROT == 4:
                        for b in VWB: a("v_subrev_u32 %s, 0x10000, %s" % (v(b), v(b)))
                off = ((u + ROT) % 2) * SLOT + kk * 4096
                for h in range(2):
                    a("ds_read_b64_tr_b16 %s, %s offset:%d" % (v(FR + 4 * (f % 8) + 2 * h, 2), v(VWB[db]), off + h * 1024))
            for f in range(D): q_read(f)
            for f in range(144):
                ks, db = f // 4, f % 4
                if f % 2 == 0:
                    nout = 2 * max(min(f + D, 144) - f - 2, 0)
                    w = "s_waitcnt lgkmcnt(%d)" % nout
                    if db == 0: w = "s_waitcnt vmcnt(%d) lgkmcnt(%d)" % (min(vm.need("x%d" % ks), 63), nout)
                    a(w)
                c = "0" if ks == 0 else v(QACC + 16 * db, 16)
                a("v_mfma_f32_32x32x16_bf16 %s, %s, %s, %s" % (v(QACC + 16 * db, 16), v(FR + 4 * (f % 8), 4), v(XN(ks), 4), c))
                if f + D < 144: q_read(f + D)
                pop_item(f)
                if not fused and 8 <= f < 72: a("v_mov_b32 %s, 0" % v(O + f - 8))
                if fused and 112 <= f:
                    for i in range(2): a("v_mov_b32 %s, 0" % v(O + 2 * (f - 112) + i))
                if extra and f == 32: a("s_waitcnt vmcnt(%d)" % min(vm.need("key"), 63))
                if f >= 32:
                    for _ in range(6):
                        if extra:
                            l = extra.pop(0); a(l)
                            if l.startswith("buffer_"): vm.issue("sel")
                            if l.startswith("ds_"): a("s_waitcnt lgkmcnt(0)")
            assert not items and not extra
            if fused and isA:
                if stamps: a("s_memrealtime s[88:89]")
                a("s_waitcnt vmcnt(%d)" % vm.need("kvf"))
                check_fn("kv%d" % w0, [XN(0)], kvfl[-1:])
                if stamps: a("s_memrealtime s[90:91]")
                for tag, g in kvsw: put(g); vm.issue(tag)
            for i in range(32):
                a("v_cvt_pk_bf16_f32 %s, %s, %s" % (v(Q + i), v(QACC + 2 * i), v(QACC + 2 * i + 1))) if i or (fused and isA) else a("s_nop 15\nv_cvt_pk_bf16_f32 %s, %s, %s" % (v(Q), v(QACC), v(QACC + 1)))
            for i in range(8): a("v_mov_b32 %s, 0" % v(P[1] + i))
            for i in range(16): a("v_mov_b32 %s, 0" % v(NEGM + i))
            a("s_waitcnt vmcnt(%d)" % vm.need("u5")) if isA else None
        if isA:
            a("s_cmp_eq_u32 %s, 0" % s(S_W))
            a("s_cbranch_scc0 %s" % TL("q123"))
            qphase(True)
            a("s_branch %s" % TL("qdone"))
            a.label(TL("q123"))
        qphase(False)
        a.label(TL("qdone"))
        stamp() if isA else None
        a("s_barrier")
        a("s_mov_b32 %s, %d" % (s(S_SLOT), (2 + ROT) * SLOT))
        a("v_add_u32 %s, %d, %s" % (v(VRB), (1 + ROT) * SLOT, v(VL16)))
        for g in range(8): a(rd_k(g, 0))
        a("v_mov_b32 %s, 0" % v(VL))
        a("s_lshr_b32 %s, %s, 1" % (s(S_CNT), s(S_N)))
        a("s_cmp_eq_u32 %s, 1" % s(S_N))
        a("s_cbranch_scc0 %s" % TL("nomask0"))
        mask_block()
        a.label(TL("nomask0"))
        dm = kv_dma() if isA else None
        for g in range(8):
            if g % 4 == 0: a("s_waitcnt lgkmcnt(4)")
            a(qk(0, g))
            a(rd_k(g, 8192))
            if dm: put(dm[g])
            if dm and g == 7 and len(dm) > 8: put(dm[8])
        a("s_nop 15")
        a("v_max3_f32 %s, %s, %s, %s" % (v(VTMP), v(S[0]), v(S[0] + 1), v(S[0] + 2)))
        for i in range(3, 15, 2):
            a("v_max3_f32 %s, %s, %s, %s" % (v(VTMP), v(VTMP), v(S[0] + i), v(S[0] + i + 1)))
        a("v_max_f32 %s, %s, %s" % (v(VTMP), v(VTMP), v(S[0] + 15)))
        a("v_mov_b32 %s, %s" % (v(VTM2), v(VTMP)))
        a("s_nop 1")
        a("v_permlane32_swap_b32 %s, %s" % (v(VTMP), v(VTM2)))
        a("s_nop 1")
        a("v_max_f32 %s, %s, %s" % (v(VTMP), v(VTMP), v(VTM2)))
        for i in range(16): a("v_sub_f32 %s, 0, %s" % (v(NEGM + i), v(VTMP)))
        for i in range(16): a("v_sub_f32 %s, %s, %s" % (v(S[0] + i), v(S[0] + i), v(VTMP)))
        stamp() if isA else None
        a("s_mov_b32 %s, %s" % (s(S_J), s(S_CNT)))
        a("s_cmp_eq_u32 %s, 0" % s(S_CNT))
        a("s_cbranch_scc1 %s" % TL("seqO2"))
        a("s_sub_u32 %s, %s, 1" % (s(S_CNT), s(S_CNT)))
        a("s_cmp_eq_u32 %s, 0" % s(S_CNT))
        a("s_cbranch_scc1 %s" % TL("endseq"))
        a("s_branch %s" % TL("h0"))
        def period_split():
            b = half(0, isA, kv_dma() if isA else None) + half(1, isA)
            idx = [i for i, l in enumerate(b) if "mfma" in l]
            b.insert(idx[16 + 13], "s_cmp_lg_u32 %s, 0" % s(S_CNT))
            b.insert(idx[16 + 9] + 1, "s_sub_u32 %s, %s, 1" % (s(S_CNT), s(S_CNT)))
            cut = idx[16 + 13] + 3
            assert "mfma" in b[cut - 1]
            return b[:cut], b[cut:]
        head, tail = period_split()
        a.raw(".p2align 6")
        a.label(TL("rot"))
        put(tail)
        a.label(TL("h0"))
        put(head)
        a("s_cbranch_scc1 %s" % TL("rot"))
        _, tail2 = period_split()
        stubs.pop(-2)
        put(tail2)
        a.label(TL("endseq"))
        a("s_bitcmp1_b32 %s, 0" % s(S_N))
        a("s_cbranch_scc1 %s" % TL("seqO"))
        mask_block()
        put(half(0, isA, kv_dma() if isA else None))
        half_tail(1)
        put(slot_salu)
        if isA: a("s_waitcnt vmcnt(%d)" % NV)
        a("s_barrier")
        a(set_rb)
        if isA: emit(kv_dma())
        final_pv(1, 16384)
        a("s_branch %s" % TL("epi"))
        a.label(TL("seqO"))
        put(half(0, isA, kv_dma() if isA else None))
        mask_block()
        put(half(1, isA))
        a.label(TL("seqO2"))
        if isA: a("s_waitcnt vmcnt(%d)" % NV)
        a("s_barrier")
        a(set_rb)
        if isA: emit(kv_dma())
        half_tail(0)
        final_pv(0, 24576)
        a.label(TL("epi"))
        a("v_mov_b32 %s, %s" % (v(VTM2), v(VL)))
        a("s_nop 1")
        a("v_permlane32_swap_b32 %s, %s" % (v(VL), v(VTM2)))
        a("s_lshl_b32 %s, %s, 5" % (s(S_T0), s(S_QB)))
        a("s_add_u32 %s, %s, %s" % (s(S_T0), s(S_T0), s(S_H)))
        a("v_add_f32 %s, %s, %s" % (v(VL), v(VL), v(VTM2)))
        a("v_rcp_f32 %s, %s" % (v(VL), v(VL)))
        a("s_lshl_b32 %s, %s, 13" % (s(S_T0), s(S_T0)))
        a("s_add_u32 %s, %s, 0x%x" % (s(S_T0), s(S_T0), WS_CTX))
        a("s_add_u32 %s, %s, 4096" % (s(S_T1), s(S_T0)))
        a("s_nop 7")
        for c in range(8):
            for i in range(8):
                a("v_mul_f32 %s, %s, %s" % (v(O + 8 * c + i), v(O + 8 * c + i), v(VL)))
            for i in range(4):
                a("v_cvt_pk_bf16_f32 %s, %s, %s" % (v(64 + 4 * c + i), v(O + 8 * c + 2 * i), v(O + 8 * c + 2 * i + 1)))
            a("buffer_store_dwordx4 %s, %s, s[12:15], %s offen offset:%d" % (v(64 + 4 * c, 4), v(VL16), s(S_T0) if c < 4 else s(S_T1), (c % 4) * 1024))
        stamp() if isA else None
        if isA:
            a("s_cmp_lt_u32 s2, 144")
            a("s_cselect_b32 %s, 11, -1" % s(S_P0))
            a("s_waitcnt vmcnt(%d)" % (NV + 8))
            a("s_branch %s" % TL("ld_in"))
            a.label(TL("ld"))
            a("s_cmp_eq_u32 %s, %s" % (s(S_J), s(S_P0)))
            a("s_cbranch_scc1 %s" % TL("moe"))
            a("s_waitcnt vmcnt(%d)" % NV)
            a.label(TL("ld_in"))
            a("s_barrier")
            a("s_add_u32 %s, %s, 1" % (s(S_J), s(S_J)))
            a("s_add_u32 %s, %s, 2" % (s(S_T0), s(S_J)))
            a("s_cmp_gt_u32 %s, %s" % (s(S_T0), s(S_JL)))
            a("s_cbranch_scc1 %s" % TL("ld_drain"))
            emit(kv_dma())
            a("s_branch %s" % TL("ld"))
            a.label(TL("ld_drain"))
            a("s_cmp_ge_u32 %s, %s" % (s(S_J), s(S_JL)))
            a("s_cbranch_scc1 %s" % TL("done"))
            a("s_waitcnt vmcnt(0)")
            a("s_barrier")
            a("s_branch %s" % TL("done"))
            a.label(TL("moe"))
            import km
            tv = VM()
            npf = 1 if pfs else 0
            tv.q = [0] * 8 + ["pf"] * npf + [1] * 8 + ["pf"] * npf
            steps = km.moe_steps(a, tv, S_W, S_T0, S_T1, VL16, 4 * SLOT)
            for per, stp in enumerate(steps):
                a("s_waitcnt vmcnt(%d) lgkmcnt(0)" % tv.need(per))
                a("s_barrier")
                emit(kv_dma())
                tv.q += [per + 2] * 8 + ["pf"] * npf
                stp()
            a("s_add_u32 %s, %s, %d" % (s(S_J), s(S_J), len(steps)))
            a("s_waitcnt vmcnt(%d)" % tv.need(len(steps)))
            a("s_branch %s" % TL("ld_in"))
            a.label(TL("done"))
        if stamps and fused:
            if not isA:
                for i in range(3, 6): a("s_mov_b64 %s, s[92:93]" % s(88 + 2 * i, 2))
            nst[0] = 6
            a("s_waitcnt vmcnt(0)")
            stamp()
            a("s_waitcnt lgkmcnt(0)")
            a("s_lshl_b32 %s, s2, 3" % s(S_T0))
            a("s_add_u32 %s, %s, %s" % (s(S_T0), s(S_T0), s(S_W)))
            a("s_lshl_b32 %s, %s, 6" % (s(S_T0), s(S_T0)))
            a("s_add_u32 %s, %s, 0x%x" % (s(S_T0), s(S_T0), WS_STAMP))
            a("v_mov_b32 v1, 0")
            for i in range(7):
                a("v_mov_b32 v2, %s" % s(88 + 2 * i))
                a("buffer_store_dword v2, v1, s[12:15], %s offen offset:%d" % (s(S_T0), 4 * i))
        elif stamps:
            if not isA:
                nst[0] = 6 - 1
                for i in range(1, 5):
                    a("s_mov_b64 %s, s[70:71]" % s(70 + 2 * i, 2)); a("s_mov_b64 %s, s[86:87]" % s(86 + 2 * i, 2))
            stamp()
            a("s_waitcnt vmcnt(0)")
            stamp()
            a("s_waitcnt lgkmcnt(0)")
            a("s_lshl_b32 %s, s2, 3" % s(S_T0))
            a("s_add_u32 %s, %s, %s" % (s(S_T0), s(S_T0), s(S_W)))
            a("s_lshl_b32 %s, %s, 6" % (s(S_T0), s(S_T0)))
            a("s_add_u32 %s, %s, 0x%x" % (s(S_T0), s(S_T0), WS_STAMP))
            a("v_mov_b32 v1, 0")
            for i in range(nst[0]):
                a("v_mov_b32 v2, %s" % s(70 + 2 * i))
                a("buffer_store_dword v2, v1, s[12:15], %s offen offset:%d" % (s(S_T0), 4 * i))
                a("v_mov_b32 v2, %s" % s(86 + 2 * i))
                a("buffer_store_dword v2, v1, s[12:15], %s offen offset:%d" % (s(S_T0), 32 + 4 * i))
        a("s_endpgm")
    for lb, p in stubs:
        a.label(lb + "_slow")
        a("s_call_b64 %s, %s" % (s(S_RET, 2), L("slow%d" % p)))
        a("s_branch %s_back" % lb)
    for p in range(2):
        a.label(L("slow%d" % p))
        C, Nx = S[p], S[1 - p]
        a("s_nop 15")
        a("v_max3_f32 %s, %s, %s, %s" % (v(VTMP), v(C), v(C + 1), v(C + 2)))
        for i in range(3, 15, 2):
            a("v_max3_f32 %s, %s, %s, %s" % (v(VTMP), v(VTMP), v(C + i), v(C + i + 1)))
        a("v_max3_f32 %s, %s, %s, 0" % (v(VTMP), v(VTMP), v(C + 15)))
        a("v_mov_b32 %s, %s" % (v(VTM2), v(VTMP)))
        a("s_nop 1")
        a("v_permlane32_swap_b32 %s, %s" % (v(VTMP), v(VTM2)))
        a("s_nop 1")
        a("v_max_f32 %s, %s, %s" % (v(VTMP), v(VTMP), v(VTM2)))
        a("v_exp_f32 %s, -%s" % (v(VTM2), v(VTMP)))
        for i in range(16):
            a("v_sub_f32 %s, %s, %s" % (v(C + i), v(C + i), v(VTMP)))
            a("v_sub_f32 %s, %s, %s" % (v(Nx + i), v(Nx + i), v(VTMP)))
            a("v_sub_f32 %s, %s, %s" % (v(NEGM + i), v(NEGM + i), v(VTMP)))
        for i in range(64):
            a("v_mul_f32 %s, %s, %s" % (v(O + i), v(O + i), v(VTM2)))
        a("v_mul_f32 %s, %s, %s" % (v(VL), v(VL), v(VTM2)))
        a("v_mov_b32 %s, 0" % v(VTS))
        for k in range(8):
            a("v_exp_f32 %s, %s" % (v(T), v(C + 2 * k)))
            a("v_exp_f32 %s, %s" % (v(T + 1), v(C + 2 * k + 1)))
            a("v_add_f32 %s, %s, %s" % (v(VTS), v(VTS), v(T)))
            a("v_add_f32 %s, %s, %s" % (v(VTS), v(VTS), v(T + 1)))
            a("v_cvt_pk_bf16_f32 %s, %s, %s" % (v(P[p] + k), v(T), v(T + 1)))
        a("s_nop 1")
        a("s_setpc_b64 %s" % s(S_RET, 2))
    a.label(L("end"))
    a("s_endpgm")
    return dict(name=name, grid=256, block=512, lds=5 * SLOT, vgpr=256)
```

```python
from asmlib import *
from k2 import VM, f32bits
import km

NMOE = 48
def gen_k3(a, name="k3_kernel", stamps=False, NS=4, exp="", fuse=True):
    L = lambda x: "%s_%s" % (name, x)
    st = Stamps(a, stamps)
    STG = 40960
    NIT = 16
    ACC, BUF = 0, [96, 116, 152]
    VL16, VWOFF, VRC, VRW = 136, [137, 138, 139], [140, 141], [[142, 143, 144], [145, 146, 147]]
    VC0, VW0 = 148, [149, 150, 151]
    S_W, S_MT, S_NT, S_KQ, S_C, S_WS, S_WS2, S_MC, S_MW, S_T0, S_T1, S_T2 = 36, 37, 38, 39, 40, 41, 42, 43, 44, 45, 46, 47
    kernel_begin(a, name)
    a("s_cmp_ge_u32 s2, 192")
    a("s_cbranch_scc1 %s" % L("moe"))
    if "moeonly" in exp: a("s_endpgm")
    a("s_load_dwordx2 s[4:5], s[0:1], %d" % KA_WO)
    a("s_load_dwordx2 s[6:7], s[0:1], %d" % KA_WS)
    a("s_load_dwordx2 s[20:21], s[0:1], %d" % KA_X)
    a("s_load_dwordx4 s[24:27], s[0:1], %d" % KA_OUT)
    st()
    a("v_lshrrev_b32 v1, 6, v0")
    a("v_and_b32 v2, 63, v0")
    a("v_readfirstlane_b32 %s, v1" % s(S_W))
    a("s_and_b32 %s, s2, 3" % s(S_KQ))
    a("s_lshr_b32 %s, s2, 3" % s(S_T1))
    a("s_mul_i32 %s, %s, 86" % (s(S_T2), s(S_T1)))
    a("s_lshr_b32 %s, %s, 8" % (s(S_T2), s(S_T2)))
    a("s_and_b32 %s, s2, 4" % s(S_MT))
    a("s_lshl_b32 %s, %s, 1" % (s(S_MT), s(S_MT)))
    a("s_add_u32 %s, %s, %s" % (s(S_MT), s(S_MT), s(S_T2)))
    a("s_mul_i32 %s, %s, 3" % (s(S_T2), s(S_T2)))
    a("s_sub_u32 %s, %s, %s" % (s(S_NT), s(S_T1), s(S_T2)))
    a("v_lshlrev_b32 %s, 4, v2" % v(VL16))
    for q in range(3):
        a("v_add_u32 v3, %d, v2" % (64 * q))
        a("v_mul_u32_u24 v4, 0xaab, v3")
        a("v_lshrrev_b32 v4, 16, v4")
        a("v_mul_u32_u24 v5, 24, v4")
        a("v_sub_u32 v5, v3, v5")
        a("v_bfe_u32 v6, v4, 1, 1")
        a("v_lshlrev_b32 v6, 2, v6")
        a("v_xor_b32 v5, v5, v6")
        a("v_mul_u32_u24 v4, 1152, v4")
        a("v_lshl_add_u32 v4, v5, 4, v4")
        a("v_subrev_u32 %s, %d, v4" % (v(VWOFF[q]), 1024 * q))
    a("s_lshl_b32 %s, %s, 2" % (s(S_C), s(S_MT)))
    a("s_add_u32 %s, %s, %s" % (s(S_C), s(S_C), s(S_W)))
    a("s_lshl_b32 %s, %s, 18" % (s(S_C), s(S_C)))
    a("s_lshl_b32 %s, %s, 16" % (s(S_T0), s(S_KQ)))
    a("s_add_u32 %s, %s, %s" % (s(S_C), s(S_C), s(S_T0)))
    a("s_add_u32 %s, %s, 0x%x" % (s(S_C), s(S_C), WS_CTX))
    a("s_lshl_b32 %s, %s, 10" % (s(S_WS), s(S_KQ)))
    a("s_lshl_b32 %s, %s, 4" % (s(S_T0), s(S_W)))
    a("s_add_u32 %s, %s, %s" % (s(S_WS), s(S_WS), s(S_T0)))
    a("s_mul_i32 %s, %s, 1152" % (s(S_WS), s(S_WS)))
    a("s_mul_i32 %s, %s, 384" % (s(S_T0), s(S_NT)))
    a("s_add_u32 %s, %s, %s" % (s(S_WS), s(S_WS), s(S_T0)))
    a("s_add_u32 %s, %s, %d" % (s(S_WS2), s(S_WS), 8 * 1152))
    a("s_lshl_b32 %s, %s, 12" % (s(S_MC), s(S_W)))
    a("s_mul_i32 %s, %s, 6144" % (s(S_MW), s(S_W)))
    a("s_add_u32 %s, %s, 16384" % (s(S_MW), s(S_MW)))
    a("s_waitcnt lgkmcnt(0)")
    a("s_mov_b32 s8, s4"); a("s_mov_b32 s9, s5"); a("s_mov_b32 s10, 0x%x" % (4096 * 1152)); a("s_mov_b32 s11, 0x20000")
    a("s_mov_b32 s12, s6"); a("s_mov_b32 s13, s7"); a("s_mov_b32 s14, 0x%x" % WS_BYTES); a("s_mov_b32 s15, 0x20000")
    def dma(it):
        base = (it % NS) * STG
        g = []
        for grp, sw in ((0, S_WS), (1, S_WS2)):
            for q in range(3):
                pre = ["s_add_u32 m0, %s, %d" % (s(S_MW), base + grp * 3072), "s_nop 0"] if q == 0 else []
                post = ["s_add_u32 %s, %s, %d" % (s(sw), s(sw), 64 * 1152)] if q == 2 else []
                g.append(pre + ["buffer_load_dwordx4 %s, s[8:11], %s offen offset:%d lds" % (v(VWOFF[q]), s(sw), q * 1024)] + post)
        for q in range(4):
            pre = ["s_add_u32 m0, %s, %d" % (s(S_MC), base), "s_nop 0"] if q == 0 else []
            post = ["s_add_u32 %s, %s, 4096" % (s(S_C), s(S_C))] if q == 3 else []
            g.append(pre + ["buffer_load_dwordx4 %s, s[12:15], %s offen offset:%d lds" % (v(VL16), s(S_C), q * 1024)] + post)
        return g
    vm = VM()
    for it in range(2):
        for g in dma(it):
            for l in g: a(l)
            vm.issue(it)
    a("s_and_b32 %s, %s, 1" % (s(S_T0), s(S_W)))
    a("s_lshl_b32 %s, %s, 13" % (s(S_T0), s(S_T0)))
    a("v_add_u32 %s, %s, %s" % (v(VRC[0]), s(S_T0), v(VL16)))
    a("v_add_u32 %s, %d, %s" % (v(VRC[1]), 2 * STG, v(VRC[0])))
    a("v_bfe_u32 v4, v2, 2, 2")
    a("v_lshrrev_b32 v5, 5, v2")
    a("v_lshl_add_u32 v5, v5, 2, v4")
    a("v_mul_u32_u24 v5, 384, v5")
    a("v_bfe_u32 v6, v2, 4, 1")
    a("v_lshl_add_u32 v5, v6, 5, v5")
    a("v_and_b32 v6, 3, v2")
    a("v_lshl_add_u32 v5, v6, 3, v5")
    a("v_add_u32 v5, 16384, v5")
    a("v_lshrrev_b32 v4, 1, v4")
    a("s_lshr_b32 %s, %s, 1" % (s(S_T0), s(S_W)))
    a("s_mul_i32 %s, %s, 3" % (s(S_T0), s(S_T0)))
    for mb in range(3):
        a("s_add_u32 %s, %s, %d" % (s(S_T1), s(S_T0), mb))
        a("v_xor_b32 v6, %s, v4" % s(S_T1))
        a("v_lshl_add_u32 %s, v6, 6, v5" % v(VRW[0][mb]))
        a("v_add_u32 %s, %d, %s" % (v(VRW[1][mb]), 2 * STG, v(VRW[0][mb])))
    def reads(gk, buf):
        it, ks = gk // 4, gk % 4
        B = BUF[buf]
        r = []
        wdw, base = (it % NS) // 2, ((it % NS) % 2) * STG
        for mb in range(3):
            for h in range(2):
                r.append("ds_read_b64_tr_b16 %s, %s offset:%d" % (v(B + 8 + 4 * mb + 2 * h, 2), v(VRW[wdw][mb]), base + ks * 6144 + h * 3072))
        for qb in range(2):
            r.append("ds_read_b128 %s, %s offset:%d" % (v(B + 4 * qb, 4), v(VRC[wdw]), base + qb * 4096 + ks * 1024))
        return [r[0], r[1], r[6], r[7], r[2], r[3], r[4], r[5]]
    def mfmas(buf, first):
        B = BUF[buf]
        m = []
        for mb in range(3):
            for qb in range(2):
                d = ACC + (mb * 2 + qb) * 16
                m.append("v_mfma_f32_32x32x16_bf16 %s, %s, %s, %s" % (v(d, 16), v(B + 8 + 4 * mb, 4), v(B + 4 * qb, 4), "0" if first else v(d, 16)))
        return m
    st()
    a("s_waitcnt vmcnt(%d)" % vm.need(0))
    a("s_barrier")
    st()
    for l in reads(0, 0) + reads(1, 1): a(l)
    NK = NIT * 4
    pend = [(sg, g) for sg in range(2, NS) for g in dma(sg)]
    for gk in range(NK):
        it, ks = gk // 4, gk % 4
        a("s_waitcnt lgkmcnt(%d)" % (8 if gk + 1 < NK else 0))
        mm = mfmas(gk % 3, gk == 0)
        rd = reads(gk + 2, (gk + 2) % 3) if gk + 2 < NK else []
        for i in range(6):
            a(mm[i])
            if ks == 2 and i == 0 and it + 1 < NIT:
                a("s_waitcnt vmcnt(%d) lgkmcnt(0)" % vm.need(it + 1))
                a("s_barrier")
                if it + NS < NIT: pend += [(it + NS, g) for g in dma(it + NS)]
            for l in rd[2 * i:2 * i + 2]: a(l)
            if pend and (i in (1, 4, 5) or it == 0):
                sg, g = pend.pop(0)
                for l in g: a(l)
                vm.issue(sg)
    assert not pend
    st()
    a("s_lshl_b32 %s, %s, 6" % (s(S_T0), s(S_KQ)))
    a("s_lshl_b32 %s, %s, 2" % (s(S_T1), s(S_MT)))
    a("s_add_u32 %s, %s, %s" % (s(S_T0), s(S_T0), s(S_T1)))
    a("s_and_b32 %s, %s, 1" % (s(S_T2), s(S_W)))
    a("s_lshl_b32 %s, %s, 1" % (s(S_T2), s(S_T2)))
    a("s_add_u32 %s, %s, %s" % (s(S_T0), s(S_T0), s(S_T2)))
    a("s_mul_i32 %s, %s, 18" % (s(S_T0), s(S_T0)))
    a("s_mul_i32 %s, %s, 6" % (s(S_T1), s(S_NT)))
    a("s_add_u32 %s, %s, %s" % (s(S_T0), s(S_T0), s(S_T1)))
    a("s_lshr_b32 %s, %s, 1" % (s(S_T1), s(S_W)))
    a("s_mul_i32 %s, %s, 3" % (s(S_T1), s(S_T1)))
    a("s_add_u32 %s, %s, %s" % (s(S_T0), s(S_T0), s(S_T1)))
    a("s_lshl_b32 %s, %s, 11" % (s(S_T0), s(S_T0)))
    a("s_add_u32 %s, %s, 0x%x" % (s(S_T0), s(S_T0), WS_PART))
    a("s_lshl_b32 %s, %s, 12" % (s(S_T1), s(S_T1)))
    a("v_add_u32 v100, %s, %s" % (s(S_T1), v(VL16)))
    a("s_sub_u32 %s, %s, %s" % (s(S_T2), s(S_KQ), s(S_T2)))
    for qb in range(2):
        a("s_cmp_eq_u32 %s, %d" % (s(S_T2), qb))
        a("s_cbranch_scc1 %s" % L("own%d" % qb))
        for mb in range(3):
            d = ACC + (mb * 2 + qb) * 16
            o = 104 + 8 * mb
            for i in range(8): a("v_cvt_pk_bf16_f32 %s, %s, %s" % (v(o + i), v(d + 2 * i), v(d + 2 * i + 1)))
            a("s_add_u32 %s, %s, %d" % (s(S_T1), s(S_T0), (qb * 18 + mb) * 2048))
            for sx in range(2):
                a("buffer_store_dwordx4 %s, %s, s[12:15], %s offen offset:%d sc1" % (v(o + 4 * sx, 4), v(VL16), s(S_T1), sx * 1024))
        a("s_branch %s" % L("nx%d" % qb))
        a.label(L("own%d" % qb))
        for mb in range(3):
            d = ACC + (mb * 2 + qb) * 16
            for r4 in range(4): a("ds_write_b128 v100, %s offset:%d" % (v(d + 4 * r4, 4), mb * 4096 + r4 * 1024))
        a.label(L("nx%d" % qb))
    st()
    final_stage(a, L, st, S_W, S_MT, S_NT, S_KQ, VL16)
    if stamps:
        a("s_lshl_b32 %s, s2, 2" % s(S_T0)); a("s_add_u32 %s, %s, %s" % (s(S_T0), s(S_T0), s(S_W)))
    st.dump(12, S_T0, S_T1)
    a("s_endpgm")
    a.label(L("moe"))
    a("s_sub_u32 s2, s2, 192")
    km.yreduce_body(a, L, NMOE)
    return dict(name=name, grid=192 + (0 if "nomoe" in exp else NMOE), block=256, lds=NS * STG, vgpr=192)

def poll(a, L, tag, srd_dbg, s_off, target, vt, vz):
    lb = L("poll_" + tag)
    a("s_mov_b32 s69, 0x40000")
    a.label(lb)
    a("buffer_load_dword %s, %s, %s, %s sc1" % (v(vt), v(vz), s(srd_dbg, 4), s_off))
    a("s_waitcnt vmcnt(0)")
    a("v_readfirstlane_b32 s68, %s" % v(vt))
    a("s_sub_u32 s69, s69, 1")
    a("s_cbranch_scc1 %s_ok" % lb)
    a("s_cmp_ge_u32 s68, %d" % target)
    a("s_cbranch_scc1 %s_ok" % lb)
    a("s_sleep 2")
    a("s_branch %s" % lb)
    a.label(lb + "_ok")

def final_stage(a, L, st, S_W, S_MT, S_NT, S_KQ, VL16):
    S_T0, S_T1, S_T2, S_QB, S_CTR = 45, 46, 47, 40, 41
    S_RO = [42, 43, 44]
    S_PO = [33, 34, 35]
    VRO, VZ, VT, VQ, VH, VLN = 96, 97, 98, 99, 100, 101
    YA = 160
    RES, PB = 104, 0
    a("s_mov_b32 s16, s20"); a("s_mov_b32 s17, s21"); a("s_mov_b32 s18, 0x%x" % (2048 * 1152)); a("s_mov_b32 s19, 0x20000")
    a("s_mov_b32 s28, s26"); a("s_mov_b32 s29, s27"); a("s_mov_b32 s30, 256"); a("s_mov_b32 s31, 0x20000")
    a("s_mov_b32 s26, 0x%x" % (2048 * 1152)); a("s_mov_b32 s27, 0x20000")
    a("s_add_u32 s64, s6, 0x%x" % WS_SEL)
    a("s_addc_u32 s65, s7, 0")
    a("s_load_dwordx8 s[48:55], s[64:65], 0")
    a("s_lshl_b32 %s, %s, 2" % (s(S_QB), s(S_MT)))
    a("s_add_u32 %s, %s, %s" % (s(S_QB), s(S_QB), s(S_KQ)))
    a("s_mul_i32 %s, %s, 3" % (s(S_CTR), s(S_MT)))
    a("s_add_u32 %s, %s, %s" % (s(S_CTR), s(S_CTR), s(S_NT)))
    a("s_lshl_b32 %s, %s, 2" % (s(S_CTR), s(S_CTR)))
    a("v_lshrrev_b32 %s, 4, %s" % (v(VLN), v(VL16)))
    a("v_and_b32 %s, 31, %s" % (v(VQ), v(VLN)))
    a("v_lshrrev_b32 %s, 5, %s" % (v(VH), v(VLN)))
    a("v_mul_u32_u24 %s, 1152, %s" % (v(VRO), v(VQ)))
    a("v_lshl_add_u32 %s, %s, 4, %s" % (v(VRO), v(VH), v(VRO)))
    a("v_mov_b32 %s, 0" % v(VZ))
    a("v_mov_b32 %s, 1" % v(VT))
    for i in range(24): a("v_mov_b32 %s, 0" % v(YA + i))
    for t in range(3):
        a("s_mul_i32 %s, %s, 3" % (s(S_T0), s(S_W)))
        a("s_mul_i32 %s, %s, 12" % (s(S_T1), s(S_NT)))
        a("s_add_u32 %s, %s, %s" % (s(S_T0), s(S_T0), s(S_T1)))
        a("s_add_u32 %s, %s, %d" % (s(S_T0), s(S_T0), t))
        a("s_mul_i32 %s, %s, %d" % (s(S_T1), s(S_QB), 32 * 1152))
        a("s_lshl_b32 %s, %s, 5" % (s(S_T2), s(S_T0)))
        a("s_add_u32 %s, %s, %s" % (s(S_RO[t]), s(S_T1), s(S_T2)))
        a("s_mul_i32 %s, %s, 36" % (s(S_T1), s(S_QB)))
        a("s_add_u32 %s, %s, %s" % (s(S_T1), s(S_T1), s(S_T0)))
        a("s_lshl_b32 %s, %s, 10" % (s(S_T1), s(S_T1)))
        a("s_add_u32 %s, %s, 0x%x" % (s(S_PO[t]), s(S_T1), WS_PART))
    for d in range(1, 4):
        a("s_add_u32 %s, %s, %d" % (s(55 + d), s(S_KQ), d))
        a("s_and_b32 %s, %s, 3" % (s(55 + d), s(55 + d)))
        a("s_mul_i32 %s, %s, %d" % (s(55 + d), s(55 + d), 64 * 18 * 2048))
    a("s_mul_i32 %s, %s, 6144" % (s(S_T0), s(S_W)))
    a("v_add_u32 v102, %s, %s" % (s(S_T0), v(VL16)))
    a("s_waitcnt vmcnt(0) lgkmcnt(0)")
    a("s_barrier")
    a("s_cmp_eq_u32 %s, 0" % s(S_W))
    a("s_cbranch_scc0 %s" % L("nosig"))
    a("s_mov_b64 exec, 1")
    a("buffer_atomic_add %s, %s, s[28:31], %s offen sc1" % (v(VT), v(VZ), s(S_CTR)))
    a("s_mov_b64 exec, -1")
    a.label(L("nosig"))
    for t in range(3):
        a("buffer_load_dwordx4 %s, %s, s[16:19], %s offen" % (v(RES + 8 * t, 4), v(VRO), s(S_RO[t])))
        a("s_add_u32 %s, %s, 0x%x" % (s(S_T0), s(S_RO[t]), WS_XNR))
        a("buffer_load_dwordx4 %s, %s, s[12:15], %s offen" % (v(RES + 8 * t + 4, 4), v(VRO), s(S_T0)))
    for t in range(3):
        for r in range(2): a("ds_read_b128 %s, v102 offset:%d" % (v(PB + 32 * t + 4 * r, 4), t * 2048 + r * 1024))
    st()
    poll(a, L, "t", 28, s(S_CTR) + " offen", 4, VT, VZ)
    st()
    for t in range(3):
        for d in range(1, 4):
            a("s_add_u32 %s, %s, %s" % (s(S_T0), s(S_PO[t]), s(55 + d)))
            a("buffer_load_dwordx4 %s, %s, s[12:15], %s offen sc1" % (v(PB + 32 * t + 8 + 4 * (d - 1), 4), v(VL16), s(S_T0)))
    a("s_waitcnt lgkmcnt(0)")
    a("s_lshl_b32 %s, %s, 5" % (s(S_T2), s(S_QB)))
    for j in range(8):
        a("s_sub_u32 %s, %s, %s" % (s(S_T0), s(48 + j), s(S_T2)))
        a("s_cmp_lt_u32 %s, 32" % s(S_T0))
        a("s_cbranch_scc0 %s" % L("m%d" % j))
        a("s_mov_b32 s64, 0x%x" % (WS_YF + j * 2304))
        a("s_call_b64 s[66:67], %s" % L("addy"))
        a.label(L("m%d" % j))
    for t in range(3):
        b = PB + 32 * t
        a("s_waitcnt vmcnt(%d)" % (3 * (2 - t)))
        for d in range(3):
            for i in range(4):
                a("v_lshlrev_b32 v128, 16, %s" % v(b + 8 + 4 * d + i))
                a("v_and_b32 v129, 0xffff0000, %s" % v(b + 8 + 4 * d + i))
                a("v_add_f32 %s, %s, v128" % (v(b + 2 * i), v(b + 2 * i)))
                a("v_add_f32 %s, %s, v129" % (v(b + 2 * i + 1), v(b + 2 * i + 1)))
    for t in range(3):
        for i in range(8): a("v_add_f32 %s, %s, %s" % (v(PB + 32 * t + i), v(PB + 32 * t + i), v(YA + 8 * t + i)))
    a("s_nop 1")
    for t in range(3):
        b = PB + 32 * t
        for i in range(4): a("v_permlane32_swap_b32 %s, %s" % (v(b + i), v(b + 4 + i)))
    for t in range(3):
        b = PB + 32 * t
        for i in range(4):
            for src in (RES + 8 * t, RES + 8 * t + 4):
                a("v_lshlrev_b32 v128, 16, %s" % v(src + i))
                a("v_and_b32 v129, 0xffff0000, %s" % v(src + i))
                a("v_add_f32 %s, %s, v128" % (v(b + 2 * i), v(b + 2 * i)))
                a("v_add_f32 %s, %s, v129" % (v(b + 2 * i + 1), v(b + 2 * i + 1)))
        for i in range(4): a("v_cvt_pk_bf16_f32 %s, %s, %s" % (v(b + 8 + i), v(b + 2 * i), v(b + 2 * i + 1)))
        a("buffer_store_dwordx4 %s, %s, s[24:27], %s offen" % (v(b + 8, 4), v(VRO), s(S_RO[t])))
    a("s_branch %s" % L("fin"))
    a.label(L("addy"))
    poll(a, L, "y", 28, "0 offen offset:196", NMOE, VT, VZ)
    a("v_lshlrev_b32 v132, 4, %s" % v(VH))
    a("v_mov_b32 v133, 0x40000000")
    a("v_cmp_eq_u32 vcc, %s, %s" % (s(S_T0), v(VQ)))
    a("s_mul_i32 %s, %s, 192" % (s(S_T1), s(S_W)))
    a("s_mul_i32 s68, %s, 768" % s(S_NT))
    a("v_cndmask_b32 v132, v133, v132, vcc")
    a("s_add_u32 s68, s68, %s" % s(S_T1))
    a("s_add_u32 s68, s68, s64")
    for i in range(6):
        a("buffer_load_dwordx4 %s, v132, s[12:15], s68 offen offset:%d sc1" % (v(136 + 4 * i, 4), 32 * i))
    a("s_waitcnt vmcnt(0)")
    for i in range(24):
        a("v_add_f32 %s, %s, %s" % (v(YA + i), v(YA + i), v(136 + i)))
    a("s_setpc_b64 s[66:67]")
    a.label(L("fin"))

def gen_k4(a, name="k4_kernel"):
    L = lambda x: "%s_%s" % (name, x)
    S_W, S_B, S_QB, S_MB, S_T0, S_T1, S_T2 = 36, 37, 38, 39, 40, 41, 42
    kernel_begin(a, name)
    a("s_cmp_ge_u32 s2, 288")
    a("s_cbranch_scc1 %s" % L("end"))
    a("s_load_dwordx2 s[4:5], s[0:1], %d" % KA_X)
    a("s_load_dwordx2 s[6:7], s[0:1], %d" % KA_WS)
    a("s_load_dwordx2 s[20:21], s[0:1], %d" % KA_OUT)
    a("v_lshrrev_b32 v1, 6, v0")
    a("v_and_b32 v2, 63, v0")
    a("v_readfirstlane_b32 %s, v1" % s(S_W))
    a("s_lshl_b32 %s, s2, 2" % s(S_B))
    a("v_lshlrev_b32 v3, 4, v2")
    a("s_add_u32 %s, %s, %s" % (s(S_B), s(S_B), s(S_W)))
    a("s_mul_i32 %s, %s, 3641" % (s(S_QB), s(S_B)))
    a("s_lshr_b32 %s, %s, 16" % (s(S_QB), s(S_QB)))
    a("s_mul_i32 %s, %s, 18" % (s(S_T0), s(S_QB)))
    a("s_sub_u32 %s, %s, %s" % (s(S_MB), s(S_B), s(S_T0)))
    a("s_lshl_b32 %s, %s, 12" % (s(S_T0), s(S_B)))
    a("s_add_u32 %s, %s, 0x%x" % (s(S_T0), s(S_T0), WS_PART))
    a("v_and_b32 v4, 31, v2")
    a("v_mul_u32_u24 v5, 1152, v4")
    a("v_lshrrev_b32 v6, 5, v2")
    a("v_lshl_add_u32 v5, v6, 4, v5")
    a("s_mul_i32 %s, %s, %d" % (s(S_T1), s(S_QB), 32 * 1152))
    a("s_lshl_b32 %s, %s, 6" % (s(S_T2), s(S_MB)))
    a("s_add_u32 %s, %s, %s" % (s(S_T1), s(S_T1), s(S_T2)))
    a("s_waitcnt lgkmcnt(0)")
    a("s_mov_b32 s8, s4"); a("s_mov_b32 s9, s5"); a("s_mov_b32 s10, 0x%x" % (2048 * 1152)); a("s_mov_b32 s11, 0x20000")
    a("s_mov_b32 s12, s6"); a("s_mov_b32 s13, s7"); a("s_mov_b32 s14, 0x%x" % WS_BYTES); a("s_mov_b32 s15, 0x20000")
    a("s_mov_b32 s16, s20"); a("s_mov_b32 s17, s21"); a("s_mov_b32 s18, 0x%x" % (2048 * 1152)); a("s_mov_b32 s19, 0x20000")
    for kq in range(4):
        for r4 in range(4):
            a("buffer_load_dwordx4 %s, v3, s[12:15], %s offen offset:%d" % (v(16 + 16 * kq + 4 * r4, 4), s(S_T0), r4 * 1024))
        a("s_add_u32 %s, %s, %d" % (s(S_T0), s(S_T0), 64 * 18 * 4096))
    a("s_add_u32 %s, %s, 0x%x" % (s(S_T2), s(S_T1), WS_XNR))
    for p in range(2):
        a("buffer_load_dwordx4 %s, v5, s[8:11], %s offen offset:%d" % (v(80 + 4 * p, 4), s(S_T1), 32 * p))
        a("buffer_load_dwordx4 %s, v5, s[12:15], %s offen offset:%d" % (v(88 + 4 * p, 4), s(S_T2), 32 * p))
    a("s_add_u32 s28, s6, 0x%x" % WS_SEL)
    a("s_addc_u32 s29, s7, 0")
    a("s_load_dwordx16 s[48:63], s[28:29], 0")
    a("s_waitcnt vmcnt(4)")
    for i in range(16):
        a("v_add_f32 %s, %s, %s" % (v(16 + i), v(16 + i), v(32 + i)))
        a("v_add_f32 %s, %s, %s" % (v(48 + i), v(48 + i), v(64 + i)))
    for i in range(16): a("v_add_f32 %s, %s, %s" % (v(16 + i), v(16 + i), v(48 + i)))
    a("s_waitcnt lgkmcnt(0)")
    a("s_lshl_b32 %s, %s, 5" % (s(S_T2), s(S_QB)))
    for j in range(8):
        a("s_sub_u32 %s, %s, %s" % (s(S_T0), s(48 + j), s(S_T2)))
        a("s_cmp_lt_u32 %s, 32" % s(S_T0))
        a("s_cbranch_scc0 %s" % L("m%d" % j))
        a("s_mov_b32 s64, %d" % (j * 2304))
        a("s_mov_b32 s65, %s" % s(56 + j))
        a("s_call_b64 s[66:67], %s" % L("moe"))
        a.label(L("m%d" % j))
    for p in range(2):
        for i in range(4):
            a("v_permlane32_swap_b32 %s, %s" % (v(16 + 8 * p + i), v(16 + 8 * p + 4 + i)))
    a("s_waitcnt vmcnt(0)")
    for i in range(8):
        for src in (80, 88):
            a("v_lshlrev_b32 v8, 16, %s" % v(src + i))
            a("v_and_b32 v9, 0xffff0000, %s" % v(src + i))
            a("v_add_f32 %s, %s, v8" % (v(16 + 2 * i), v(16 + 2 * i)))
            a("v_add_f32 %s, %s, v9" % (v(16 + 2 * i + 1), v(16 + 2 * i + 1)))
    for i in range(8): a("v_cvt_pk_bf16_f32 %s, %s, %s" % (v(32 + i), v(16 + 2 * i), v(16 + 2 * i + 1)))
    for p in range(2):
        a("buffer_store_dwordx4 %s, v5, s[16:19], %s offen offset:%d" % (v(32 + 4 * p, 4), s(S_T1), 32 * p))
    a.label(L("end"))
    a("s_endpgm")
    a.label(L("moe"))
    a("v_lshrrev_b32 v8, 3, v2")
    a("v_mul_u32_u24 v8, %d, v8" % (8 * 2304))
    a("v_and_b32 v9, 7, v2")
    a("v_lshl_add_u32 v8, v9, 4, v8")
    a("s_lshl_b32 s68, %s, 7" % s(S_MB))
    a("s_add_u32 s68, s68, s64")
    a("s_add_u32 s68, s68, 0x%x" % WS_YP)
    for it in range(NMOE // 8):
        a("buffer_load_dwordx4 %s, v8, s[12:15], s68 offen" % v(96 + 4 * it, 4))
        a("s_add_u32 s68, s68, %d" % (8 * 8 * 2304))
    a("s_waitcnt vmcnt(0)")
    for it in range(1, NMOE // 8):
        for i in range(4): a("v_add_f32 %s, %s, %s" % (v(96 + i), v(96 + i), v(96 + 4 * it + i)))
    for m in (8, 16, 32):
        a("v_xor_b32 v10, %d, v2" % m)
        a("v_lshlrev_b32 v10, 2, v10")
        for i in range(4): a("ds_bpermute_b32 %s, v10, %s" % (v(100 + i), v(96 + i)))
        a("s_waitcnt lgkmcnt(0)")
        for i in range(4): a("v_add_f32 %s, %s, %s" % (v(96 + i), v(96 + i), v(100 + i)))
    a("v_cmp_eq_u32 vcc, %s, v4" % s(S_T0))
    a("v_mov_b32 v11, s65")
    a("v_lshlrev_b32 v10, 2, v6")
    a("v_cndmask_b32 v11, 0, v11, vcc")
    for r4 in range(4):
        a("v_add_u32 v12, %d, v10" % (8 * r4))
        for i in range(4): a("ds_bpermute_b32 %s, v12, %s" % (v(100 + i), v(96 + i)))
        a("s_waitcnt lgkmcnt(0)")
        for i in range(4): a("v_fmac_f32 %s, %s, v11" % (v(16 + 4 * r4 + i), v(100 + i)))
    a("s_nop 1")
    a("s_setpc_b64 s[66:67]")
    return dict(name=name, grid=288, block=256, lds=0, vgpr=128)
```

```python
from asmlib import *
from k2 import f32bits
import math

def ag(i, n=1):
    return "a%d" % i if n == 1 else "a[%d:%d]" % (i, i + n - 1)

def moe_body(a, L0, NWG=48, fuse=False):
    L = lambda x: L0("moe_" + x)
    S_W, S_T0, S_T1, S_G, S_D, S_L = 36, 37, 38, 41, 42, 43
    GU = [0, 73728]; UP = 36864
    EX, HA = 110592, 147456
    X, ACC, WFR, TMP, H, Y = 32, 72, 168, 184, 232, 72
    a("s_cmp_ge_u32 s2, %d" % NWG)
    a("s_cbranch_scc1 %s" % L("end"))
    a("s_load_dwordx4 s[4:7], s[0:1], %d" % KA_WG)
    a("s_load_dwordx2 s[8:9], s[0:1], %d" % KA_WD)
    a("s_load_dwordx2 s[10:11], s[0:1], %d" % KA_WS)
    a("s_load_dwordx2 s[28:29], s[0:1], %d" % KA_DBG)
    a("v_lshrrev_b32 v1, 6, v0")
    a("v_and_b32 v2, 63, v0")
    a("v_readfirstlane_b32 %s, v1" % s(S_W))
    a("v_lshlrev_b32 v3, 4, v2")
    a("v_lshrrev_b32 v4, 2, v2")
    a("v_mul_u32_u24 v4, 9216, v4")
    a("v_and_b32 v5, 3, v2")
    a("v_lshl_add_u32 v4, v5, 4, v4")
    a("v_and_b32 v11, 7, v2")
    a("v_lshlrev_b32 v12, 2, v11")
    a("s_mul_i32 %s, %s, %d" % (s(S_G), s(S_W), 144 * 9216))
    a("s_mul_i32 %s, s2, 192" % s(S_T1))
    a("s_add_u32 %s, %s, %s" % (s(S_G), s(S_G), s(S_T1)))
    a("s_mul_i32 %s, %s, 9216" % (s(S_L), s(S_W)))
    a("s_mul_i32 %s, s2, %d" % (s(S_D), 110592))
    a("s_mul_i32 %s, %s, %d" % (s(S_T1), s(S_W), 27648))
    a("s_add_u32 %s, %s, %s" % (s(S_D), s(S_D), s(S_T1)))
    a("s_mov_b32 %s, 0x%x" % (s(S_T0), WS_SEL))
    a("s_waitcnt lgkmcnt(0)")
    srd(a, 24, 10, WS_BYTES)
    a("buffer_load_dword v13, v12, s[24:27], %s offen" % s(S_T0))
    srd(a, 12, 4, 576 * 9216); srd(a, 16, 6, 576 * 9216); srd(a, 20, 8, 4608 * 1152)
    def dma_gu(r):
        for q in range(9):
            a("s_add_u32 %s, %s, %d" % (s(S_T0), s(S_G), q * 16 * 9216 + 64 * r))
            for lb, sr in ((0, 12), (UP, 16)):
                a("s_add_u32 m0, %s, %d" % (s(S_L), GU[r % 2] + lb + q * 1024))
                a("s_nop 0")
                a("buffer_load_dwordx4 v4, %s, %s offen lds" % (s(sr, 4), s(S_T0)))
    dma_gu(0)
    a("s_waitcnt vmcnt(18)")
    a("v_lshrrev_b32 v14, 5, v13")
    a("v_mul_u32_u24 v14, 36864, v14")
    a("v_and_b32 v15, 31, v13")
    a("v_lshl_add_u32 v14, v15, 4, v14")
    a("v_lshrrev_b32 v15, 5, v2")
    a("v_lshl_add_u32 v14, v15, 9, v14")
    a("s_add_u32 %s, %s, 0x%x" % (s(S_T0), s(S_L), WS_XNF))
    for k in range(9):
        a("buffer_load_dwordx4 %s, v14, s[24:27], %s offen" % (v(X + 4 * k, 4), s(S_T0)))
        a("s_add_u32 %s, %s, 1024" % (s(S_T0), s(S_T0)))
    dma_gu(1)
    for q in range(27):
        if q % 4 == 0: a("s_add_u32 %s, %s, %d" % (s(S_T0), s(S_D), q * 1024))
        a("buffer_load_dwordx4 %s, v3, s[20:23], %s offen offset:%d" % (ag(4 * q, 4), s(S_T0), (q % 4) * 1024))
    a("v_bfe_u32 v16, v2, 2, 2")
    a("v_lshl_add_u32 v17, v15, 3, v16")
    a("v_lshlrev_b32 v17, 6, v17")
    a("v_bfe_u32 v18, v2, 4, 1")
    a("v_lshlrev_b32 v18, 5, v18")
    a("v_and_b32 v19, 3, v2")
    a("v_lshl_add_u32 v18, v19, 3, v18")
    a("v_add3_u32 v17, v17, v18, %s" % s(S_L))
    a("v_add_u32 v22, %d, v17" % GU[1])
    a("v_lshl_add_u32 v19, v15, 2, v16")
    a("v_mul_u32_u24 v19, 1152, v19")
    a("s_lshl_b32 %s, %s, 6" % (s(S_T0), s(S_W)))
    a("v_add3_u32 v19, v19, v18, %s" % s(S_T0))
    a("v_add_u32 v23, %d, v19" % (48 * 1152))
    a("v_lshl_add_u32 v20, v15, 3, v11")
    a("v_lshlrev_b32 v20, 4, v20")
    a("s_add_u32 %s, %s, %d" % (s(S_T0), s(S_L), EX))
    a("v_add_u32 v21, %s, v20" % s(S_T0))
    a("s_mul_i32 %s, %s, 768" % (s(S_T1), s(S_W)))
    a("s_add_u32 %s, %s, %d" % (s(S_T1), s(S_T1), EX))
    a("v_add_u32 v24, %s, v20" % s(S_T1))
    a("s_mul_i32 %s, %s, 27648" % (s(S_T1), s(S_W)))
    a("v_add_u32 v25, %s, v3" % s(S_T1))
    def rnd(r, nvm):
        a("s_waitcnt vmcnt(%d)" % nvm)
        base = "v17" if r % 2 == 0 else "v22"
        G, U = ACC + 16 * r, ACC + 48 + 16 * r
        for k in range(10):
            if k < 9:
                b = WFR + 8 * (k % 2)
                for m, lb in enumerate((0, UP)):
                    for h in range(2):
                        a("ds_read_b64_tr_b16 %s, %s offset:%d" % (v(b + 4 * m + 2 * h, 2), base, lb + k * 1024 + h * 256))
            if k:
                a("s_waitcnt lgkmcnt(%d)" % (4 if k < 9 else 0))
                b2 = WFR + 8 * ((k - 1) % 2)
                for m, d in enumerate((G, U)):
                    a("v_mfma_f32_32x32x16_bf16 %s, %s, %s, %s" % (v(d, 16), v(b2 + 4 * m, 4), v(X + 4 * (k - 1), 4), "0" if k == 1 else v(d, 16)))
    rnd(0, 45)
    dma_gu(2)
    rnd(1, 45)
    rnd(2, 0)
    a("v_and_b32 v26, 31, v2")
    a("v_cmp_gt_u32 vcc, 8, v26")
    a("s_nop 7")
    a("s_and_saveexec_b64 s[44:45], vcc")
    for q in range(24): a("ds_write_b128 v21, %s offset:%d" % (v(ACC + 4 * q, 4), q * 256))
    a("s_mov_b64 exec, s[44:45]")
    a("s_waitcnt lgkmcnt(0)")
    a("s_barrier")
    for w in range(4):
        for gu in range(2):
            for j in range(3):
                a("ds_read_b128 %s, v24 offset:%d" % (v(ACC + 24 * w + 12 * gu + 4 * j, 4), w * 9216 + gu * 3072 + j * 256))
        if w == 1: a("s_waitcnt lgkmcnt(3)")
    for q in range(27):
        if q == 0: a("s_waitcnt lgkmcnt(4)")
        if q in (8, 14, 20): a("s_waitcnt lgkmcnt(8)")
        a("ds_write_b128 v25, %s offset:%d" % (ag(4 * q, 4), q * 1024))
        if q >= 8 and q < 20:
            for i in range(6):
                e = (q - 8) * 6 + i
                w_, r_ = e // 24 + 1, e % 24
                a("v_add_f32 %s, %s, %s" % (v(ACC + r_), v(ACC + r_), v(ACC + 24 * w_ + r_)))
    G, U = ACC, ACC + 12
    for i in range(6):
        a("v_cvt_pk_bf16_f32 v26, %s, %s" % (v(G + 2 * i), v(G + 2 * i + 1)))
        a("v_cvt_pk_bf16_f32 v27, %s, %s" % (v(U + 2 * i), v(U + 2 * i + 1)))
        a("v_lshlrev_b32 v28, 16, v26")
        a("v_and_b32 v29, 0xffff0000, v26")
        a("v_mul_f32 v30, 0x%08x, v28" % f32bits(-math.log2(math.e)))
        a("v_mul_f32 v31, 0x%08x, v29" % f32bits(-math.log2(math.e)))
        a("v_exp_f32 v30, v30")
        a("v_exp_f32 v31, v31")
        a("v_add_f32 v30, 1.0, v30")
        a("v_add_f32 v31, 1.0, v31")
        a("v_rcp_f32 v30, v30")
        a("v_rcp_f32 v31, v31")
        a("v_mul_f32 v28, v28, v30")
        a("v_mul_f32 v29, v29, v31")
        a("v_cvt_pk_bf16_f32 v26, v28, v29")
        a("v_lshlrev_b32 v30, 16, v27")
        a("v_and_b32 v31, 0xffff0000, v27")
        a("v_lshlrev_b32 v28, 16, v26")
        a("v_and_b32 v29, 0xffff0000, v26")
        a("v_mul_f32 v28, v28, v30")
        a("v_mul_f32 v29, v29, v31")
        a("v_cvt_pk_bf16_f32 %s, v28, v29" % v(TMP + i))
    a("s_mul_i32 %s, %s, 3" % (s(S_T0), s(S_W)))
    for j in range(3):
        a("s_add_u32 %s, %s, %d" % (s(S_T1), s(S_T0), j))
        a("s_lshr_b32 s46, %s, 1" % s(S_T1))
        a("s_lshl_b32 s46, s46, 8")
        a("s_and_b32 %s, %s, 1" % (s(S_T1), s(S_T1)))
        a("s_lshl_b32 %s, %s, 3" % (s(S_T1), s(S_T1)))
        a("s_add_u32 s46, s46, %s" % s(S_T1))
        a("s_add_u32 s46, s46, %d" % HA)
        a("v_add_u32 v26, s46, v20")
        a("ds_write_b64 v26, %s" % v(TMP + 2 * j, 2))
    a("v_add_u32 v26, %d, v20" % HA)
    a("s_waitcnt lgkmcnt(0)")
    a("s_barrier")
    for k in range(6): a("ds_read_b128 %s, v26 offset:%d" % (v(H + 4 * k, 4), k * 256))
    seq = [(j, k) for j in range(5) for k in range(6)]
    def rdw(n):
        j, k = seq[n]
        b = WFR + 4 * (n % 4)
        for h in range(2):
            a("ds_read_b64_tr_b16 %s, %s offset:%d" % (v(b + 2 * h, 2), "v19" if k < 3 else "v23", j * 256 + ((k % 3) * 16 + h * 8) * 1152))
    for n in range(3): rdw(n)
    for n, (j, k) in enumerate(seq):
        a("s_waitcnt lgkmcnt(%d)" % (2 * min(2, len(seq) - 1 - n)))
        d = Y + 16 * j
        a("v_mfma_f32_32x32x16_bf16 %s, %s, %s, %s" % (v(d, 16), v(WFR + 4 * (n % 4), 4), v(H + 4 * k, 4), "0" if k == 0 else v(d, 16)))
        if n + 3 < len(seq): rdw(n + 3)
    a("v_and_b32 v24, 31, v2")
    a("v_mul_u32_u24 v25, 2304, v24")
    a("v_lshl_add_u32 v25, v15, 4, v25")
    a("v_mov_b32 v26, 0x40000000")
    a("v_cmp_gt_u32 vcc, 8, v24")
    a("s_mul_i32 %s, s2, %d" % (s(S_T0), 8 * 2304))
    a("s_lshl_b32 %s, %s, 7" % (s(S_T1), s(S_W)))
    a("v_cndmask_b32 v25, v26, v25, vcc")
    a("s_add_u32 %s, %s, %s" % (s(S_T0), s(S_T0), s(S_T1)))
    a("s_add_u32 %s, %s, 0x%x" % (s(S_T0), s(S_T0), WS_YP))
    a("s_nop 7")
    for j in range(5):
        if j == 4:
            a("s_cmp_lt_u32 %s, 2" % s(S_W))
            a("s_cbranch_scc0 %s" % L("sig"))
        for r4 in range(4):
            a("buffer_store_dwordx4 %s, v25, s[24:27], %s offen offset:%d%s" % (v(Y + 16 * j + 4 * r4, 4), s(S_T0), j * 512 + r4 * 32, " sc1" if fuse else ""))
    a.label(L("sig"))
    if fuse:
        a("s_mov_b32 s30, 256"); a("s_mov_b32 s31, 0x20000")
        a("v_mov_b32 v4, 0"); a("v_mov_b32 v5, 1")
        a("s_waitcnt vmcnt(0)")
        a("s_barrier")
        a("s_cmp_eq_u32 %s, 0" % s(S_W))
        a("s_cbranch_scc0 %s" % L("end"))
        a("s_mov_b64 exec, 1")
        a("buffer_atomic_add v5, v4, s[28:31], 0 offen offset:192 sc1")
        a("s_mov_b64 exec, -1")
        import k3
        a("s_mul_i32 %s, s2, 43" % s(S_T0))
        a("s_lshr_b32 %s, %s, 8" % (s(S_T0), s(S_T0)))
        a("s_lshl_b32 %s, %s, 2" % (s(S_T0), s(S_T0)))
        a("s_add_u32 %s, %s, 0x%x" % (s(S_T0), s(S_T0), WS_SEL + 32))
        a("buffer_load_dword v10, v4, s[24:27], %s offen" % s(S_T0))
        a("v_mul_u32_u24 v6, 0xaab, v2")
        a("v_lshrrev_b32 v6, 16, v6")
        a("v_mul_u32_u24 v7, 24, v6")
        a("v_sub_u32 v7, v2, v7")
        a("v_lshlrev_b32 v7, 4, v7")
        a("v_mul_u32_u24 v8, %d, v6" % (8 * 2304))
        a("v_add_u32 v8, v8, v7")
        a("v_mov_b32 v9, 0x40000000")
        a("v_cmp_gt_u32 vcc, 48, v2")
        a("s_mul_i32 %s, s2, 384" % s(S_T1))
        a("s_add_u32 %s, %s, 0x%x" % (s(S_T0), s(S_T1), WS_YP))
        a("v_cndmask_b32 v8, v9, v8, vcc")
        k3.poll(a, L, "m", 28, "0 offen offset:192", NWG, 5, 4)
        for it in range(NWG // 2):
            a("buffer_load_dwordx4 %s, v8, s[24:27], %s offen sc1" % (v(32 + 4 * it, 4), s(S_T0)))
            a("s_add_u32 %s, %s, %d" % (s(S_T0), s(S_T0), 2 * 8 * 2304))
        a("v_add_u32 v11, 24, v2")
        a("v_lshlrev_b32 v11, 2, v11")
        a("v_cmp_gt_u32 vcc, 24, v2")
        a("s_add_u32 %s, %s, 0x%x" % (s(S_T0), s(S_T1), WS_YF))
        a("s_nop 0")
        a("v_cndmask_b32 v7, v9, v7, vcc")
        for it in range(1, NWG // 2):
            if it % 4 == 1: a("s_waitcnt vmcnt(%d)" % max(NWG // 2 - it - 4, 0))
            for i in range(4): a("v_add_f32 %s, %s, %s" % (v(32 + i), v(32 + i), v(32 + 4 * it + i)))
        for i in range(4): a("ds_bpermute_b32 %s, v11, %s" % (v(36 + i), v(32 + i)))
        a("s_waitcnt lgkmcnt(0)")
        for i in range(4):
            a("v_add_f32 %s, %s, %s" % (v(32 + i), v(32 + i), v(36 + i)))
            a("v_mul_f32 %s, %s, v10" % (v(32 + i), v(32 + i)))
        a("buffer_store_dwordx4 v[32:35], v7, s[24:27], %s offen sc1" % s(S_T0))
        a("v_mov_b32 v5, 1")
        a("s_waitcnt vmcnt(0)")
        a("s_mov_b64 exec, 1")
        a("buffer_atomic_add v5, v4, s[28:31], 0 offen offset:196 sc1")
    a.label(L("end"))
    a("s_endpgm")

def wave_max_u32(a, r):
    for sh in (1, 2, 4, 8):
        a("s_nop 1")
        a("v_max_u32_dpp %s, %s, %s row_shr:%d row_mask:0xf bank_mask:0xf" % (v(r), v(r), v(r), sh))
    a("s_nop 1")
    a("v_max_u32_dpp %s, %s, %s row_bcast:15 row_mask:0xa bank_mask:0xf" % (v(r), v(r), v(r)))
    a("s_nop 1")
    a("v_max_u32_dpp %s, %s, %s row_bcast:31 row_mask:0xc bank_mask:0xf" % (v(r), v(r), v(r)))

def top8_round(a, rnd, K, VW, VM_, s_rel, s_win):
    if rnd:
        for i in range(32): a("v_subrev_u32 %s, %s, %s" % (v(K + i), s(s_rel), v(K + i)))
    else: a("v_mov_b32 %s, 0" % v(VW))
    a("v_max3_u32 %s, %s, %s, %s" % (v(VM_), v(K), v(K + 1), v(K + 2)))
    for i in range(3, 31, 2): a("v_max3_u32 %s, %s, %s, %s" % (v(VM_), v(VM_), v(K + i), v(K + i + 1)))
    a("v_max_u32 %s, %s, %s" % (v(VM_), v(VM_), v(K + 31)))
    wave_max_u32(a, VM_)
    a("s_nop 1")
    a("v_readlane_b32 %s, %s, 63" % (s(s_rel), v(VM_)))
    a("s_nop 3")
    if rnd: a("s_add_u32 %s, %s, %s" % (s(s_win), s(s_win), s(s_rel)))
    else: a("s_mov_b32 %s, %s" % (s(s_win), s(s_rel)))
    a("v_writelane_b32 %s, %s, %d" % (v(VW), s(s_win), rnd))

def top8_store(a, VW, T, VL16, srd_ws, s_t, sc="", lds=None):
    t = [v(T + i) for i in range(5)]
    a("v_and_b32 %s, 0xffff, %s" % (t[0], v(VW)))
    a("v_sub_u32 %s, 2047, %s" % (t[0], t[0]))
    a("v_lshrrev_b32 %s, 16, %s" % (t[1], v(VW)))
    a("v_and_b32 %s, 0x7fff, %s" % (t[2], t[1]))
    a("v_xor_b32 %s, 0xffff, %s" % (t[3], t[1]))
    a("v_cmp_lt_u32 vcc, 0x7fff, %s" % t[1])
    a("s_nop 1")
    a("v_cndmask_b32 %s, %s, %s, vcc" % (t[1], t[3], t[2]))
    a("v_lshlrev_b32 %s, 16, %s" % (t[1], t[1]))
    a("v_mul_f32 %s, 0x%08x, %s" % (t[1], f32bits(-math.log2(math.e)), t[1]))
    a("v_exp_f32 %s, %s" % (t[1], t[1]))
    a("v_lshrrev_b32 %s, 2, %s" % (t[2], v(VL16)))
    a("v_add_f32 %s, 1.0, %s" % (t[1], t[1]))
    a("v_rcp_f32 %s, %s" % (t[1], t[1]))
    a("v_mov_b32 %s, 0x40000000" % t[3])
    a("v_cvt_pk_bf16_f32 %s, %s, %s" % (t[1], t[1], t[1]))
    a("v_and_b32 %s, 0xffff0000, %s" % (t[1], t[1]))
    if lds is not None:
        a("v_add_u32 %s, %d, %s" % (t[4], lds, t[2]))
        a("ds_write_b32 %s, %s" % (t[4], t[0]))
        a("ds_write_b32 %s, %s offset:256" % (t[4], t[1]))
        if sc == "ldsonly": return
        a("s_lshl_b32 %s, s2, 5" % s(s_t))
        a("v_add_u32 %s, %s, %s" % (t[4], s(s_t), t[2]))
    a("v_cmp_gt_u32 vcc, 32, %s" % (t[2] if lds is None else t[4]))
    a("s_mov_b32 %s, 0x%x" % (s(s_t), WS_SEL))
    a("s_nop 0")
    a("v_cndmask_b32 %s, %s, %s, vcc" % (t[2], t[3], t[2]))
    a("buffer_store_dword %s, %s, %s, %s offen%s" % (t[0], t[2], s(srd_ws, 4), s(s_t), sc))
    a("buffer_store_dword %s, %s, %s, %s offen offset:32%s" % (t[1], t[2], s(srd_ws, 4), s(s_t), sc))

SELL = 31744
def moe_steps(a, tv, S_W, S_T0, S_T1, VL16, SP):
    X, GW, WD, G, U, WFR, T = 0, 36, 108, 148, 164, 180, 196
    VLN, VH, VGO, VXO, VST, VTR, VTD, VL16B, VEW, VER, VWD, VHW = range(204, 216)
    EX, HA = SP + 20480, SP + 28672
    S_A, S_B = 68, 69
    def ld(txt, tag): a(txt); tv.issue(tag)
    def m0():
        a("v_lshrrev_b32 %s, 4, %s" % (v(VLN), v(VL16)))
        a("v_and_b32 %s, 7, %s" % (v(T + 2), v(VLN)))
        a("v_lshlrev_b32 %s, 2, %s" % (v(T + 3), v(T + 2)))
        a("v_add_u32 %s, %d, %s" % (v(T + 3), SP + SELL, v(T + 3)))
        a("ds_read_b32 %s, %s" % (v(T + 5), v(T + 3)))
        a("v_lshrrev_b32 %s, 5, %s" % (v(VH), v(VLN)))
        a("v_lshrrev_b32 %s, 2, %s" % (v(T), v(VLN)))
        a("v_mul_u32_u24 %s, 9216, %s" % (v(T), v(T)))
        a("v_and_b32 %s, 3, %s" % (v(T + 1), v(VLN)))
        a("v_lshl_add_u32 %s, %s, 4, %s" % (v(VGO), v(T + 1), v(T)))
        a("v_lshl_add_u32 %s, %s, 3, %s" % (v(VL16B), v(VH), v(T + 2)))
        a("v_lshlrev_b32 %s, 4, %s" % (v(VL16B), v(VL16B)))
        a("s_mov_b32 s56, s28"); a("s_mov_b32 s57, s29"); a("s_mov_b32 s58, 0x%x" % (576 * 9216)); a("s_mov_b32 s59, 0x20000")
        a("s_mov_b32 s60, s30"); a("s_mov_b32 s61, s31"); a("s_mov_b32 s62, 0x%x" % (576 * 9216)); a("s_mov_b32 s63, 0x20000")
        a("s_mov_b32 s64, s26"); a("s_mov_b32 s65, s27"); a("s_mov_b32 s66, 0x%x" % (4608 * 1152)); a("s_mov_b32 s67, 0x20000")
        a("s_mul_i32 %s, %s, %d" % (s(S_A), s(S_W), 144 * 9216))
        a("s_lshl_b32 %s, s2, 6" % s(S_T0))
        a("s_add_u32 %s, %s, %s" % (s(S_A), s(S_A), s(S_T0)))
        a("s_mul_i32 %s, %s, 9216" % (s(S_T0), s(S_W)))
        if WS_XNF: a("s_add_u32 %s, %s, 0x%x" % (s(S_T0), s(S_T0), WS_XNF))
        a("s_waitcnt lgkmcnt(0)")
        a("v_lshrrev_b32 %s, 5, %s" % (v(T), v(T + 5)))
        a("v_mul_u32_u24 %s, 36864, %s" % (v(T), v(T)))
        a("v_and_b32 %s, 31, %s" % (v(T + 1), v(T + 5)))
        a("v_lshl_add_u32 %s, %s, 4, %s" % (v(T), v(T + 1), v(T)))
        a("v_lshl_add_u32 %s, %s, 9, %s" % (v(VXO), v(VH), v(T)))
        for k in range(9):
            ld("buffer_load_dwordx4 %s, %s, s[12:15], %s offen sc1" % (v(X + 4 * k, 4), v(VXO), s(S_T0)), "x")
            a("s_add_u32 %s, %s, 1024" % (s(S_T0), s(S_T0)))
    def ldgu(c):
        for k in range(3 * c, 3 * c + 3):
            a("s_add_u32 %s, %s, %d" % (s(S_T0), s(S_A), k * 16 * 9216))
            ld("buffer_load_dwordx4 %s, %s, s[56:59], %s offen" % (v(GW + 8 * k, 4), v(VGO), s(S_T0)), "g%d" % c)
            ld("buffer_load_dwordx4 %s, %s, s[60:63], %s offen" % (v(GW + 8 * k + 4, 4), v(VGO), s(S_T0)), "g%d" % c)
    def ldd(hf):
        for t in range(5):
            a("s_add_u32 %s, %s, %d" % (s(S_T0), s(S_A if t < 4 else S_B), hf * 18432 + t * 4096))
            ld("buffer_load_dwordx4 %s, %s, s[64:67], %s offen" % (v(WD + 20 * hf + 4 * t, 4), v(VL16), s(S_T0)), "d%d" % hf)
    def m1(): ldgu(0)
    def m2():
        ldgu(1)
        a("s_lshl_b32 %s, %s, 10" % (s(S_T0), s(S_W)))
        a("s_min_u32 %s, %s, 1024" % (s(S_T1), s(S_T0)))
        a("v_add_u32 %s, %s, %s" % (v(VWD), s(S_T0), v(VL16)))
        a("v_add_u32 %s, %s, %s" % (v(VHW), s(S_T1), v(VL16)))
        a("v_add_u32 %s, %d, %s" % (v(VWD), SP, v(VWD)))
        a("v_add_u32 %s, %d, %s" % (v(VHW), SP + 16384, v(VHW)))
        a("s_lshl_b32 %s, %s, 12" % (s(S_T0), s(S_W)))
        a("s_add_u32 %s, %s, %d" % (s(S_T0), s(S_T0), SP))
        a("v_add_u32 %s, %s, %s" % (v(VST), s(S_T0), v(VL16)))
        a("v_bfe_u32 %s, %s, 2, 2" % (v(T), v(VLN)))
        a("v_bfe_u32 %s, %s, 4, 1" % (v(T + 1), v(VLN)))
        a("v_lshlrev_b32 %s, 5, %s" % (v(T + 1), v(T + 1)))
        a("v_and_b32 %s, 3, %s" % (v(T + 2), v(VLN)))
        a("v_lshl_add_u32 %s, %s, 3, %s" % (v(T + 1), v(T + 2), v(T + 1)))
        a("v_lshl_add_u32 %s, %s, 3, %s" % (v(T + 2), v(VH), v(T)))
        a("v_lshlrev_b32 %s, 6, %s" % (v(T + 2), v(T + 2)))
        a("v_add3_u32 %s, %s, %s, %s" % (v(VTR), v(T + 2), v(T + 1), s(S_T0)))
        a("v_lshl_add_u32 %s, %s, 2, %s" % (v(T + 2), v(VH), v(T)))
        a("v_mul_u32_u24 %s, 1152, %s" % (v(T + 2), v(T + 2)))
        a("s_lshl_b32 %s, %s, 6" % (s(S_T0), s(S_W)))
        a("s_add_u32 %s, %s, %d" % (s(S_T0), s(S_T0), SP))
        a("v_add3_u32 %s, %s, %s, %s" % (v(VTD), v(T + 2), v(T + 1), s(S_T0)))
        a("s_lshl_b32 %s, %s, 11" % (s(S_T0), s(S_W)))
        a("s_add_u32 %s, %s, %d" % (s(S_T0), s(S_T0), EX))
        a("v_add_u32 %s, %s, %s" % (v(VEW), s(S_T0), v(VL16B)))
        a("s_lshl_b32 %s, %s, 8" % (s(S_T0), s(S_W)))
        a("s_add_u32 %s, %s, %d" % (s(S_T0), s(S_T0), EX))
        a("v_add_u32 %s, %s, %s" % (v(VER), s(S_T0), v(VL16B)))
    def gu(k0, k1):
        def wr(k):
            for m in range(2): a("ds_write_b128 %s, %s offset:%d" % (v(VST), v(GW + 8 * k + 4 * m, 4), (k % 2) * 2048 + m * 1024))
        def rd(k):
            for m in range(2):
                for h in range(2):
                    a("ds_read_b64_tr_b16 %s, %s offset:%d" % (v(WFR + 8 * (k % 2) + 4 * m + 2 * h, 2), v(VTR), (k % 2) * 2048 + m * 1024 + h * 256))
        wr(k0); rd(k0)
        for k in range(k0, k1):
            if k + 1 < k1: wr(k + 1); rd(k + 1)
            a("s_waitcnt lgkmcnt(%d)" % (6 if k + 1 < k1 else 0))
            for m, d in enumerate((G, U)):
                a("v_mfma_f32_32x32x16_bf16 %s, %s, %s, %s" % (v(d, 16), v(WFR + 8 * (k % 2) + 4 * m, 4), v(X + 4 * k, 4), "0" if k == 0 else v(d, 16)))
    def m3():
        ldgu(2)
        a("s_mul_i32 %s, s2, 36864" % s(S_A))
        a("s_lshl_b32 %s, %s, 10" % (s(S_T0), s(S_W)))
        a("s_min_u32 %s, %s, 1024" % (s(S_T1), s(S_T0)))
        a("s_add_u32 %s, %s, %s" % (s(S_B), s(S_A), s(S_T1)))
        a("s_add_u32 %s, %s, %s" % (s(S_A), s(S_A), s(S_T0)))
        a("s_waitcnt vmcnt(%d)" % tv.need("g0"))
        gu(0, 3)
    def m4():
        ldd(0)
        a("s_waitcnt vmcnt(%d)" % tv.need("g1"))
        gu(3, 6)
    def m5():
        ldd(1)
        a("s_waitcnt vmcnt(%d)" % tv.need("g2"))
        gu(6, 9)
        a("v_and_b32 %s, 31, %s" % (v(T), v(VLN)))
        a("v_cmp_gt_u32 vcc, 8, %s" % v(T))
        a("s_nop 15")
        a("s_mov_b64 exec, vcc")
        for q in range(8): a("ds_write_b128 %s, %s offset:%d" % (v(VEW), v(G + 4 * q, 4), q * 256))
        a("s_mov_b64 exec, -1")
    def m6():
        for w in range(4):
            for gu_ in range(2):
                a("ds_read_b128 %s, %s offset:%d" % (v(8 * w + 4 * gu_, 4), v(VER), w * 2048 + gu_ * 1024))
        a("s_waitcnt vmcnt(%d)" % tv.need("d0"))
        for t in range(5): a("ds_write_b128 %s, %s offset:%d" % (v(VWD if t < 4 else VHW), v(WD + 4 * t, 4), t * 4096 if t < 4 else 0))
        a("s_waitcnt lgkmcnt(5)")
        for i in range(8):
            a("v_add_f32 %s, %s, %s" % (v(i), v(i), v(8 + i)))
            a("v_add_f32 %s, %s, %s" % (v(16 + i), v(16 + i), v(24 + i)))
        for i in range(8): a("v_add_f32 %s, %s, %s" % (v(i), v(i), v(16 + i)))
        for i in range(2):
            a("v_cvt_pk_bf16_f32 v8, %s, %s" % (v(2 * i), v(2 * i + 1)))
            a("v_cvt_pk_bf16_f32 v9, %s, %s" % (v(4 + 2 * i), v(4 + 2 * i + 1)))
            a("v_lshlrev_b32 v10, 16, v8")
            a("v_and_b32 v11, 0xffff0000, v8")
            a("v_mul_f32 v12, 0x%08x, v10" % f32bits(-math.log2(math.e)))
            a("v_mul_f32 v13, 0x%08x, v11" % f32bits(-math.log2(math.e)))
            a("v_exp_f32 v12, v12")
            a("v_exp_f32 v13, v13")
            a("v_add_f32 v12, 1.0, v12")
            a("v_add_f32 v13, 1.0, v13")
            a("v_rcp_f32 v12, v12")
            a("v_rcp_f32 v13, v13")
            a("v_mul_f32 v10, v10, v12")
            a("v_mul_f32 v11, v11, v13")
            a("v_cvt_pk_bf16_f32 v8, v10, v11")
            a("v_lshlrev_b32 v12, 16, v9")
            a("v_and_b32 v13, 0xffff0000, v9")
            a("v_lshlrev_b32 v10, 16, v8")
            a("v_and_b32 v11, 0xffff0000, v8")
            a("v_mul_f32 v10, v10, v12")
            a("v_mul_f32 v11, v11, v13")
            a("v_cvt_pk_bf16_f32 %s, v10, v11" % v(14 + i))
        a("s_lshr_b32 %s, %s, 1" % (s(S_T0), s(S_W)))
        a("s_lshl_b32 %s, %s, 8" % (s(S_T0), s(S_T0)))
        a("s_and_b32 %s, %s, 1" % (s(S_T1), s(S_W)))
        a("s_lshl_b32 %s, %s, 3" % (s(S_T1), s(S_T1)))
        a("s_add_u32 %s, %s, %s" % (s(S_T0), s(S_T0), s(S_T1)))
        a("s_add_u32 %s, %s, %d" % (s(S_T0), s(S_T0), HA))
        a("v_add_u32 %s, %s, %s" % (v(T), s(S_T0), v(VL16B)))
        a("ds_write_b64 %s, v[14:15]" % v(T))
    Y, H = 16, 0
    def down(ks):
        for j in range(5):
            for h in range(2):
                a("ds_read_b64_tr_b16 %s, %s offset:%d" % (v(G + 4 * j + 2 * h, 2), v(VTD), j * 256 + h * 8 * 1152))
        for j in range(5):
            a("s_waitcnt lgkmcnt(%d)" % (8 - 2 * j))
            a("v_mfma_f32_32x32x16_bf16 %s, %s, %s, %s" % (v(Y + 16 * j, 16), v(G + 4 * j, 4), v(H + 4 * ks, 4), "0" if ks == 0 else v(Y + 16 * j, 16)))
    def m7():
        a("v_add_u32 %s, %d, %s" % (v(T), HA, v(VL16B)))
        for k in range(2): a("ds_read_b128 %s, %s offset:%d" % (v(H + 4 * k, 4), v(T), k * 256))
        down(0)
    def m8():
        a("s_waitcnt vmcnt(%d)" % tv.need("d1"))
        for t in range(5): a("ds_write_b128 %s, %s offset:%d" % (v(VWD if t < 4 else VHW), v(WD + 20 + 4 * t, 4), t * 4096 if t < 4 else 0))
    def m9():
        down(1)
        a("v_and_b32 %s, 31, %s" % (v(T), v(VLN)))
        a("v_mul_u32_u24 %s, 2304, %s" % (v(T + 1), v(T)))
        a("v_lshl_add_u32 %s, %s, 4, %s" % (v(T + 1), v(VH), v(T + 1)))
        a("v_mov_b32 %s, 0x40000000" % v(T + 2))
        a("v_cmp_gt_u32 vcc, 8, %s" % v(T))
        a("s_mul_i32 %s, s2, %d" % (s(S_T0), 8 * 2304))
        a("s_lshl_b32 %s, %s, 7" % (s(S_T1), s(S_W)))
        a("v_cndmask_b32 %s, %s, %s, vcc" % (v(T + 1), v(T + 2), v(T + 1)))
        a("s_add_u32 %s, %s, %s" % (s(S_T0), s(S_T0), s(S_T1)))
        a("s_add_u32 %s, %s, 0x%x" % (s(S_T0), s(S_T0), WS_YP))
        a("s_cmp_lt_u32 %s, 2" % s(S_W))
        a("s_cselect_b64 vcc, vcc, 0")
        a("s_nop 4")
        a("v_cndmask_b32 %s, %s, %s, vcc" % (v(T + 3), v(T + 2), v(T + 1)))
        for j in range(5):
            for r4 in range(4):
                ld("buffer_store_dwordx4 %s, %s, s[12:15], %s offen offset:%d" % (v(Y + 16 * j + 4 * r4, 4), v(T + 1 if j < 4 else T + 3), s(S_T0), j * 512 + r4 * 32), "y")
    return [m0, m1, m2, m3, m4, m5, m6, m7, m8, m9]

def yreduce_body(a, L0, NWG=48, NPART=144):
    L = lambda x: L0("yr_" + x)
    S_W, S_T0, S_T1 = 36, 37, 38
    a("s_cmp_ge_u32 s2, %d" % NWG)
    a("s_cbranch_scc1 %s" % L("end"))
    a("s_load_dwordx2 s[10:11], s[0:1], %d" % KA_WS)
    a("s_load_dwordx2 s[28:29], s[0:1], %d" % KA_DBG)
    a("v_lshrrev_b32 v1, 6, v0")
    a("v_and_b32 v2, 63, v0")
    a("v_readfirstlane_b32 %s, v1" % s(S_W))
    a("v_mul_u32_u24 v6, 0xaab, v2")
    a("v_lshrrev_b32 v6, 16, v6")
    a("v_mul_u32_u24 v7, 24, v6")
    a("v_sub_u32 v7, v2, v7")
    a("v_lshlrev_b32 v7, 4, v7")
    a("v_mul_u32_u24 v8, %d, v6" % (8 * 2304))
    a("v_add_u32 v8, v8, v7")
    a("v_mov_b32 v9, 0x40000000")
    a("v_cmp_gt_u32 vcc, 48, v2")
    a("s_mul_i32 %s, s2, 384" % s(S_T1))
    a("s_mul_i32 %s, %s, %d" % (s(S_T0), s(S_W), 2 * 8 * 2304))
    a("v_cndmask_b32 v8, v9, v8, vcc")
    a("s_add_u32 %s, %s, %s" % (s(S_T0), s(S_T0), s(S_T1)))
    a("s_add_u32 %s, %s, 0x%x" % (s(S_T0), s(S_T0), WS_YP))
    a("s_mul_i32 s39, s2, 43")
    a("s_lshr_b32 s39, s39, 8")
    a("s_lshl_b32 s39, s39, 2")
    a("s_add_u32 s39, s39, 0x%x" % (WS_SEL + 32))
    a("v_mov_b32 v4, 0"); a("v_mov_b32 v5, 1")
    a("s_waitcnt lgkmcnt(0)")
    srd(a, 24, 10, WS_BYTES)
    a("s_mov_b32 s30, 256"); a("s_mov_b32 s31, 0x20000")
    a("buffer_load_dword v10, v4, s[24:27], s39 offen")
    NL = NPART // 8
    for it in range(NL):
        a("buffer_load_dwordx4 %s, v8, s[24:27], %s offen" % (v(32 + 4 * it, 4), s(S_T0)))
        a("s_add_u32 %s, %s, %d" % (s(S_T0), s(S_T0), 8 * 8 * 2304))
    a("v_lshlrev_b32 v11, 4, v0")
    for it in range(1, NL):
        if it % 4 == 1: a("s_waitcnt vmcnt(%d)" % max(NL - it - 4, 0))
        for i in range(4): a("v_add_f32 %s, %s, %s" % (v(32 + i), v(32 + i), v(32 + 4 * it + i)))
    a("ds_write_b128 v11, v[32:35]")
    a("s_waitcnt lgkmcnt(0)")
    a("s_barrier")
    a("s_cmp_eq_u32 %s, 0" % s(S_W))
    a("s_cbranch_scc0 %s" % L("end"))
    for g in range(8):
        a("ds_read_b128 %s, v7 offset:%d" % (v(32 + 4 * g, 4), (g // 2) * 1024 + (g % 2) * 384))
    a("v_cmp_gt_u32 vcc, 24, v2")
    a("s_add_u32 %s, %s, 0x%x" % (s(S_T0), s(S_T1), WS_YF))
    a("s_waitcnt lgkmcnt(0)")
    a("v_cndmask_b32 v7, v9, v7, vcc")
    for g in range(1, 8):
        for i in range(4): a("v_add_f32 %s, %s, %s" % (v(32 + i), v(32 + i), v(32 + 4 * g + i)))
    for i in range(4): a("v_mul_f32 %s, %s, v10" % (v(32 + i), v(32 + i)))
    a("buffer_store_dwordx4 v[32:35], v7, s[24:27], %s offen sc1" % s(S_T0))
    a("s_waitcnt vmcnt(0)")
    a("s_mov_b64 exec, 1")
    a("buffer_atomic_add v5, v4, s[28:31], 0 offen offset:196 sc1")
    a.label(L("end"))
    a("s_endpgm")
```

```python
class Asm:
    def __init__(self):
        self.lines = []
        self.uid = 0
    def __call__(self, s):
        for l in s.strip("\n").split("\n"):
            self.lines.append("    " + l.strip())
    def label(self, name):
        self.lines.append(name + ":")
    def newlabel(self, base):
        self.uid += 1
        return "%s_%d" % (base, self.uid)
    def comment(self, s):
        self.lines.append("    ; " + s)
    def raw(self, s):
        self.lines.append(s)
    def text(self):
        return "\n".join(self.lines) + "\n"

def v(i, n=1):
    return "v%d" % i if n == 1 else "v[%d:%d]" % (i, i + n - 1)
def s(i, n=1):
    return "s%d" % i if n == 1 else "s[%d:%d]" % (i, i + n - 1)

def kernel_begin(a, name):
    a.raw(".text")
    a.raw(".globl %s" % name)
    a.raw(".p2align 8")
    a.raw(".type %s,@function" % name)
    a.label(name)

def kernel_desc(a, name, vgpr, sgpr=102):
    acc = (vgpr + 3) // 4 * 4
    a.raw('.section .rodata,"a"')
    a.raw(".p2align 6")
    a.raw(".amdhsa_kernel %s" % name)
    a.raw("  .amdhsa_next_free_vgpr %d" % vgpr)
    a.raw("  .amdhsa_next_free_sgpr %d" % sgpr)
    a.raw("  .amdhsa_accum_offset %d" % min(acc, 256))
    a.raw("  .amdhsa_group_segment_fixed_size 0")
    a.raw("  .amdhsa_kernarg_size 112")
    a.raw("  .amdhsa_user_sgpr_count 2")
    a.raw("  .amdhsa_user_sgpr_kernarg_segment_ptr 1")
    a.raw("  .amdhsa_system_sgpr_workgroup_id_x 1")
    a.raw("  .amdhsa_float_denorm_mode_32 3")
    a.raw(".end_amdhsa_kernel")

def srd(a, d, base, nbytes):
    a("s_mov_b32 %s, %s" % (s(d), s(base)))
    a("s_and_b32 %s, %s, 0xffff" % (s(d + 1), s(base + 1)))
    a("s_mov_b32 %s, 0x%x" % (s(d + 2), nbytes))
    a("s_mov_b32 %s, 0x20000" % s(d + 3))

def wave_sum(a, r):
    for sh in (1, 2, 4, 8):
        a("s_nop 1")
        a("v_add_f32_dpp %s, %s, %s row_shr:%d row_mask:0xf bank_mask:0xf" % (v(r), v(r), v(r), sh))
    a("s_nop 1")
    a("v_add_f32_dpp %s, %s, %s row_bcast:15 row_mask:0xa bank_mask:0xf" % (v(r), v(r), v(r)))
    a("s_nop 1")
    a("v_add_f32_dpp %s, %s, %s row_bcast:31 row_mask:0xc bank_mask:0xf" % (v(r), v(r), v(r)))

WS_XNF = 0x0
WS_RKEY = 0x240000
WS_YP = 0x250000
WS_SEL = 0x4E0000
WS_YF = 0x4F0000
WS_XNR = 0x500000
WS_KV = 0x800000
WS_CTX = 0x2800000
WS_PART = 0x3800000
WS_STAMP = 0x6000000
WS_BYTES = 0x10000000

KA_X, KA_CKV, KA_WQ, KA_WUK, KA_WUV, KA_WO, KA_BX, KA_WR, KA_WG, KA_WU, KA_WD, KA_OUT, KA_DBG, KA_WS = [8 * i for i in range(14)]

class Stamps:
    def __init__(self, a, on): self.a, self.on, self.n = a, on, 0
    def __call__(self):
        if self.on:
            self.a("s_memtime %s" % s(70 + 2 * self.n, 2)); self.a("s_memrealtime %s" % s(86 + 2 * self.n, 2)); self.n += 1
    def dump(self, srd_ws, s_id, s_tmp):
        if not self.on: return
        a = self.a
        a("s_waitcnt vmcnt(0)")
        self()
        a("s_waitcnt lgkmcnt(0)")
        a("s_lshl_b32 %s, %s, 6" % (s(s_tmp), s(s_id)))
        a("s_add_u32 %s, %s, 0x%x" % (s(s_tmp), s(s_tmp), WS_STAMP))
        a("v_mov_b32 v1, 0")
        for i in range(8):
            j = min(i, self.n - 1)
            a("v_mov_b32 v2, %s" % s(70 + 2 * j))
            a("buffer_store_dword v2, v1, %s, %s offen offset:%d" % (s(srd_ws, 4), s(s_tmp), 4 * i))
            a("v_mov_b32 v2, %s" % s(86 + 2 * j))
            a("buffer_store_dword v2, v1, %s, %s offen offset:%d" % (s(srd_ws, 4), s(s_tmp), 32 + 4 * i))
```

```python
from asmlib import *
from k2 import VM, f32bits
import math

def ln_code(S_ROW, S_T0, S_T1, VLANE, srd_ws, sc=""):
    a = Asm()
    X, XR, WR = 216, 200, 208
    t = [232 + i for i in range(8)]
    ACCV, MEAN, SD, RC, T0, T1, T2, OFF = t
    ST = s(S_T0)
    for i in range(8):
        a("v_lshlrev_b32 %s, 16, %s" % (v(X + 2 * i), v(XR + i)))
        a("v_and_b32 %s, 0xffff0000, %s" % (v(X + 2 * i + 1), v(XR + i)))
    a("v_add_f32 %s, %s, %s" % (v(ACCV), v(X), v(X + 1)))
    for i in range(2, 16): a("v_add_f32 %s, %s, %s" % (v(ACCV), v(ACCV), v(X + i)))
    wave_sum(a, ACCV)
    a("s_nop 1")
    a("v_readlane_b32 %s, %s, 63" % (ST, v(ACCV)))
    a("v_mov_b32 %s, 0x%08x" % (v(MEAN), f32bits(1.0 / 576)))
    a("s_nop 1")
    a("v_mul_f32 %s, %s, %s" % (v(MEAN), ST, v(MEAN)))
    a("v_sub_f32 %s, %s, %s" % (v(T0), v(X), v(MEAN)))
    a("v_mul_f32 %s, %s, %s" % (v(ACCV), v(T0), v(T0)))
    for i in range(1, 16):
        a("v_sub_f32 %s, %s, %s" % (v(T0), v(X + i), v(MEAN)))
        a("v_fmac_f32 %s, %s, %s" % (v(ACCV), v(T0), v(T0)))
    a("v_cmp_gt_u32 vcc, 36, %s" % v(VLANE))
    a("s_nop 1")
    a("v_cndmask_b32 %s, 0, %s, vcc" % (v(ACCV), v(ACCV)))
    wave_sum(a, ACCV)
    a("s_nop 1")
    a("v_readlane_b32 %s, %s, 63" % (ST, v(ACCV)))
    a("v_mov_b32 %s, 0x%08x" % (v(SD), f32bits(1.0 / 576)))
    a("s_nop 1")
    a("v_mul_f32 %s, %s, %s" % (v(SD), ST, v(SD)))
    a("v_cvt_pk_bf16_f32 %s, %s, %s" % (v(T0), v(MEAN), v(SD)))
    a("v_lshlrev_b32 %s, 16, %s" % (v(MEAN), v(T0)))
    a("v_and_b32 %s, 0xffff0000, %s" % (v(SD), v(T0)))
    a("v_add_f32 %s, 0x%08x, %s" % (v(SD), f32bits(1e-5), v(SD)))
    a("v_cvt_pk_bf16_f32 %s, %s, %s" % (v(SD), v(SD), v(SD)))
    a("v_lshlrev_b32 %s, 16, %s" % (v(SD), v(SD)))
    a("v_sqrt_f32 %s, %s" % (v(SD), v(SD)))
    a("s_nop 0")
    a("v_cvt_pk_bf16_f32 %s, %s, %s" % (v(SD), v(SD), v(SD)))
    a("v_lshlrev_b32 %s, 16, %s" % (v(SD), v(SD)))
    a("v_rcp_f32 %s, %s" % (v(RC), v(SD)))
    a("v_mov_b32 %s, 0" % v(ACCV))
    for i in range(8):
        x0, x1 = X + 2 * i, X + 2 * i + 1
        a("v_sub_f32 %s, %s, %s" % (v(x0), v(x0), v(MEAN)))
        a("v_sub_f32 %s, %s, %s" % (v(x1), v(x1), v(MEAN)))
        a("v_cvt_pk_bf16_f32 %s, %s, %s" % (v(T0), v(x0), v(x1)))
        a("v_lshlrev_b32 %s, 16, %s" % (v(x0), v(T0)))
        a("v_and_b32 %s, 0xffff0000, %s" % (v(x1), v(T0)))
        for x in (x0, x1):
            a("v_mul_f32 %s, %s, %s" % (v(T1), v(x), v(RC)))
            a("v_fma_f32 %s, -%s, %s, %s" % (v(T2), v(T1), v(SD), v(x)))
            a("v_fma_f32 %s, %s, %s, %s" % (v(x), v(T2), v(RC), v(T1)))
        a("v_cvt_pk_bf16_f32 %s, %s, %s" % (v(XR + i), v(x0), v(x1)))
        a("v_lshlrev_b32 %s, 16, %s" % (v(x0), v(XR + i)))
        a("v_and_b32 %s, 0xffff0000, %s" % (v(x1), v(XR + i)))
        a("v_lshlrev_b32 %s, 16, %s" % (v(T0), v(WR + i)))
        a("v_and_b32 %s, 0xffff0000, %s" % (v(T1), v(WR + i)))
        a("v_fmac_f32 %s, %s, %s" % (v(ACCV), v(x0), v(T0)))
        a("v_fmac_f32 %s, %s, %s" % (v(ACCV), v(x1), v(T1)))
    a("s_lshr_b32 %s, %s, 5" % (ST, s(S_ROW)))
    a("s_mul_i32 %s, %s, %d" % (ST, ST, 36 * 1024))
    a("s_and_b32 %s, %s, 31" % (s(S_T1), s(S_ROW)))
    a("s_lshl_b32 %s, %s, 4" % (s(S_T1), s(S_T1)))
    a("s_add_u32 %s, %s, %s" % (ST, ST, s(S_T1)))
    if WS_XNF: a("s_add_u32 %s, %s, 0x%x" % (ST, ST, WS_XNF))
    a("v_lshlrev_b32 %s, 10, %s" % (v(OFF), v(VLANE)))
    a("v_mov_b32 %s, 0x40000000" % v(T0))
    a("v_cndmask_b32 %s, %s, %s, vcc" % (v(OFF), v(T0), v(OFF)))
    a("buffer_store_dwordx4 %s, %s, %s, %s offen%s" % (v(XR, 4), v(OFF), s(srd_ws, 4), ST, sc))
    a("buffer_store_dwordx4 %s, %s, %s, %s offen offset:512%s" % (v(XR + 4, 4), v(OFF), s(srd_ws, 4), ST, sc))
    a("s_mul_i32 %s, %s, 1152" % (s(S_T1), s(S_ROW)))
    a("s_add_u32 %s, %s, 0x%x" % (s(S_T1), s(S_T1), WS_XNR))
    a("v_lshlrev_b32 %s, 5, %s" % (v(OFF), v(VLANE)))
    a("v_cndmask_b32 %s, %s, %s, vcc" % (v(OFF), v(T0), v(OFF)))
    a("buffer_store_dwordx4 %s, %s, %s, %s offen%s" % (v(XR, 4), v(OFF), s(srd_ws, 4), s(S_T1), sc))
    a("buffer_store_dwordx4 %s, %s, %s, %s offen offset:16%s" % (v(XR + 4, 4), v(OFF), s(srd_ws, 4), s(S_T1), sc))
    wave_sum(a, ACCV)
    a("s_nop 1")
    a("v_cvt_pk_bf16_f32 %s, %s, %s" % (v(ACCV), v(ACCV), v(ACCV)))
    a("v_and_b32 %s, 0xffff, %s" % (v(ACCV), v(ACCV)))
    a("v_xor_b32 %s, 0xffff, %s" % (v(T1), v(ACCV)))
    a("v_or_b32 %s, 0x8000, %s" % (v(T2), v(ACCV)))
    a("v_cmp_lt_u32 vcc, 0x7fff, %s" % v(ACCV))
    a("s_sub_u32 %s, 2047, %s" % (s(S_T1), s(S_ROW)))
    a("s_nop 0")
    a("v_cndmask_b32 %s, %s, %s, vcc" % (v(ACCV), v(T2), v(T1)))
    a("v_lshlrev_b32 %s, 16, %s" % (v(ACCV), v(ACCV)))
    a("v_or_b32 %s, %s, %s" % (v(ACCV), s(S_T1), v(ACCV)))
    a("v_cmp_eq_u32 vcc, 63, %s" % v(VLANE))
    a("s_lshl_b32 %s, %s, 2" % (ST, s(S_ROW)))
    a("s_add_u32 %s, %s, 0x%x" % (ST, ST, WS_RKEY))
    a("v_cndmask_b32 %s, %s, 0, vcc" % (v(OFF), v(T0))) if False else None
    a("v_mov_b32 %s, 0" % v(T1))
    a("v_cndmask_b32 %s, %s, %s, vcc" % (v(OFF), v(T0), v(T1)))
    a("buffer_store_dword %s, %s, %s, %s offen%s" % (v(ACCV), v(OFF), s(srd_ws, 4), ST, sc))
    return [l.strip() for l in a.lines]

PF = [(KA_CKV, 2048 * 1024), (KA_WUK, 512 * 8192), (KA_WUV, 512 * 8192), (KA_WQ, 576 * 8192), (KA_WO, 4096 * 1152),
      (KA_WG, 576 * 9216), (KA_WU, 576 * 9216), (KA_WD, 4608 * 1152)]

def gen_k1(a, name="k1_kernel", NS=5, stamps=False, pf=True, stsc=""):
    st = Stamps(a, stamps)
    NIT = 16
    SIG_IT = 12
    VARR, VAOF = 195, 196
    STG = 32768
    ACC = 0
    BUF = [128, 152]
    VWIN = [[176, 177, 178, 179], [180, 181, 182, 183], [184, 185, 186, 187]]
    VDA, VDW0, VDW1, VST, VLANE, VPF, VPFD = 188, 189, 190, 191, 192, 193, 194
    S_W, S_TYPE, S_MT, S_HP = 36, 37, 38, 39
    S_KA0, S_KA1, S_KW = 40, 41, 42
    S_M0A, S_M0W = 43, 44
    S_T0, S_T1, S_T2, S_ROW, S_L0, S_L1, S_PFO = 46, 47, 48, 49, 50, 51, 45
    S_PTR = 52
    kernel_begin(a, name)
    a("s_cmp_ge_u32 s2, 256")
    a("s_cbranch_scc1 %s_end" % name)
    a("s_load_dwordx4 s[4:7], s[0:1], 0")
    a("s_load_dwordx4 s[8:11], s[0:1], %d" % KA_WUK)
    a("s_load_dwordx2 s[12:13], s[0:1], %d" % KA_WR)
    a("s_load_dwordx2 s[14:15], s[0:1], %d" % KA_WS)
    a("s_load_dwordx2 s[52:53], s[0:1], %d" % KA_WQ)
    a("s_load_dwordx2 s[54:55], s[0:1], %d" % KA_WO)
    a("s_load_dwordx4 s[56:59], s[0:1], %d" % KA_WG)
    a("s_load_dwordx2 s[60:61], s[0:1], %d" % KA_WD)
    a("s_load_dwordx2 s[64:65], s[0:1], %d" % KA_DBG)
    st()
    a("v_lshrrev_b32 v1, 6, v0")
    a("v_and_b32 v2, 63, v0")
    a("v_readfirstlane_b32 %s, v1" % s(S_W))
    a("v_mov_b32 %s, v2" % v(VLANE))
    a("s_and_b32 %s, s2, 7" % s(S_T0))
    a("s_lshr_b32 %s, s2, 3" % s(S_T1))
    a("s_bfe_u32 %s, %s, 0x10001" % (s(S_TYPE), s(S_T1)))
    a("s_and_b32 %s, %s, 1" % (s(S_T2), s(S_T1)))
    a("s_lshl_b32 %s, %s, 1" % (s(S_HP), s(S_T0)))
    a("s_add_u32 %s, %s, %s" % (s(S_HP), s(S_HP), s(S_T2)))
    a("s_lshr_b32 %s, %s, 2" % (s(S_MT), s(S_T1)))
    a("v_lshrrev_b32 v4, 2, v2")
    a("v_lshlrev_b32 v4, 10, v4")
    a("v_and_b32 v5, 3, v2")
    a("v_lshrrev_b32 v6, 4, v2")
    a("v_xor_b32 v5, v5, v6")
    a("v_lshl_add_u32 v4, v5, 4, v4")
    a("s_lshl_b32 %s, %s, 18" % (s(S_T0), s(S_MT)))
    a("s_lshl_b32 %s, %s, 15" % (s(S_T1), s(S_W)))
    a("s_add_u32 %s, %s, %s" % (s(S_T0), s(S_T0), s(S_T1)))
    a("v_add_u32 %s, %s, v4" % (v(VDA), s(S_T0)))
    a("v_lshrrev_b32 v4, 5, v2")
    a("v_bfe_u32 v5, v2, 2, 3")
    a("v_and_b32 v6, 3, v2")
    a("s_lshl_b32 %s, %s, 9" % (s(S_T0), s(S_HP)))
    a("s_add_u32 %s, %s, %s" % (s(S_T0), s(S_T0), s(S_T1)))
    for e, vd in ((0, VDW0), (1, VDW1)):
        a("v_add_u32 v7, %d, v4" % (2 * e))
        a("v_xor_b32 v24, v5, v7")
        a("v_lshl_add_u32 v24, v24, 2, v6")
        a("v_lshlrev_b32 v24, 4, v24")
        a("v_lshl_add_u32 v24, v7, 13, v24")
        a("v_add_u32 %s, %s, v24" % (v(vd), s(S_T0)))
    a("s_lshl_b32 %s, %s, 11" % (s(S_M0A), s(S_W)))
    a("s_add_u32 %s, %s, 16384" % (s(S_M0W), s(S_M0A)))
    a("s_mov_b32 %s, 0" % s(S_KA0))
    a("s_mov_b32 %s, 16384" % s(S_KA1))
    a("s_mov_b32 %s, 0" % s(S_KW))
    a("s_lshl_b32 %s, s2, 3" % s(S_ROW))
    a("s_add_u32 %s, %s, %s" % (s(S_ROW), s(S_ROW), s(S_W)))
    a("s_cmp_eq_u32 %s, 0" % s(S_TYPE))
    a("s_waitcnt lgkmcnt(0)")
    a("s_mov_b32 s16, s6"); a("s_mov_b32 s17, s7"); a("s_mov_b32 s18, 0x%x" % (2048 * 1024)); a("s_mov_b32 s19, 0x20000")
    a("s_cselect_b32 s20, s8, s10"); a("s_cselect_b32 s21, s9, s11"); a("s_mov_b32 s22, 0x%x" % (512 * 8192)); a("s_mov_b32 s23, 0x20000")

    def dma(stage):
        base = (stage % NS) * STG
        g = []
        g.append(["s_add_u32 m0, %s, %d" % (s(S_M0A), base), "s_nop 0",
                  "buffer_load_dwordx4 %s, s[16:19], %s offen lds" % (v(VDA), s(S_KA0))])
        g.append(["s_add_u32 m0, %s, %d" % (s(S_M0A), base + 1024), "s_add_u32 %s, %s, 64" % (s(S_KA0), s(S_KA0)),
                  "buffer_load_dwordx4 %s, s[16:19], %s offen lds" % (v(VDA), s(S_KA1))])
        g.append(["s_add_u32 m0, %s, %d" % (s(S_M0W), base), "s_add_u32 %s, %s, 64" % (s(S_KA1), s(S_KA1)),
                  "buffer_load_dwordx4 %s, s[20:23], %s offen lds" % (v(VDW0), s(S_KW))])
        g.append(["s_add_u32 m0, %s, %d" % (s(S_M0W), base + 1024), "s_nop 0",
                  "buffer_load_dwordx4 %s, s[20:23], %s offen lds" % (v(VDW1), s(S_KW)),
                  "s_add_u32 %s, %s, %d" % (s(S_KW), s(S_KW), 32 * 8192)])
        return g
    ptr = {KA_CKV: 6, KA_WUK: 8, KA_WUV: 10, KA_WQ: 52, KA_WO: 54, KA_WG: 56, KA_WU: 58, KA_WD: 60}
    def pf_item(k):
        ka, size = PF[k]
        return ["s_mov_b32 s32, %s" % s(ptr[ka]), "s_mov_b32 s33, %s" % s(ptr[ka] + 1), "s_mov_b32 s34, 0x%x" % size,
                "s_mul_i32 %s, %s, %d" % (s(S_PFO), s(S_ROW), size // 2048),
                "buffer_load_dword %s, %s, s[32:35], %s offen" % (v(VPFD), v(VPF), s(S_PFO))]
    vm0 = VM()
    def put(g):
        for l in g: a(l)
    for sg in range(2):
        for g in dma(sg): put(g); vm0.issue(sg)
    a("s_mov_b32 s24, s14"); a("s_mov_b32 s25, s15"); a("s_mov_b32 s26, 0x%x" % WS_BYTES); a("s_mov_b32 s27, 0x20000")
    a("s_mov_b32 s28, s4"); a("s_mov_b32 s29, s5"); a("s_mov_b32 s30, 0x%x" % (2048 * 1152)); a("s_mov_b32 s31, 0x20000")
    a("s_mov_b32 s32, s12"); a("s_mov_b32 s33, s13"); a("s_mov_b32 s34, 1152"); a("s_mov_b32 s35, 0x20000")
    a("s_mul_i32 %s, %s, 1152" % (s(S_T0), s(S_ROW)))
    a("v_lshlrev_b32 v3, 5, v2")
    a("v_mov_b32 v4, 0x40000000")
    a("v_cmp_gt_u32 vcc, 36, v2")
    a("v_lshlrev_b32 %s, 6, v2" % v(VPF))
    a("v_lshlrev_b32 %s, 4, v2" % v(VST))
    a("v_cndmask_b32 v3, v4, v3, vcc")
    a("buffer_load_dwordx4 v[200:203], v3, s[28:31], %s offen" % s(S_T0))
    a("buffer_load_dwordx4 v[204:207], v3, s[28:31], %s offen offset:16" % s(S_T0))
    a("buffer_load_dwordx4 v[208:211], v3, s[32:35], 0 offen")
    a("buffer_load_dwordx4 v[212:215], v3, s[32:35], 0 offen offset:16")
    for _ in range(4): vm0.issue("ln")
    a("v_and_b32 v4, 31, v2")
    a("v_lshlrev_b32 v4, 6, v4")
    a("v_lshrrev_b32 v5, 5, v2")
    a("v_bfe_u32 v6, v2, 2, 2")
    a("v_xor_b32 v5, v5, v6")
    a("s_and_b32 %s, %s, 1" % (s(S_T0), s(S_W)))
    a("s_lshl_b32 %s, %s, 13" % (s(S_T0), s(S_T0)))
    a("v_add_u32 v4, %s, v4" % s(S_T0))
    a("v_lshl_add_u32 %s, v5, 4, v4" % v(VWIN[0][0]))
    a("v_xor_b32 v5, 2, v5")
    a("v_lshl_add_u32 %s, v5, 4, v4" % v(VWIN[0][1]))
    a("v_bfe_u32 v4, v2, 2, 2")
    a("v_lshrrev_b32 v5, 5, v2")
    a("v_lshl_add_u32 v5, v5, 3, v4")
    a("v_lshlrev_b32 v5, 9, v5")
    a("v_bfe_u32 v6, v2, 4, 1")
    a("v_lshl_add_u32 v5, v6, 5, v5")
    a("v_and_b32 v6, 3, v2")
    a("v_lshl_add_u32 v5, v6, 3, v5")
    a("v_add_u32 v5, 16384, v5")
    a("s_lshr_b32 %s, %s, 1" % (s(S_T0), s(S_W)))
    a("s_lshl_b32 %s, %s, 1" % (s(S_T0), s(S_T0)))
    for nb in range(2):
        a("s_add_u32 %s, %s, %d" % (s(S_T1), s(S_T0), nb))
        a("v_xor_b32 v6, %s, v4" % s(S_T1))
        a("v_lshl_add_u32 %s, v6, 6, v5" % v(VWIN[0][2 + nb]))
    for wdw in (1, 2):
        for k in range(4):
            a("v_add_u32 %s, 0x%x, %s" % (v(VWIN[wdw][k]), 65536 * wdw, v(VWIN[0][k])))

    def reads(it, ks, buf):
        base = (it % NS) * STG
        wdw, off = base // 65536, base % 65536
        B = BUF[buf]
        r = []
        for mb in range(4):
            r.append("ds_read_b128 %s, %s offset:%d" % (v(B + 4 * mb, 4), v(VWIN[wdw][ks]), off + mb * 2048))
        for nb in range(2):
            for h in range(2):
                r.append("ds_read_b64_tr_b16 %s, %s offset:%d" % (v(B + 16 + 4 * nb + 2 * h, 2), v(VWIN[wdw][2 + nb]), off + ks * 8192 + h * 2048))
        return [r[4], r[5], r[0], r[6], r[7], r[1], r[2], r[3]]
    def mfmas(buf, typ, first):
        B = BUF[buf]
        m = []
        for mb in range(4):
            for nb in range(2):
                d = ACC + (mb * 2 + nb) * 16
                af, wf = v(B + 4 * mb, 4), v(B + 16 + 4 * nb, 4)
                c = "0" if first else v(d, 16)
                if typ == 0: m.append("v_mfma_f32_32x32x16_bf16 %s, %s, %s, %s" % (v(d, 16), wf, af, c))
                else:        m.append("v_mfma_f32_32x32x16_bf16 %s, %s, %s, %s" % (v(d, 16), af, wf, c))
        return m

    st()
    a("s_waitcnt vmcnt(%d)" % vm0.need(0))
    a("s_barrier")
    st()
    for l in reads(0, 0, 0): a(l)
    a("s_cmp_eq_u32 %s, 0" % s(S_TYPE))
    a("s_cbranch_scc0 %s_vtype" % name)
    for typ in range(2):
        if typ == 1: a.label("%s_vtype" % name)
        vm = VM(); vm.q = list(vm0.q)
        pend = [(sg, g) for sg in range(2, NS) for g in dma(sg)]
        pfl = [("pf", pf_item(3))] if pf else []
        ln = ln_code(S_ROW, S_L0, S_L1, VLANE, 24, stsc)
        for gk in range(2 * NIT):
            it, ks = gk // 2, gk % 2
            a("s_waitcnt lgkmcnt(0)")
            mm = mfmas(ks, typ, gk == 0)
            rd = reads((gk + 1) // 2, (gk + 1) % 2, 1 - ks) if gk + 1 < 2 * NIT else []
            for i in range(8):
                a(mm[i])
                if ks == 1 and i == 0 and it + 1 < NIT:
                    a("s_waitcnt vmcnt(%d)" % vm.need(it + 1))
                    a("s_barrier")
                    if it + NS < NIT: pend += [(it + NS, g) for g in dma(it + NS)]
                    if pfl and it >= 13: pend.append(pfl.pop(0))
                if i < 4:
                    for l in rd[2 * i:2 * i + 2]: a(l)
                elif pend and (i != 5 or it < 2):
                    sg, g = pend.pop(0); put(g); vm.issue(sg)
                if gk == 4 and i == 0: a("s_waitcnt vmcnt(%d)" % vm.need("ln"))
                if gk >= 4:
                    for _ in range(1 if i < 4 else 2):
                        if ln:
                            l = ln.pop(0); a(l)
                            if l.startswith("buffer_"): vm.issue("lnst")
        assert not pend and not ln and not pfl, (len(pend), len(ln))
        if typ == 0: a("s_branch %s_epi" % name)
    a.label("%s_epi" % name)
    st()
    a("s_lshr_b32 %s, %s, 2" % (s(S_T0), s(S_W)))
    a("s_lshl_b32 %s, %s, 1" % (s(S_T1), s(S_HP)))
    a("s_add_u32 %s, %s, %s" % (s(S_T0), s(S_T0), s(S_T1)))
    a("s_lshl_b32 %s, %s, 6" % (s(S_T0), s(S_T0)))
    a("s_lshl_b32 %s, %s, 3" % (s(S_T1), s(S_MT)))
    a("s_add_u32 %s, %s, %s" % (s(S_T0), s(S_T0), s(S_T1)))
    a("s_and_b32 %s, %s, 1" % (s(S_T1), s(S_W)))
    a("s_lshl_b32 %s, %s, 2" % (s(S_T1), s(S_T1)))
    a("s_add_u32 %s, %s, %s" % (s(S_T0), s(S_T0), s(S_T1)))
    a("s_lshl_b32 %s, %s, 14" % (s(S_T0), s(S_T0)))
    a("s_lshl_b32 %s, %s, 13" % (s(S_T1), s(S_TYPE)))
    a("s_add_u32 %s, %s, %s" % (s(S_T0), s(S_T0), s(S_T1)))
    a("s_bfe_u32 %s, %s, 0x10001" % (s(S_T1), s(S_W)))
    a("s_lshl_b32 %s, %s, 12" % (s(S_T1), s(S_T1)))
    a("s_add_u32 %s, %s, %s" % (s(S_T0), s(S_T0), s(S_T1)))
    a("s_add_u32 %s, %s, 0x%x" % (s(S_T0), s(S_T0), WS_KV))
    a("s_mov_b32 %s, 0x%08x" % (s(S_T1), f32bits(math.log2(math.e) / math.sqrt(128.0))))
    a("s_cmp_eq_u32 %s, 0" % s(S_TYPE))
    a("s_cselect_b32 %s, %s, 1.0" % (s(S_T1), s(S_T1)))
    for mb in range(4):
        for nb in range(2):
            d = ACC + (mb * 2 + nb) * 16
            o = 128 + ((mb * 2 + nb) % 4) * 8
            for i in range(16):
                a("v_mul_f32 %s, %s, %s" % (v(d + i), s(S_T1), v(d + i)))
            for i in range(8):
                a("v_cvt_pk_bf16_f32 %s, %s, %s" % (v(o + i), v(d + 2 * i), v(d + 2 * i + 1)))
            a("buffer_store_dwordx4 %s, %s, s[24:27], %s offen offset:%d%s" % (v(o, 4), v(VST), s(S_T0), nb * 2048, stsc))
            a("buffer_store_dwordx4 %s, %s, s[24:27], %s offen offset:%d%s" % (v(o + 4, 4), v(VST), s(S_T0), nb * 2048 + 1024, stsc))
        a("s_add_u32 %s, %s, 16384" % (s(S_T0), s(S_T0)))
    st()
    st.dump(24, S_ROW, S_T1)
    a.label("%s_end" % name)
    a("s_endpgm")
    return dict(name=name, grid=256, block=512, lds=NS * STG, vgpr=240)
```

```python
from asmlib import *
import struct, math
def f32bits(x): return struct.unpack("<I", struct.pack("<f", x))[0]

class VM:
    def __init__(self): self.q = []
    def issue(self, tag): self.q.append(tag)
    def need(self, tag):
        idx = max(i for i, t in enumerate(self.q) if t == tag)
        return len(self.q) - 1 - idx

O, S, NEGM, P, Q, FR, T = 0, [64, 80], 96, [112, 120], 128, 160, 192
QACC = 64
VL, VTS, VRB, VL16, VLQ, VDW, VNINF, VTMP = 240, 241, 242, 243, 244, 245, 246, 247
VWB = [248, 249, 250, 251]
VTM2, VTM3 = 252, 253
NXN = 12
XN = lambda k: 192 + 4 * (k % NXN)
S_W, S_H, S_I, S_QB, S_N, S_CNT, S_SLOT, S_SRC, S_DST, S_JL, S_J = 36, 37, 38, 39, 40, 41, 42, 43, 44, 45, 46
S_T0, S_T1, S_T2, S_RET = 47, 48, 49, 50
S_TH = 52
S_U0, S_SRC4, S_XN = 53, 54, 55
S_PF, VPF = 32, 255
S_P0 = 34
SLOT = 32768
THRESH = 65536.0

def gen_k2(a, name="k2_kernel", stamps=False, pfs=2048):
    L = lambda x: "%s_%s" % (name, x)
    nst = [0]
    def stamp():
        if stamps:
            a("s_memtime %s" % s(70 + 2 * nst[0], 2)); a("s_memrealtime %s" % s(86 + 2 * nst[0], 2)); nst[0] += 1
    kernel_begin(a, name)
    a("s_cmp_ge_u32 s2, 256")
    a("s_cbranch_scc1 %s" % L("end"))
    a("s_load_dwordx2 s[4:5], s[0:1], %d" % KA_WQ)
    a("s_load_dwordx2 s[6:7], s[0:1], %d" % KA_WS)
    a("s_load_dwordx2 s[24:25], s[0:1], %d" % KA_WO)
    a("s_load_dwordx4 s[28:31], s[0:1], %d" % KA_WG)
    a("s_load_dwordx2 s[26:27], s[0:1], %d" % KA_WD)
    stamp()
    a("v_lshrrev_b32 v1, 6, v0")
    a("v_and_b32 v2, 63, v0")
    a("v_readfirstlane_b32 %s, v1" % s(S_W))
    a("s_and_b32 %s, s2, 7" % s(S_T0))
    a("s_lshr_b32 %s, s2, 3" % s(S_T1))
    a("s_and_b32 %s, %s, 3" % (s(S_T2), s(S_T1)))
    a("s_lshl_b32 %s, %s, 2" % (s(S_H), s(S_T0)))
    a("s_add_u32 %s, %s, %s" % (s(S_H), s(S_H), s(S_T2)))
    a("s_lshr_b32 %s, %s, 2" % (s(S_I), s(S_T1)))
    a("s_lshl_b32 %s, %s, 2" % (s(S_T0), s(S_I)))
    a("s_add_u32 %s, %s, %s" % (s(S_T0), s(S_T0), s(S_W)))
    a("s_sub_u32 %s, 67, %s" % (s(S_T1), s(S_T0)))
    a("s_cmp_lt_u32 %s, 4" % s(S_W))
    a("s_cselect_b32 %s, %s, %s" % (s(S_QB), s(S_T0), s(S_T1)))
    a("s_add_u32 %s, %s, 1" % (s(S_N), s(S_QB)))
    a("s_lshl_b32 %s, %s, 1" % (s(S_T0), s(S_I)))
    a("s_sub_u32 %s, 32, %s" % (s(S_JL), s(S_T0)))
    a("v_lshlrev_b32 %s, 4, v2" % v(VL16))
    a("v_lshrrev_b32 v3, 4, v2")
    a("v_bfe_u32 v4, v2, 2, 2")
    a("v_xor_b32 v4, v4, v3")
    a("v_and_b32 v5, 3, v2")
    a("v_lshl_add_u32 v4, v4, 2, v5")
    a("v_lshlrev_b32 v4, 4, v4")
    a("v_lshl_add_u32 %s, v3, 13, v4" % v(VDW))
    a("s_mul_i32 %s, %s, %d" % (s(S_XN), s(S_QB), 36 * 1024))
    if WS_XNF: a("s_add_u32 %s, %s, 0x%x" % (s(S_XN), s(S_XN), WS_XNF))
    a("s_lshl_b32 %s, %s, 13" % (s(S_DST), s(S_W)))
    a("s_lshl_b32 %s, %s, 18" % (s(S_SRC), s(S_W)))
    a("s_lshl_b32 %s, %s, 8" % (s(S_T0), s(S_H)))
    a("s_add_u32 %s, %s, %s" % (s(S_SRC), s(S_SRC), s(S_T0)))
    a("s_and_b32 %s, %s, 0x7ffff" % (s(S_SRC4), s(S_SRC)))
    a("s_lshl_b32 %s, %s, 20" % (s(S_T0), s(S_H)))
    a("s_add_u32 %s, %s, 0x%x" % (s(S_T0), s(S_T0), WS_KV))
    a("s_cmp_lt_u32 %s, 4" % s(S_W))
    a("s_waitcnt lgkmcnt(0)")
    a("s_mov_b32 s8, s4"); a("s_mov_b32 s9, s5"); a("s_mov_b32 s10, 0x%x" % (576 * 8192)); a("s_mov_b32 s11, 0x20000")
    a("s_mov_b32 s12, s6"); a("s_mov_b32 s13, s7"); a("s_mov_b32 s14, 0x%x" % WS_BYTES); a("s_mov_b32 s15, 0x20000")
    a("s_cbranch_scc0 %s" % L("B"))

    def xn_load(k):
        g = []
        if k % 4 == 0 and k: g.append("s_add_u32 %s, %s, 4096" % (s(S_XN), s(S_XN)))
        g.append("buffer_load_dwordx4 %s, %s, s[12:15], %s offen offset:%d" % (v(XN(k), 4), v(VL16), s(S_XN), (k % 4) * 1024))
        return g
    def wq_dma(u):
        g = []
        for q in range(8):
            g.append(["s_add_u32 m0, %s, %d" % (s(S_DST), (u % 4) * SLOT + q * 1024),
                      "s_add_u32 %s, %s, %d" % (s(S_T2), s(S_SRC if u < 4 else S_SRC4), (u * 128 + q * 4) * 8192),
                      "buffer_load_dwordx4 %s, s[8:11], %s offen lds" % (v(VDW), s(S_T2))])
        return g
    NV = 10 if pfs else 8
    def kv_dma(pf=bool(pfs)):
        g = []
        for q in range(8):
            pre = []
            if q == 0: pre = ["s_mov_b32 m0, %s" % s(S_DST), "s_max_i32 %s, %s, 0" % (s(S_U0), s(S_SRC)), "s_add_u32 %s, %s, 4096" % (s(S_T2), s(S_U0))]
            if q == 4: pre = ["s_add_u32 m0, %s, 4096" % s(S_DST), "s_add_u32 %s, %s, %d" % (s(S_DST), s(S_DST), SLOT)]
            ins = "buffer_load_dwordx4 %s, s[16:19], %s offen offset:%d lds" % (v(VL16), s(S_U0) if q < 4 else s(S_T2), (q % 4) * 1024)
            post = []
            if q == 7: post = ["s_add_u32 %s, %s, 32768" % (s(S_SRC), s(S_SRC)), "s_and_b32 %s, %s, 0x1ffff" % (s(S_DST), s(S_DST))]
            g.append(pre + [ins] + post)
        if pf: g.append(["buffer_load_dword v254, %s, s[20:23], %s offen" % (v(VPF), s(S_PF)), "s_add_u32 %s, %s, %d" % (s(S_PF), s(S_PF), pfs)])
        return g
    def emit(gs):
        for g in gs:
            for l in g: a(l)
    def misc_setup(isA):
        a("s_add_u32 s16, s6, %s" % s(S_T0))
        a("s_addc_u32 s17, s7, 0")
        a("s_mov_b32 s18, 0x100000")
        a("s_mov_b32 s19, 0x20000")
        a("s_mov_b32 %s, 0x%08x" % (s(S_TH), f32bits(THRESH)))
        a("v_bfe_u32 v4, v2, 2, 2")
        a("v_lshrrev_b32 v5, 5, v2")
        a("v_lshl_add_u32 v6, v5, 3, v4")
        a("v_lshlrev_b32 v6, 8, v6")
        a("v_bfe_u32 v7, v2, 4, 1")
        a("v_lshl_add_u32 v6, v7, 5, v6")
        a("v_and_b32 v7, 3, v2")
        a("v_lshl_add_u32 v6, v7, 3, v6")
        for db in range(4):
            a("v_xor_b32 v7, %d, v4" % db)
            a("v_lshl_add_u32 %s, v7, 6, v6" % v(VWB[db]))
        a("v_and_b32 v7, 31, v2")
        a("v_lshlrev_b32 v5, 2, v5")
        a("v_sub_u32 %s, v7, v5" % v(VLQ))
        a("v_mov_b32 %s, 0xff800000" % v(VNINF))
        if isA and pfs:
            a("s_cmp_eq_u32 %s, 1" % s(S_W))
            a("s_cselect_b32 s20, s28, s24"); a("s_cselect_b32 s21, s29, s25")
            a("s_cmp_eq_u32 %s, 2" % s(S_W))
            a("s_cselect_b32 s20, s30, s20"); a("s_cselect_b32 s21, s31, s21")
            a("s_cmp_eq_u32 %s, 3" % s(S_W))
            a("s_cselect_b32 s20, s26, s20"); a("s_cselect_b32 s21, s27, s21")
            a("s_cmp_eq_u32 %s, 0" % s(S_W))
            a("s_cselect_b32 s33, 18432, 20736") if False else None
            a("s_mov_b32 s33, 20736")
            a("s_cselect_b32 s33, 18432, s33")
            a("s_mul_i32 %s, s2, s33" % s(S_PF))
            a("s_add_u32 s22, %s, s33" % s(S_PF))
            a("s_mov_b32 s23, 0x20000")
            a("v_lshlrev_b32 v4, 7, v2")
            a("v_mov_b32 v5, 0x40000000")
            a("v_cmp_gt_u32 vcc, %d, v2" % (pfs // 128))
            a("s_nop 1")
            a("v_cndmask_b32 %s, v5, v4, vcc" % v(VPF))

    def mask_block():
        for r in range(16):
            a("v_cmp_le_i32 vcc, %d, %s" % (8 * (r // 4) + r % 4, v(VLQ)))
            a("s_nop 1")
            a("v_cndmask_b32 %s, %s, %s, vcc" % (v(NEGM + r), v(VNINF), v(NEGM + r)))
        a("s_nop 1")

    def qk(p, g, c0=None):
        c = (c0 or v(NEGM, 16)) if g == 0 else v(S[p], 16)
        return "v_mfma_f32_32x32x16_bf16 %s, %s, %s, %s" % (v(S[p], 16), v(FR + 4 * g, 4), v(Q + 4 * g, 4), c)
    def pv(p, g):
        db, st = g % 4, g // 4
        return "v_mfma_f32_32x32x16_bf16 %s, %s, %s, %s" % (v(O + 16 * db, 16), v(FR + 4 * g, 4), v(P[p] + 4 * st, 4), v(O + 16 * db, 16))
    def rd_k(g, off):
        return "ds_read_b128 %s, %s offset:%d" % (v(FR + 4 * g, 4), v(VRB), off + g * 1024)
    def rd_v(g, off):
        return "ds_read_b128 %s, %s offset:%d" % (v(FR + 4 * g, 4), v(VRB), off + (g % 4) * 2048 + (g // 4) * 1024)
    stubs = []
    def sm_gaps(p):
        e = lambda i: v(T + i % 8)
        g = [[] for _ in range(16)]
        cnt = [1, 1, 2, 1, 2, 1, 2, 1, 1, 1, 1, 1, 1] if p == 0 else [2, 1, 2, 1, 1, 1, 2, 1, 1, 1, 1, 1, 1]
        i = 0; done = []
        for gi, c in enumerate(cnt):
            for _ in range(c): g[gi].append("v_exp_f32 %s, %s" % (e(i), v(S[p] + i))); i += 1
            done.append(i)
        for k in range(8):
            gi = next(x for x in range(13) if done[x] >= 2 * k + 2) + 1
            g[gi].append("v_cvt_pk_bf16_f32 %s, %s, %s" % (v(P[p] + k), e(2 * k), e(2 * k + 1)))
        for i in range(1, 16):
            gi = next(x for x in range(13) if done[x] >= i + 1) + 1
            g[gi].append("v_add_f32 %s, %s, %s" % (v(VTS), v(VTS) if i > 1 else e(0), e(i)))
        lb = a.newlabel(L("chk"))
        g[14].append("v_cmp_nge_f32 vcc, %s, %s" % (s(S_TH), v(VTS)))
        g[15] = ["s_cbranch_vccnz %s_slow" % lb, "@" + lb + "_back", "v_add_f32 %s, %s, %s" % (v(VL), v(VL), v(VTS))]
        stubs.append((lb, p))
        return g
    slot_salu = ["s_add_u32 %s, %s, %d" % (s(S_SLOT), s(S_SLOT), SLOT), "s_and_b32 %s, %s, 0x1ffff" % (s(S_SLOT), s(S_SLOT))]
    set_rb = "v_add_u32 %s, %s, %s" % (v(VRB), s(S_SLOT), v(VL16))
    def half(p, isA, dma=None):
        voff = 16384 if p == 0 else 24576
        koff = 0 if p == 0 else 8192
        gaps = sm_gaps(p)
        o = []
        for g in range(16):
            if g % 4 == 0:
                o.append("s_waitcnt vmcnt(%d) lgkmcnt(4)" % NV if (isA and p == 0 and g == 0) else "s_waitcnt lgkmcnt(4)")
            o.append(qk(1 - p, g) if g < 8 else pv(1 - p, g - 8))
            if p == 0 and g == 0: o += ["s_barrier", set_rb]
            rd = rd_v(g, voff) if g < 8 else rd_k(g - 8, koff)
            if g == 15: o += gaps[g][:2] + [rd] + gaps[g][2:]
            else: o += [rd] + gaps[g]
            if p == 1 and g == 11: o += slot_salu
            if dma and 1 <= g <= len(dma): o += dma[g - 1]
        return o
    def put(lst):
        for l in lst:
            if l.startswith("@"): a.label(l[1:])
            else: a(l)
    def half_tail(p):
        voff = 16384 if p == 0 else 24576
        gaps = sm_gaps(p)
        for g in range(8): a(rd_v(g, voff))
        for g in range(8): put(gaps[g])
        for g in range(8, 16):
            if g % 4 == 0: a("s_waitcnt lgkmcnt(%d)" % (12 - g))
            a(pv(1 - p, g - 8))
            put(gaps[g])
    def final_pv(p, voff):
        for g in range(8): a(rd_v(g, voff))
        for g in range(8):
            if g % 2 == 0: a("s_waitcnt lgkmcnt(%d)" % (6 - g))
            a(pv(p, g))

    for team in "AB":
        isA = team == "A"
        TL = lambda x: L(team + "_" + x)
        if not isA: a.label(L("B"))
        def qphase(w0):
            vm = VM()
            D = 6
            barpos = lambda u: max(32 * u - D, -1)
            items = []
            for k in range(36):
                items.append((4 * (k - NXN) + 3 if k >= NXN else -1, 4 * k - 40, "x%d" % k, xn_load(k)))
            if isA:
                for u in range(1, 7):
                    gs = wq_dma(u) if u < 5 else kv_dma(pf=bool(pfs) and u == 6)
                    if u == 5:
                        gs[0] = ["s_mul_i32 %s, %s, 16384" % (s(S_T0), s(S_W)),
                                 "s_add_u32 %s, %s, %d" % (s(S_T1), s(S_T0), (-73728) & 0xffffffff),
                                 "s_cmp_lt_u32 %s, 2" % s(S_W),
                                 "s_cselect_b32 %s, %s, %s" % (s(S_SRC), s(S_T0), s(S_T1)),
                                 "s_add_u32 %s, %s, %d" % (s(S_DST), s(S_DST), SLOT)] + gs[0]
                    for q, g in enumerate(gs):
                        items.append((barpos(u - 2) if u >= 4 else -1, 32 * u - 48 + q * 0.01, "u%d" % u if q < 8 else "pf", g))
            extra = []
            if w0:
                import km
                for i in range(8):
                    items.append((-1, -30 + i * 0.01, "key", ["s_mov_b32 s58, 0x%x" % (WS_RKEY + (i // 4) * 4096),
                                  "buffer_load_dwordx4 %s, %s, s[12:15], s58 offen offset:%d" % (v(Q + 4 * i, 4), v(VL16), (i % 4) * 1024)]))
                ea = Asm()
                for r in range(8): km.top8_round(ea, r, Q, VTM2, VTM3, 56, 57)
                km.top8_store(ea, VTM2, Q, VL16, 12, 58, lds=4 * SLOT + km.SELL)
                extra = [l.strip() for l in ea.lines]
            items.sort(key=lambda x: x[1])
            if isA:
                for g in wq_dma(0):
                    put(g); vm.issue("u0")
            def pop_item(f):
                for it in items:
                    if it[0] <= f:
                        items.remove(it); put(it[3]); vm.issue(it[2]); return True
                return False
            for _ in range(4 if isA else 8): pop_item(-1)
            misc_setup(isA)
            def q_read(f):
                ks, db = f // 4, f % 4
                u, kk = ks // 8, ks % 8
                if kk == 0 and db == 0:
                    if isA: a("s_waitcnt vmcnt(%d)" % vm.need("u%d" % u))
                    a("s_barrier")
                    if u == 2:
                        for b in VWB: a("v_add_u32 %s, 0x10000, %s" % (v(b), v(b)))
                    if u == 4:
                        for b in VWB: a("v_subrev_u32 %s, 0x10000, %s" % (v(b), v(b)))
                off = (u % 2) * SLOT + kk * 4096
                for h in range(2):
                    a("ds_read_b64_tr_b16 %s, %s offset:%d" % (v(FR + 4 * (f % 8) + 2 * h, 2), v(VWB[db]), off + h * 1024))
            for f in range(D): q_read(f)
            for f in range(144):
                ks, db = f // 4, f % 4
                if f % 2 == 0:
                    nout = 2 * max(min(f + D, 144) - f - 2, 0)
                    w = "s_waitcnt lgkmcnt(%d)" % nout
                    if db == 0: w = "s_waitcnt vmcnt(%d) lgkmcnt(%d)" % (min(vm.need("x%d" % ks), 63), nout)
                    a(w)
                c = "0" if ks == 0 else v(QACC + 16 * db, 16)
                a("v_mfma_f32_32x32x16_bf16 %s, %s, %s, %s" % (v(QACC + 16 * db, 16), v(FR + 4 * (f % 8), 4), v(XN(ks), 4), c))
                if f + D < 144: q_read(f + D)
                pop_item(f)
                if 8 <= f < 72: a("v_mov_b32 %s, 0" % v(O + f - 8))
                if extra and f == 32: a("s_waitcnt vmcnt(%d)" % min(vm.need("key"), 63))
                if f >= 32:
                    for _ in range(6):
                        if extra:
                            l = extra.pop(0); a(l)
                            if l.startswith("buffer_"): vm.issue("sel")
                            if l.startswith("ds_"): a("s_waitcnt lgkmcnt(0)")
            assert not items and not extra
            a("s_waitcnt vmcnt(%d)" % vm.need("u5")) if isA else None
        if isA:
            a("s_cmp_eq_u32 %s, 0" % s(S_W))
            a("s_cbranch_scc0 %s" % TL("q123"))
            qphase(True)
            a("s_branch %s" % TL("qdone"))
            a.label(TL("q123"))
        qphase(False)
        a.label(TL("qdone"))
        stamp() if isA else None
        stamp() if isA else None
        a("s_barrier")
        a("s_mov_b32 %s, %d" % (s(S_SLOT), 2 * SLOT))
        a("v_add_u32 %s, %d, %s" % (v(VRB), SLOT, v(VL16)))
        for g in range(8): a(rd_k(g, 0))
        a("v_mov_b32 %s, 0" % v(VL))
        a("s_lshr_b32 %s, %s, 1" % (s(S_CNT), s(S_N)))
        for i in range(32):
            a("v_cvt_pk_bf16_f32 %s, %s, %s" % (v(Q + i), v(QACC + 2 * i), v(QACC + 2 * i + 1)))
        for i in range(8): a("v_mov_b32 %s, 0" % v(P[1] + i))
        for i in range(16): a("v_mov_b32 %s, 0" % v(NEGM + i))
        a("s_cmp_eq_u32 %s, 1" % s(S_N))
        a("s_cbranch_scc0 %s" % TL("nomask0"))
        mask_block()
        a.label(TL("nomask0"))
        dm = kv_dma() if isA else None
        for g in range(8):
            if g % 4 == 0: a("s_waitcnt lgkmcnt(4)")
            a(qk(0, g))
            a(rd_k(g, 8192))
            if dm: put(dm[g])
            if dm and g == 7 and len(dm) > 8: put(dm[8])
        a("s_nop 15")
        a("v_max3_f32 %s, %s, %s, %s" % (v(VTMP), v(S[0]), v(S[0] + 1), v(S[0] + 2)))
        for i in range(3, 15, 2):
            a("v_max3_f32 %s, %s, %s, %s" % (v(VTMP), v(VTMP), v(S[0] + i), v(S[0] + i + 1)))
        a("v_max_f32 %s, %s, %s" % (v(VTMP), v(VTMP), v(S[0] + 15)))
        a("v_mov_b32 %s, %s" % (v(VTM2), v(VTMP)))
        a("s_nop 1")
        a("v_permlane32_swap_b32 %s, %s" % (v(VTMP), v(VTM2)))
        a("s_nop 1")
        a("v_max_f32 %s, %s, %s" % (v(VTMP), v(VTMP), v(VTM2)))
        for i in range(16): a("v_sub_f32 %s, 0, %s" % (v(NEGM + i), v(VTMP)))
        for i in range(16): a("v_sub_f32 %s, %s, %s" % (v(S[0] + i), v(S[0] + i), v(VTMP)))
        stamp() if isA else None
        a("s_mov_b32 %s, %s" % (s(S_J), s(S_CNT)))
        a("s_cmp_eq_u32 %s, 0" % s(S_CNT))
        a("s_cbranch_scc1 %s" % TL("seqO2"))
        a("s_sub_u32 %s, %s, 1" % (s(S_CNT), s(S_CNT)))
        a("s_cmp_eq_u32 %s, 0" % s(S_CNT))
        a("s_cbranch_scc1 %s" % TL("endseq"))
        a("s_branch %s" % TL("h0"))
        def period_split():
            b = half(0, isA, kv_dma() if isA else None) + half(1, isA)
            idx = [i for i, l in enumerate(b) if "mfma" in l]
            b.insert(idx[16 + 13], "s_cmp_lg_u32 %s, 0" % s(S_CNT))
            b.insert(idx[16 + 9] + 1, "s_sub_u32 %s, %s, 1" % (s(S_CNT), s(S_CNT)))
            cut = idx[16 + 13] + 3
            assert "mfma" in b[cut - 1]
            return b[:cut], b[cut:]
        head, tail = period_split()
        a.raw(".p2align 6")
        a.label(TL("rot"))
        put(tail)
        a.label(TL("h0"))
        put(head)
        a("s_cbranch_scc1 %s" % TL("rot"))
        _, tail2 = period_split()
        stubs.pop(-2)
        put(tail2)
        a.label(TL("endseq"))
        a("s_bitcmp1_b32 %s, 0" % s(S_N))
        a("s_cbranch_scc1 %s" % TL("seqO"))
        mask_block()
        put(half(0, isA, kv_dma() if isA else None))
        half_tail(1)
        put(slot_salu)
        if isA: a("s_waitcnt vmcnt(%d)" % NV)
        a("s_barrier")
        a(set_rb)
        if isA: emit(kv_dma())
        final_pv(1, 16384)
        a("s_branch %s" % TL("epi"))
        a.label(TL("seqO"))
        put(half(0, isA, kv_dma() if isA else None))
        mask_block()
        put(half(1, isA))
        a.label(TL("seqO2"))
        if isA: a("s_waitcnt vmcnt(%d)" % NV)
        a("s_barrier")
        a(set_rb)
        if isA: emit(kv_dma())
        half_tail(0)
        final_pv(0, 24576)
        a.label(TL("epi"))
        a("v_mov_b32 %s, %s" % (v(VTM2), v(VL)))
        a("s_nop 1")
        a("v_permlane32_swap_b32 %s, %s" % (v(VL), v(VTM2)))
        a("s_lshl_b32 %s, %s, 5" % (s(S_T0), s(S_QB)))
        a("s_add_u32 %s, %s, %s" % (s(S_T0), s(S_T0), s(S_H)))
        a("v_add_f32 %s, %s, %s" % (v(VL), v(VL), v(VTM2)))
        a("v_rcp_f32 %s, %s" % (v(VL), v(VL)))
        a("s_lshl_b32 %s, %s, 13" % (s(S_T0), s(S_T0)))
        a("s_add_u32 %s, %s, 0x%x" % (s(S_T0), s(S_T0), WS_CTX))
        a("s_add_u32 %s, %s, 4096" % (s(S_T1), s(S_T0)))
        a("s_nop 7")
        for c in range(8):
            for i in range(8):
                a("v_mul_f32 %s, %s, %s" % (v(O + 8 * c + i), v(O + 8 * c + i), v(VL)))
            for i in range(4):
                a("v_cvt_pk_bf16_f32 %s, %s, %s" % (v(64 + 4 * c + i), v(O + 8 * c + 2 * i), v(O + 8 * c + 2 * i + 1)))
            a("buffer_store_dwordx4 %s, %s, s[12:15], %s offen offset:%d" % (v(64 + 4 * c, 4), v(VL16), s(S_T0) if c < 4 else s(S_T1), (c % 4) * 1024))
        stamp() if isA else None
        if isA:
            a("s_cmp_lt_u32 s2, 144")
            a("s_cselect_b32 %s, 11, -1" % s(S_P0))
            a("s_waitcnt vmcnt(%d)" % (NV + 8))
            a("s_branch %s" % TL("ld_in"))
            a.label(TL("ld"))
            a("s_cmp_eq_u32 %s, %s" % (s(S_J), s(S_P0)))
            a("s_cbranch_scc1 %s" % TL("moe"))
            a("s_waitcnt vmcnt(%d)" % NV)
            a.label(TL("ld_in"))
            a("s_barrier")
            a("s_add_u32 %s, %s, 1" % (s(S_J), s(S_J)))
            a("s_add_u32 %s, %s, 2" % (s(S_T0), s(S_J)))
            a("s_cmp_gt_u32 %s, %s" % (s(S_T0), s(S_JL)))
            a("s_cbranch_scc1 %s" % TL("ld_drain"))
            emit(kv_dma())
            a("s_branch %s" % TL("ld"))
            a.label(TL("ld_drain"))
            a("s_cmp_ge_u32 %s, %s" % (s(S_J), s(S_JL)))
            a("s_cbranch_scc1 %s" % TL("done"))
            a("s_waitcnt vmcnt(0)")
            a("s_barrier")
            a("s_branch %s" % TL("done"))
            a.label(TL("moe"))
            import km
            tv = VM()
            npf = 1 if pfs else 0
            tv.q = [0] * 8 + ["pf"] * npf + [1] * 8 + ["pf"] * npf
            steps = km.moe_steps(a, tv, S_W, S_T0, S_T1, VL16, 4 * SLOT)
            for per, stp in enumerate(steps):
                a("s_waitcnt vmcnt(%d) lgkmcnt(0)" % tv.need(per))
                a("s_barrier")
                emit(kv_dma())
                tv.q += [per + 2] * 8 + ["pf"] * npf
                stp()
            a("s_add_u32 %s, %s, %d" % (s(S_J), s(S_J), len(steps)))
            a("s_waitcnt vmcnt(%d)" % tv.need(len(steps)))
            a("s_branch %s" % TL("ld_in"))
            a.label(TL("done"))
        if stamps:
            if not isA:
                nst[0] = 6 - 1
                for i in range(1, 5):
                    a("s_mov_b64 %s, s[70:71]" % s(70 + 2 * i, 2)); a("s_mov_b64 %s, s[86:87]" % s(86 + 2 * i, 2))
            stamp()
            a("s_waitcnt vmcnt(0)")
            stamp()
            a("s_waitcnt lgkmcnt(0)")
            a("s_lshl_b32 %s, s2, 3" % s(S_T0))
            a("s_add_u32 %s, %s, %s" % (s(S_T0), s(S_T0), s(S_W)))
            a("s_lshl_b32 %s, %s, 6" % (s(S_T0), s(S_T0)))
            a("s_add_u32 %s, %s, 0x%x" % (s(S_T0), s(S_T0), WS_STAMP))
            a("v_mov_b32 v1, 0")
            for i in range(nst[0]):
                a("v_mov_b32 v2, %s" % s(70 + 2 * i))
                a("buffer_store_dword v2, v1, s[12:15], %s offen offset:%d" % (s(S_T0), 4 * i))
                a("v_mov_b32 v2, %s" % s(86 + 2 * i))
                a("buffer_store_dword v2, v1, s[12:15], %s offen offset:%d" % (s(S_T0), 32 + 4 * i))
        a("s_endpgm")
    for lb, p in stubs:
        a.label(lb + "_slow")
        a("s_call_b64 %s, %s" % (s(S_RET, 2), L("slow%d" % p)))
        a("s_branch %s_back" % lb)
    for p in range(2):
        a.label(L("slow%d" % p))
        C, Nx = S[p], S[1 - p]
        a("s_nop 15")
        a("v_max3_f32 %s, %s, %s, %s" % (v(VTMP), v(C), v(C + 1), v(C + 2)))
        for i in range(3, 15, 2):
            a("v_max3_f32 %s, %s, %s, %s" % (v(VTMP), v(VTMP), v(C + i), v(C + i + 1)))
        a("v_max3_f32 %s, %s, %s, 0" % (v(VTMP), v(VTMP), v(C + 15)))
        a("v_mov_b32 %s, %s" % (v(VTM2), v(VTMP)))
        a("s_nop 1")
        a("v_permlane32_swap_b32 %s, %s" % (v(VTMP), v(VTM2)))
        a("s_nop 1")
        a("v_max_f32 %s, %s, %s" % (v(VTMP), v(VTMP), v(VTM2)))
        a("v_exp_f32 %s, -%s" % (v(VTM2), v(VTMP)))
        for i in range(16):
            a("v_sub_f32 %s, %s, %s" % (v(C + i), v(C + i), v(VTMP)))
            a("v_sub_f32 %s, %s, %s" % (v(Nx + i), v(Nx + i), v(VTMP)))
            a("v_sub_f32 %s, %s, %s" % (v(NEGM + i), v(NEGM + i), v(VTMP)))
        for i in range(64):
            a("v_mul_f32 %s, %s, %s" % (v(O + i), v(O + i), v(VTM2)))
        a("v_mul_f32 %s, %s, %s" % (v(VL), v(VL), v(VTM2)))
        a("v_mov_b32 %s, 0" % v(VTS))
        for k in range(8):
            a("v_exp_f32 %s, %s" % (v(T), v(C + 2 * k)))
            a("v_exp_f32 %s, %s" % (v(T + 1), v(C + 2 * k + 1)))
            a("v_add_f32 %s, %s, %s" % (v(VTS), v(VTS), v(T)))
            a("v_add_f32 %s, %s, %s" % (v(VTS), v(VTS), v(T + 1)))
            a("v_cvt_pk_bf16_f32 %s, %s, %s" % (v(P[p] + k), v(T), v(T + 1)))
        a("s_nop 1")
        a("s_setpc_b64 %s" % s(S_RET, 2))
    a.label(L("end"))
    a("s_endpgm")
    return dict(name=name, grid=256, block=512, lds=5 * SLOT, vgpr=256)
```

```python
from asmlib import *
from k2 import f32bits
import math

def ag(i, n=1):
    return "a%d" % i if n == 1 else "a[%d:%d]" % (i, i + n - 1)

def moe_body(a, L0, NWG=48, fuse=False):
    L = lambda x: L0("moe_" + x)
    S_W, S_T0, S_T1, S_G, S_D, S_L = 36, 37, 38, 41, 42, 43
    GU = [0, 73728]; UP = 36864
    EX, HA = 110592, 147456
    X, ACC, WFR, TMP, H, Y = 32, 72, 168, 184, 232, 72
    a("s_cmp_ge_u32 s2, %d" % NWG)
    a("s_cbranch_scc1 %s" % L("end"))
    a("s_load_dwordx4 s[4:7], s[0:1], %d" % KA_WG)
    a("s_load_dwordx2 s[8:9], s[0:1], %d" % KA_WD)
    a("s_load_dwordx2 s[10:11], s[0:1], %d" % KA_WS)
    a("s_load_dwordx2 s[28:29], s[0:1], %d" % KA_DBG)
    a("v_lshrrev_b32 v1, 6, v0")
    a("v_and_b32 v2, 63, v0")
    a("v_readfirstlane_b32 %s, v1" % s(S_W))
    a("v_lshlrev_b32 v3, 4, v2")
    a("v_lshrrev_b32 v4, 2, v2")
    a("v_mul_u32_u24 v4, 9216, v4")
    a("v_and_b32 v5, 3, v2")
    a("v_lshl_add_u32 v4, v5, 4, v4")
    a("v_and_b32 v11, 7, v2")
    a("v_lshlrev_b32 v12, 2, v11")
    a("s_mul_i32 %s, %s, %d" % (s(S_G), s(S_W), 144 * 9216))
    a("s_mul_i32 %s, s2, 192" % s(S_T1))
    a("s_add_u32 %s, %s, %s" % (s(S_G), s(S_G), s(S_T1)))
    a("s_mul_i32 %s, %s, 9216" % (s(S_L), s(S_W)))
    a("s_mul_i32 %s, s2, %d" % (s(S_D), 110592))
    a("s_mul_i32 %s, %s, %d" % (s(S_T1), s(S_W), 27648))
    a("s_add_u32 %s, %s, %s" % (s(S_D), s(S_D), s(S_T1)))
    a("s_mov_b32 %s, 0x%x" % (s(S_T0), WS_SEL))
    a("s_waitcnt lgkmcnt(0)")
    srd(a, 24, 10, WS_BYTES)
    a("buffer_load_dword v13, v12, s[24:27], %s offen" % s(S_T0))
    srd(a, 12, 4, 576 * 9216); srd(a, 16, 6, 576 * 9216); srd(a, 20, 8, 4608 * 1152)
    def dma_gu(r):
        for q in range(9):
            a("s_add_u32 %s, %s, %d" % (s(S_T0), s(S_G), q * 16 * 9216 + 64 * r))
            for lb, sr in ((0, 12), (UP, 16)):
                a("s_add_u32 m0, %s, %d" % (s(S_L), GU[r % 2] + lb + q * 1024))
                a("s_nop 0")
                a("buffer_load_dwordx4 v4, %s, %s offen lds" % (s(sr, 4), s(S_T0)))
    dma_gu(0)
    a("s_waitcnt vmcnt(18)")
    a("v_lshrrev_b32 v14, 5, v13")
    a("v_mul_u32_u24 v14, 36864, v14")
    a("v_and_b32 v15, 31, v13")
    a("v_lshl_add_u32 v14, v15, 4, v14")
    a("v_lshrrev_b32 v15, 5, v2")
    a("v_lshl_add_u32 v14, v15, 9, v14")
    a("s_add_u32 %s, %s, 0x%x" % (s(S_T0), s(S_L), WS_XNF))
    for k in range(9):
        a("buffer_load_dwordx4 %s, v14, s[24:27], %s offen" % (v(X + 4 * k, 4), s(S_T0)))
        a("s_add_u32 %s, %s, 1024" % (s(S_T0), s(S_T0)))
    dma_gu(1)
    for q in range(27):
        if q % 4 == 0: a("s_add_u32 %s, %s, %d" % (s(S_T0), s(S_D), q * 1024))
        a("buffer_load_dwordx4 %s, v3, s[20:23], %s offen offset:%d" % (ag(4 * q, 4), s(S_T0), (q % 4) * 1024))
    a("v_bfe_u32 v16, v2, 2, 2")
    a("v_lshl_add_u32 v17, v15, 3, v16")
    a("v_lshlrev_b32 v17, 6, v17")
    a("v_bfe_u32 v18, v2, 4, 1")
    a("v_lshlrev_b32 v18, 5, v18")
    a("v_and_b32 v19, 3, v2")
    a("v_lshl_add_u32 v18, v19, 3, v18")
    a("v_add3_u32 v17, v17, v18, %s" % s(S_L))
    a("v_add_u32 v22, %d, v17" % GU[1])
    a("v_lshl_add_u32 v19, v15, 2, v16")
    a("v_mul_u32_u24 v19, 1152, v19")
    a("s_lshl_b32 %s, %s, 6" % (s(S_T0), s(S_W)))
    a("v_add3_u32 v19, v19, v18, %s" % s(S_T0))
    a("v_add_u32 v23, %d, v19" % (48 * 1152))
    a("v_lshl_add_u32 v20, v15, 3, v11")
    a("v_lshlrev_b32 v20, 4, v20")
    a("s_add_u32 %s, %s, %d" % (s(S_T0), s(S_L), EX))
    a("v_add_u32 v21, %s, v20" % s(S_T0))
    a("s_mul_i32 %s, %s, 768" % (s(S_T1), s(S_W)))
    a("s_add_u32 %s, %s, %d" % (s(S_T1), s(S_T1), EX))
    a("v_add_u32 v24, %s, v20" % s(S_T1))
    a("s_mul_i32 %s, %s, 27648" % (s(S_T1), s(S_W)))
    a("v_add_u32 v25, %s, v3" % s(S_T1))
    def rnd(r, nvm):
        a("s_waitcnt vmcnt(%d)" % nvm)
        base = "v17" if r % 2 == 0 else "v22"
        G, U = ACC + 16 * r, ACC + 48 + 16 * r
        for k in range(10):
            if k < 9:
                b = WFR + 8 * (k % 2)
                for m, lb in enumerate((0, UP)):
                    for h in range(2):
                        a("ds_read_b64_tr_b16 %s, %s offset:%d" % (v(b + 4 * m + 2 * h, 2), base, lb + k * 1024 + h * 256))
            if k:
                a("s_waitcnt lgkmcnt(%d)" % (4 if k < 9 else 0))
                b2 = WFR + 8 * ((k - 1) % 2)
                for m, d in enumerate((G, U)):
                    a("v_mfma_f32_32x32x16_bf16 %s, %s, %s, %s" % (v(d, 16), v(b2 + 4 * m, 4), v(X + 4 * (k - 1), 4), "0" if k == 1 else v(d, 16)))
    rnd(0, 45)
    dma_gu(2)
    rnd(1, 45)
    rnd(2, 0)
    a("v_and_b32 v26, 31, v2")
    a("v_cmp_gt_u32 vcc, 8, v26")
    a("s_nop 7")
    a("s_and_saveexec_b64 s[44:45], vcc")
    for q in range(24): a("ds_write_b128 v21, %s offset:%d" % (v(ACC + 4 * q, 4), q * 256))
    a("s_mov_b64 exec, s[44:45]")
    a("s_waitcnt lgkmcnt(0)")
    a("s_barrier")
    for w in range(4):
        for gu in range(2):
            for j in range(3):
                a("ds_read_b128 %s, v24 offset:%d" % (v(ACC + 24 * w + 12 * gu + 4 * j, 4), w * 9216 + gu * 3072 + j * 256))
        if w == 1: a("s_waitcnt lgkmcnt(3)")
    for q in range(27):
        if q == 0: a("s_waitcnt lgkmcnt(4)")
        if q in (8, 14, 20): a("s_waitcnt lgkmcnt(8)")
        a("ds_write_b128 v25, %s offset:%d" % (ag(4 * q, 4), q * 1024))
        if q >= 8 and q < 20:
            for i in range(6):
                e = (q - 8) * 6 + i
                w_, r_ = e // 24 + 1, e % 24
                a("v_add_f32 %s, %s, %s" % (v(ACC + r_), v(ACC + r_), v(ACC + 24 * w_ + r_)))
    G, U = ACC, ACC + 12
    for i in range(6):
        a("v_cvt_pk_bf16_f32 v26, %s, %s" % (v(G + 2 * i), v(G + 2 * i + 1)))
        a("v_cvt_pk_bf16_f32 v27, %s, %s" % (v(U + 2 * i), v(U + 2 * i + 1)))
        a("v_lshlrev_b32 v28, 16, v26")
        a("v_and_b32 v29, 0xffff0000, v26")
        a("v_mul_f32 v30, 0x%08x, v28" % f32bits(-math.log2(math.e)))
        a("v_mul_f32 v31, 0x%08x, v29" % f32bits(-math.log2(math.e)))
        a("v_exp_f32 v30, v30")
        a("v_exp_f32 v31, v31")
        a("v_add_f32 v30, 1.0, v30")
        a("v_add_f32 v31, 1.0, v31")
        a("v_rcp_f32 v30, v30")
        a("v_rcp_f32 v31, v31")
        a("v_mul_f32 v28, v28, v30")
        a("v_mul_f32 v29, v29, v31")
        a("v_cvt_pk_bf16_f32 v26, v28, v29")
        a("v_lshlrev_b32 v30, 16, v27")
        a("v_and_b32 v31, 0xffff0000, v27")
        a("v_lshlrev_b32 v28, 16, v26")
        a("v_and_b32 v29, 0xffff0000, v26")
        a("v_mul_f32 v28, v28, v30")
        a("v_mul_f32 v29, v29, v31")
        a("v_cvt_pk_bf16_f32 %s, v28, v29" % v(TMP + i))
    a("s_mul_i32 %s, %s, 3" % (s(S_T0), s(S_W)))
    for j in range(3):
        a("s_add_u32 %s, %s, %d" % (s(S_T1), s(S_T0), j))
        a("s_lshr_b32 s46, %s, 1" % s(S_T1))
        a("s_lshl_b32 s46, s46, 8")
        a("s_and_b32 %s, %s, 1" % (s(S_T1), s(S_T1)))
        a("s_lshl_b32 %s, %s, 3" % (s(S_T1), s(S_T1)))
        a("s_add_u32 s46, s46, %s" % s(S_T1))
        a("s_add_u32 s46, s46, %d" % HA)
        a("v_add_u32 v26, s46, v20")
        a("ds_write_b64 v26, %s" % v(TMP + 2 * j, 2))
    a("v_add_u32 v26, %d, v20" % HA)
    a("s_waitcnt lgkmcnt(0)")
    a("s_barrier")
    for k in range(6): a("ds_read_b128 %s, v26 offset:%d" % (v(H + 4 * k, 4), k * 256))
    seq = [(j, k) for j in range(5) for k in range(6)]
    def rdw(n):
        j, k = seq[n]
        b = WFR + 4 * (n % 4)
        for h in range(2):
            a("ds_read_b64_tr_b16 %s, %s offset:%d" % (v(b + 2 * h, 2), "v19" if k < 3 else "v23", j * 256 + ((k % 3) * 16 + h * 8) * 1152))
    for n in range(3): rdw(n)
    for n, (j, k) in enumerate(seq):
        a("s_waitcnt lgkmcnt(%d)" % (2 * min(2, len(seq) - 1 - n)))
        d = Y + 16 * j
        a("v_mfma_f32_32x32x16_bf16 %s, %s, %s, %s" % (v(d, 16), v(WFR + 4 * (n % 4), 4), v(H + 4 * k, 4), "0" if k == 0 else v(d, 16)))
        if n + 3 < len(seq): rdw(n + 3)
    a("v_and_b32 v24, 31, v2")
    a("v_mul_u32_u24 v25, 2304, v24")
    a("v_lshl_add_u32 v25, v15, 4, v25")
    a("v_mov_b32 v26, 0x40000000")
    a("v_cmp_gt_u32 vcc, 8, v24")
    a("s_mul_i32 %s, s2, %d" % (s(S_T0), 8 * 2304))
    a("s_lshl_b32 %s, %s, 7" % (s(S_T1), s(S_W)))
    a("v_cndmask_b32 v25, v26, v25, vcc")
    a("s_add_u32 %s, %s, %s" % (s(S_T0), s(S_T0), s(S_T1)))
    a("s_add_u32 %s, %s, 0x%x" % (s(S_T0), s(S_T0), WS_YP))
    a("s_nop 7")
    for j in range(5):
        if j == 4:
            a("s_cmp_lt_u32 %s, 2" % s(S_W))
            a("s_cbranch_scc0 %s" % L("sig"))
        for r4 in range(4):
            a("buffer_store_dwordx4 %s, v25, s[24:27], %s offen offset:%d%s" % (v(Y + 16 * j + 4 * r4, 4), s(S_T0), j * 512 + r4 * 32, " sc1" if fuse else ""))
    a.label(L("sig"))
    if fuse:
        a("s_mov_b32 s30, 256"); a("s_mov_b32 s31, 0x20000")
        a("v_mov_b32 v4, 0"); a("v_mov_b32 v5, 1")
        a("s_waitcnt vmcnt(0)")
        a("s_barrier")
        a("s_cmp_eq_u32 %s, 0" % s(S_W))
        a("s_cbranch_scc0 %s" % L("end"))
        a("s_mov_b64 exec, 1")
        a("buffer_atomic_add v5, v4, s[28:31], 0 offen offset:192 sc1")
        a("s_mov_b64 exec, -1")
        import k3
        a("s_mul_i32 %s, s2, 43" % s(S_T0))
        a("s_lshr_b32 %s, %s, 8" % (s(S_T0), s(S_T0)))
        a("s_lshl_b32 %s, %s, 2" % (s(S_T0), s(S_T0)))
        a("s_add_u32 %s, %s, 0x%x" % (s(S_T0), s(S_T0), WS_SEL + 32))
        a("buffer_load_dword v10, v4, s[24:27], %s offen" % s(S_T0))
        a("v_mul_u32_u24 v6, 0xaab, v2")
        a("v_lshrrev_b32 v6, 16, v6")
        a("v_mul_u32_u24 v7, 24, v6")
        a("v_sub_u32 v7, v2, v7")
        a("v_lshlrev_b32 v7, 4, v7")
        a("v_mul_u32_u24 v8, %d, v6" % (8 * 2304))
        a("v_add_u32 v8, v8, v7")
        a("v_mov_b32 v9, 0x40000000")
        a("v_cmp_gt_u32 vcc, 48, v2")
        a("s_mul_i32 %s, s2, 384" % s(S_T1))
        a("s_add_u32 %s, %s, 0x%x" % (s(S_T0), s(S_T1), WS_YP))
        a("v_cndmask_b32 v8, v9, v8, vcc")
        k3.poll(a, L, "m", 28, "0 offen offset:192", NWG, 5, 4)
        for it in range(NWG // 2):
            a("buffer_load_dwordx4 %s, v8, s[24:27], %s offen sc1" % (v(32 + 4 * it, 4), s(S_T0)))
            a("s_add_u32 %s, %s, %d" % (s(S_T0), s(S_T0), 2 * 8 * 2304))
        a("v_add_u32 v11, 24, v2")
        a("v_lshlrev_b32 v11, 2, v11")
        a("v_cmp_gt_u32 vcc, 24, v2")
        a("s_add_u32 %s, %s, 0x%x" % (s(S_T0), s(S_T1), WS_YF))
        a("s_nop 0")
        a("v_cndmask_b32 v7, v9, v7, vcc")
        for it in range(1, NWG // 2):
            if it % 4 == 1: a("s_waitcnt vmcnt(%d)" % max(NWG // 2 - it - 4, 0))
            for i in range(4): a("v_add_f32 %s, %s, %s" % (v(32 + i), v(32 + i), v(32 + 4 * it + i)))
        for i in range(4): a("ds_bpermute_b32 %s, v11, %s" % (v(36 + i), v(32 + i)))
        a("s_waitcnt lgkmcnt(0)")
        for i in range(4):
            a("v_add_f32 %s, %s, %s" % (v(32 + i), v(32 + i), v(36 + i)))
            a("v_mul_f32 %s, %s, v10" % (v(32 + i), v(32 + i)))
        a("buffer_store_dwordx4 v[32:35], v7, s[24:27], %s offen sc1" % s(S_T0))
        a("v_mov_b32 v5, 1")
        a("s_waitcnt vmcnt(0)")
        a("s_mov_b64 exec, 1")
        a("buffer_atomic_add v5, v4, s[28:31], 0 offen offset:196 sc1")
    a.label(L("end"))
    a("s_endpgm")

def wave_max_u32(a, r):
    for sh in (1, 2, 4, 8):
        a("s_nop 1")
        a("v_max_u32_dpp %s, %s, %s row_shr:%d row_mask:0xf bank_mask:0xf" % (v(r), v(r), v(r), sh))
    a("s_nop 1")
    a("v_max_u32_dpp %s, %s, %s row_bcast:15 row_mask:0xa bank_mask:0xf" % (v(r), v(r), v(r)))
    a("s_nop 1")
    a("v_max_u32_dpp %s, %s, %s row_bcast:31 row_mask:0xc bank_mask:0xf" % (v(r), v(r), v(r)))

def top8_round(a, rnd, K, VW, VM_, s_rel, s_win):
    if rnd:
        for i in range(32): a("v_subrev_u32 %s, %s, %s" % (v(K + i), s(s_rel), v(K + i)))
    else: a("v_mov_b32 %s, 0" % v(VW))
    a("v_max3_u32 %s, %s, %s, %s" % (v(VM_), v(K), v(K + 1), v(K + 2)))
    for i in range(3, 31, 2): a("v_max3_u32 %s, %s, %s, %s" % (v(VM_), v(VM_), v(K + i), v(K + i + 1)))
    a("v_max_u32 %s, %s, %s" % (v(VM_), v(VM_), v(K + 31)))
    wave_max_u32(a, VM_)
    a("s_nop 1")
    a("v_readlane_b32 %s, %s, 63" % (s(s_rel), v(VM_)))
    a("s_nop 3")
    if rnd: a("s_add_u32 %s, %s, %s" % (s(s_win), s(s_win), s(s_rel)))
    else: a("s_mov_b32 %s, %s" % (s(s_win), s(s_rel)))
    a("v_writelane_b32 %s, %s, %d" % (v(VW), s(s_win), rnd))

def top8_store(a, VW, T, VL16, srd_ws, s_t, sc="", lds=None):
    t = [v(T + i) for i in range(5)]
    a("v_and_b32 %s, 0xffff, %s" % (t[0], v(VW)))
    a("v_sub_u32 %s, 2047, %s" % (t[0], t[0]))
    a("v_lshrrev_b32 %s, 16, %s" % (t[1], v(VW)))
    a("v_and_b32 %s, 0x7fff, %s" % (t[2], t[1]))
    a("v_xor_b32 %s, 0xffff, %s" % (t[3], t[1]))
    a("v_cmp_lt_u32 vcc, 0x7fff, %s" % t[1])
    a("s_nop 1")
    a("v_cndmask_b32 %s, %s, %s, vcc" % (t[1], t[3], t[2]))
    a("v_lshlrev_b32 %s, 16, %s" % (t[1], t[1]))
    a("v_mul_f32 %s, 0x%08x, %s" % (t[1], f32bits(-math.log2(math.e)), t[1]))
    a("v_exp_f32 %s, %s" % (t[1], t[1]))
    a("v_lshrrev_b32 %s, 2, %s" % (t[2], v(VL16)))
    a("v_add_f32 %s, 1.0, %s" % (t[1], t[1]))
    a("v_rcp_f32 %s, %s" % (t[1], t[1]))
    a("v_mov_b32 %s, 0x40000000" % t[3])
    a("v_cvt_pk_bf16_f32 %s, %s, %s" % (t[1], t[1], t[1]))
    a("v_and_b32 %s, 0xffff0000, %s" % (t[1], t[1]))
    if lds is not None:
        a("v_add_u32 %s, %d, %s" % (t[4], lds, t[2]))
        a("ds_write_b32 %s, %s" % (t[4], t[0]))
        a("s_lshl_b32 %s, s2, 5" % s(s_t))
        a("v_add_u32 %s, %s, %s" % (t[4], s(s_t), t[2]))
    a("v_cmp_gt_u32 vcc, 32, %s" % (t[2] if lds is None else t[4]))
    a("s_mov_b32 %s, 0x%x" % (s(s_t), WS_SEL))
    a("s_nop 0")
    a("v_cndmask_b32 %s, %s, %s, vcc" % (t[2], t[3], t[2]))
    a("buffer_store_dword %s, %s, %s, %s offen%s" % (t[0], t[2], s(srd_ws, 4), s(s_t), sc))
    a("buffer_store_dword %s, %s, %s, %s offen offset:32%s" % (t[1], t[2], s(srd_ws, 4), s(s_t), sc))

SELL = 31744
def moe_steps(a, tv, S_W, S_T0, S_T1, VL16, SP):
    X, GW, WD, G, U, WFR, T = 0, 36, 108, 148, 164, 180, 196
    VLN, VH, VGO, VXO, VST, VTR, VTD, VL16B, VEW, VER, VWD, VHW = range(204, 216)
    EX, HA = SP + 20480, SP + 28672
    S_A, S_B = 68, 69
    def ld(txt, tag): a(txt); tv.issue(tag)
    def m0():
        a("v_lshrrev_b32 %s, 4, %s" % (v(VLN), v(VL16)))
        a("v_and_b32 %s, 7, %s" % (v(T + 2), v(VLN)))
        a("v_lshlrev_b32 %s, 2, %s" % (v(T + 3), v(T + 2)))
        a("v_add_u32 %s, %d, %s" % (v(T + 3), SP + SELL, v(T + 3)))
        a("ds_read_b32 %s, %s" % (v(T + 5), v(T + 3)))
        a("v_lshrrev_b32 %s, 5, %s" % (v(VH), v(VLN)))
        a("v_lshrrev_b32 %s, 2, %s" % (v(T), v(VLN)))
        a("v_mul_u32_u24 %s, 9216, %s" % (v(T), v(T)))
        a("v_and_b32 %s, 3, %s" % (v(T + 1), v(VLN)))
        a("v_lshl_add_u32 %s, %s, 4, %s" % (v(VGO), v(T + 1), v(T)))
        a("v_lshl_add_u32 %s, %s, 3, %s" % (v(VL16B), v(VH), v(T + 2)))
        a("v_lshlrev_b32 %s, 4, %s" % (v(VL16B), v(VL16B)))
        a("s_mov_b32 s56, s28"); a("s_mov_b32 s57, s29"); a("s_mov_b32 s58, 0x%x" % (576 * 9216)); a("s_mov_b32 s59, 0x20000")
        a("s_mov_b32 s60, s30"); a("s_mov_b32 s61, s31"); a("s_mov_b32 s62, 0x%x" % (576 * 9216)); a("s_mov_b32 s63, 0x20000")
        a("s_mov_b32 s64, s26"); a("s_mov_b32 s65, s27"); a("s_mov_b32 s66, 0x%x" % (4608 * 1152)); a("s_mov_b32 s67, 0x20000")
        a("s_mul_i32 %s, %s, %d" % (s(S_A), s(S_W), 144 * 9216))
        a("s_lshl_b32 %s, s2, 6" % s(S_T0))
        a("s_add_u32 %s, %s, %s" % (s(S_A), s(S_A), s(S_T0)))
        a("s_mul_i32 %s, %s, 9216" % (s(S_T0), s(S_W)))
        if WS_XNF: a("s_add_u32 %s, %s, 0x%x" % (s(S_T0), s(S_T0), WS_XNF))
        a("s_waitcnt lgkmcnt(0)")
        a("v_lshrrev_b32 %s, 5, %s" % (v(T), v(T + 5)))
        a("v_mul_u32_u24 %s, 36864, %s" % (v(T), v(T)))
        a("v_and_b32 %s, 31, %s" % (v(T + 1), v(T + 5)))
        a("v_lshl_add_u32 %s, %s, 4, %s" % (v(T), v(T + 1), v(T)))
        a("v_lshl_add_u32 %s, %s, 9, %s" % (v(VXO), v(VH), v(T)))
        for k in range(9):
            ld("buffer_load_dwordx4 %s, %s, s[12:15], %s offen" % (v(X + 4 * k, 4), v(VXO), s(S_T0)), "x")
            a("s_add_u32 %s, %s, 1024" % (s(S_T0), s(S_T0)))
    def ldgu(c):
        for k in range(3 * c, 3 * c + 3):
            a("s_add_u32 %s, %s, %d" % (s(S_T0), s(S_A), k * 16 * 9216))
            ld("buffer_load_dwordx4 %s, %s, s[56:59], %s offen" % (v(GW + 8 * k, 4), v(VGO), s(S_T0)), "g%d" % c)
            ld("buffer_load_dwordx4 %s, %s, s[60:63], %s offen" % (v(GW + 8 * k + 4, 4), v(VGO), s(S_T0)), "g%d" % c)
    def ldd(hf):
        for t in range(5):
            a("s_add_u32 %s, %s, %d" % (s(S_T0), s(S_A if t < 4 else S_B), hf * 18432 + t * 4096))
            ld("buffer_load_dwordx4 %s, %s, s[64:67], %s offen" % (v(WD + 20 * hf + 4 * t, 4), v(VL16), s(S_T0)), "d%d" % hf)
    def m1(): ldgu(0)
    def m2():
        ldgu(1)
        a("s_lshl_b32 %s, %s, 10" % (s(S_T0), s(S_W)))
        a("s_min_u32 %s, %s, 1024" % (s(S_T1), s(S_T0)))
        a("v_add_u32 %s, %s, %s" % (v(VWD), s(S_T0), v(VL16)))
        a("v_add_u32 %s, %s, %s" % (v(VHW), s(S_T1), v(VL16)))
        a("v_add_u32 %s, %d, %s" % (v(VWD), SP, v(VWD)))
        a("v_add_u32 %s, %d, %s" % (v(VHW), SP + 16384, v(VHW)))
        a("s_lshl_b32 %s, %s, 12" % (s(S_T0), s(S_W)))
        a("s_add_u32 %s, %s, %d" % (s(S_T0), s(S_T0), SP))
        a("v_add_u32 %s, %s, %s" % (v(VST), s(S_T0), v(VL16)))
        a("v_bfe_u32 %s, %s, 2, 2" % (v(T), v(VLN)))
        a("v_bfe_u32 %s, %s, 4, 1" % (v(T + 1), v(VLN)))
        a("v_lshlrev_b32 %s, 5, %s" % (v(T + 1), v(T + 1)))
        a("v_and_b32 %s, 3, %s" % (v(T + 2), v(VLN)))
        a("v_lshl_add_u32 %s, %s, 3, %s" % (v(T + 1), v(T + 2), v(T + 1)))
        a("v_lshl_add_u32 %s, %s, 3, %s" % (v(T + 2), v(VH), v(T)))
        a("v_lshlrev_b32 %s, 6, %s" % (v(T + 2), v(T + 2)))
        a("v_add3_u32 %s, %s, %s, %s" % (v(VTR), v(T + 2), v(T + 1), s(S_T0)))
        a("v_lshl_add_u32 %s, %s, 2, %s" % (v(T + 2), v(VH), v(T)))
        a("v_mul_u32_u24 %s, 1152, %s" % (v(T + 2), v(T + 2)))
        a("s_lshl_b32 %s, %s, 6" % (s(S_T0), s(S_W)))
        a("s_add_u32 %s, %s, %d" % (s(S_T0), s(S_T0), SP))
        a("v_add3_u32 %s, %s, %s, %s" % (v(VTD), v(T + 2), v(T + 1), s(S_T0)))
        a("s_lshl_b32 %s, %s, 11" % (s(S_T0), s(S_W)))
        a("s_add_u32 %s, %s, %d" % (s(S_T0), s(S_T0), EX))
        a("v_add_u32 %s, %s, %s" % (v(VEW), s(S_T0), v(VL16B)))
        a("s_lshl_b32 %s, %s, 8" % (s(S_T0), s(S_W)))
        a("s_add_u32 %s, %s, %d" % (s(S_T0), s(S_T0), EX))
        a("v_add_u32 %s, %s, %s" % (v(VER), s(S_T0), v(VL16B)))
    def gu(k0, k1):
        def wr(k):
            for m in range(2): a("ds_write_b128 %s, %s offset:%d" % (v(VST), v(GW + 8 * k + 4 * m, 4), (k % 2) * 2048 + m * 1024))
        def rd(k):
            for m in range(2):
                for h in range(2):
                    a("ds_read_b64_tr_b16 %s, %s offset:%d" % (v(WFR + 8 * (k % 2) + 4 * m + 2 * h, 2), v(VTR), (k % 2) * 2048 + m * 1024 + h * 256))
        wr(k0); rd(k0)
        for k in range(k0, k1):
            if k + 1 < k1: wr(k + 1); rd(k + 1)
            a("s_waitcnt lgkmcnt(%d)" % (6 if k + 1 < k1 else 0))
            for m, d in enumerate((G, U)):
                a("v_mfma_f32_32x32x16_bf16 %s, %s, %s, %s" % (v(d, 16), v(WFR + 8 * (k % 2) + 4 * m, 4), v(X + 4 * k, 4), "0" if k == 0 else v(d, 16)))
    def m3():
        ldgu(2)
        a("s_mul_i32 %s, s2, 36864" % s(S_A))
        a("s_lshl_b32 %s, %s, 10" % (s(S_T0), s(S_W)))
        a("s_min_u32 %s, %s, 1024" % (s(S_T1), s(S_T0)))
        a("s_add_u32 %s, %s, %s" % (s(S_B), s(S_A), s(S_T1)))
        a("s_add_u32 %s, %s, %s" % (s(S_A), s(S_A), s(S_T0)))
        a("s_waitcnt vmcnt(%d)" % tv.need("g0"))
        gu(0, 3)
    def m4():
        ldd(0)
        a("s_waitcnt vmcnt(%d)" % tv.need("g1"))
        gu(3, 6)
    def m5():
        ldd(1)
        a("s_waitcnt vmcnt(%d)" % tv.need("g2"))
        gu(6, 9)
        a("v_and_b32 %s, 31, %s" % (v(T), v(VLN)))
        a("v_cmp_gt_u32 vcc, 8, %s" % v(T))
        a("s_nop 15")
        a("s_mov_b64 exec, vcc")
        for q in range(8): a("ds_write_b128 %s, %s offset:%d" % (v(VEW), v(G + 4 * q, 4), q * 256))
        a("s_mov_b64 exec, -1")
    def m6():
        for w in range(4):
            for gu_ in range(2):
                a("ds_read_b128 %s, %s offset:%d" % (v(8 * w + 4 * gu_, 4), v(VER), w * 2048 + gu_ * 1024))
        a("s_waitcnt vmcnt(%d)" % tv.need("d0"))
        for t in range(5): a("ds_write_b128 %s, %s offset:%d" % (v(VWD if t < 4 else VHW), v(WD + 4 * t, 4), t * 4096 if t < 4 else 0))
        a("s_waitcnt lgkmcnt(5)")
        for i in range(8):
            a("v_add_f32 %s, %s, %s" % (v(i), v(i), v(8 + i)))
            a("v_add_f32 %s, %s, %s" % (v(16 + i), v(16 + i), v(24 + i)))
        for i in range(8): a("v_add_f32 %s, %s, %s" % (v(i), v(i), v(16 + i)))
        for i in range(2):
            a("v_cvt_pk_bf16_f32 v8, %s, %s" % (v(2 * i), v(2 * i + 1)))
            a("v_cvt_pk_bf16_f32 v9, %s, %s" % (v(4 + 2 * i), v(4 + 2 * i + 1)))
            a("v_lshlrev_b32 v10, 16, v8")
            a("v_and_b32 v11, 0xffff0000, v8")
            a("v_mul_f32 v12, 0x%08x, v10" % f32bits(-math.log2(math.e)))
            a("v_mul_f32 v13, 0x%08x, v11" % f32bits(-math.log2(math.e)))
            a("v_exp_f32 v12, v12")
            a("v_exp_f32 v13, v13")
            a("v_add_f32 v12, 1.0, v12")
            a("v_add_f32 v13, 1.0, v13")
            a("v_rcp_f32 v12, v12")
            a("v_rcp_f32 v13, v13")
            a("v_mul_f32 v10, v10, v12")
            a("v_mul_f32 v11, v11, v13")
            a("v_cvt_pk_bf16_f32 v8, v10, v11")
            a("v_lshlrev_b32 v12, 16, v9")
            a("v_and_b32 v13, 0xffff0000, v9")
            a("v_lshlrev_b32 v10, 16, v8")
            a("v_and_b32 v11, 0xffff0000, v8")
            a("v_mul_f32 v10, v10, v12")
            a("v_mul_f32 v11, v11, v13")
            a("v_cvt_pk_bf16_f32 %s, v10, v11" % v(14 + i))
        a("s_lshr_b32 %s, %s, 1" % (s(S_T0), s(S_W)))
        a("s_lshl_b32 %s, %s, 8" % (s(S_T0), s(S_T0)))
        a("s_and_b32 %s, %s, 1" % (s(S_T1), s(S_W)))
        a("s_lshl_b32 %s, %s, 3" % (s(S_T1), s(S_T1)))
        a("s_add_u32 %s, %s, %s" % (s(S_T0), s(S_T0), s(S_T1)))
        a("s_add_u32 %s, %s, %d" % (s(S_T0), s(S_T0), HA))
        a("v_add_u32 %s, %s, %s" % (v(T), s(S_T0), v(VL16B)))
        a("ds_write_b64 %s, v[14:15]" % v(T))
    Y, H = 16, 0
    def down(ks):
        for j in range(5):
            for h in range(2):
                a("ds_read_b64_tr_b16 %s, %s offset:%d" % (v(G + 4 * j + 2 * h, 2), v(VTD), j * 256 + h * 8 * 1152))
        for j in range(5):
            a("s_waitcnt lgkmcnt(%d)" % (8 - 2 * j))
            a("v_mfma_f32_32x32x16_bf16 %s, %s, %s, %s" % (v(Y + 16 * j, 16), v(G + 4 * j, 4), v(H + 4 * ks, 4), "0" if ks == 0 else v(Y + 16 * j, 16)))
    def m7():
        a("v_add_u32 %s, %d, %s" % (v(T), HA, v(VL16B)))
        for k in range(2): a("ds_read_b128 %s, %s offset:%d" % (v(H + 4 * k, 4), v(T), k * 256))
        down(0)
    def m8():
        a("s_waitcnt vmcnt(%d)" % tv.need("d1"))
        for t in range(5): a("ds_write_b128 %s, %s offset:%d" % (v(VWD if t < 4 else VHW), v(WD + 20 + 4 * t, 4), t * 4096 if t < 4 else 0))
    def m9():
        down(1)
        a("v_and_b32 %s, 31, %s" % (v(T), v(VLN)))
        a("v_mul_u32_u24 %s, 2304, %s" % (v(T + 1), v(T)))
        a("v_lshl_add_u32 %s, %s, 4, %s" % (v(T + 1), v(VH), v(T + 1)))
        a("v_mov_b32 %s, 0x40000000" % v(T + 2))
        a("v_cmp_gt_u32 vcc, 8, %s" % v(T))
        a("s_mul_i32 %s, s2, %d" % (s(S_T0), 8 * 2304))
        a("s_lshl_b32 %s, %s, 7" % (s(S_T1), s(S_W)))
        a("v_cndmask_b32 %s, %s, %s, vcc" % (v(T + 1), v(T + 2), v(T + 1)))
        a("s_add_u32 %s, %s, %s" % (s(S_T0), s(S_T0), s(S_T1)))
        a("s_add_u32 %s, %s, 0x%x" % (s(S_T0), s(S_T0), WS_YP))
        a("s_cmp_lt_u32 %s, 2" % s(S_W))
        a("s_cselect_b64 vcc, vcc, 0")
        a("s_nop 4")
        a("v_cndmask_b32 %s, %s, %s, vcc" % (v(T + 3), v(T + 2), v(T + 1)))
        for j in range(5):
            for r4 in range(4):
                ld("buffer_store_dwordx4 %s, %s, s[12:15], %s offen offset:%d" % (v(Y + 16 * j + 4 * r4, 4), v(T + 1 if j < 4 else T + 3), s(S_T0), j * 512 + r4 * 32), "y")
    return [m0, m1, m2, m3, m4, m5, m6, m7, m8, m9]

def yreduce_body(a, L0, NWG=48, NPART=144):
    L = lambda x: L0("yr_" + x)
    S_W, S_T0, S_T1 = 36, 37, 38
    a("s_cmp_ge_u32 s2, %d" % NWG)
    a("s_cbranch_scc1 %s" % L("end"))
    a("s_load_dwordx2 s[10:11], s[0:1], %d" % KA_WS)
    a("s_load_dwordx2 s[28:29], s[0:1], %d" % KA_DBG)
    a("v_lshrrev_b32 v1, 6, v0")
    a("v_and_b32 v2, 63, v0")
    a("v_readfirstlane_b32 %s, v1" % s(S_W))
    a("v_mul_u32_u24 v6, 0xaab, v2")
    a("v_lshrrev_b32 v6, 16, v6")
    a("v_mul_u32_u24 v7, 24, v6")
    a("v_sub_u32 v7, v2, v7")
    a("v_lshlrev_b32 v7, 4, v7")
    a("v_mul_u32_u24 v8, %d, v6" % (8 * 2304))
    a("v_add_u32 v8, v8, v7")
    a("v_mov_b32 v9, 0x40000000")
    a("v_cmp_gt_u32 vcc, 48, v2")
    a("s_mul_i32 %s, s2, 384" % s(S_T1))
    a("s_mul_i32 %s, %s, %d" % (s(S_T0), s(S_W), 2 * 8 * 2304))
    a("v_cndmask_b32 v8, v9, v8, vcc")
    a("s_add_u32 %s, %s, %s" % (s(S_T0), s(S_T0), s(S_T1)))
    a("s_add_u32 %s, %s, 0x%x" % (s(S_T0), s(S_T0), WS_YP))
    a("s_mul_i32 s39, s2, 43")
    a("s_lshr_b32 s39, s39, 8")
    a("s_lshl_b32 s39, s39, 2")
    a("s_add_u32 s39, s39, 0x%x" % (WS_SEL + 32))
    a("v_mov_b32 v4, 0"); a("v_mov_b32 v5, 1")
    a("s_waitcnt lgkmcnt(0)")
    srd(a, 24, 10, WS_BYTES)
    a("s_mov_b32 s30, 256"); a("s_mov_b32 s31, 0x20000")
    a("buffer_load_dword v10, v4, s[24:27], s39 offen")
    NL = NPART // 8
    for it in range(NL):
        a("buffer_load_dwordx4 %s, v8, s[24:27], %s offen" % (v(32 + 4 * it, 4), s(S_T0)))
        a("s_add_u32 %s, %s, %d" % (s(S_T0), s(S_T0), 8 * 8 * 2304))
    a("v_lshlrev_b32 v11, 4, v0")
    for it in range(1, NL):
        if it % 4 == 1: a("s_waitcnt vmcnt(%d)" % max(NL - it - 4, 0))
        for i in range(4): a("v_add_f32 %s, %s, %s" % (v(32 + i), v(32 + i), v(32 + 4 * it + i)))
    a("ds_write_b128 v11, v[32:35]")
    a("s_waitcnt lgkmcnt(0)")
    a("s_barrier")
    a("s_cmp_eq_u32 %s, 0" % s(S_W))
    a("s_cbranch_scc0 %s" % L("end"))
    for g in range(8):
        a("ds_read_b128 %s, v7 offset:%d" % (v(32 + 4 * g, 4), (g // 2) * 1024 + (g % 2) * 384))
    a("v_cmp_gt_u32 vcc, 24, v2")
    a("s_add_u32 %s, %s, 0x%x" % (s(S_T0), s(S_T1), WS_YF))
    a("s_waitcnt lgkmcnt(0)")
    a("v_cndmask_b32 v7, v9, v7, vcc")
    for g in range(1, 8):
        for i in range(4): a("v_add_f32 %s, %s, %s" % (v(32 + i), v(32 + i), v(32 + 4 * g + i)))
    for i in range(4): a("v_mul_f32 %s, %s, v10" % (v(32 + i), v(32 + i)))
    a("buffer_store_dwordx4 v[32:35], v7, s[24:27], %s offen sc1" % s(S_T0))
    a("s_waitcnt vmcnt(0)")
    a("s_mov_b64 exec, 1")
    a("buffer_atomic_add v5, v4, s[28:31], 0 offen offset:196 sc1")
    a.label(L("end"))
    a("s_endpgm")
```

```python
from asmlib import *
from k2 import VM, f32bits
import math

def ln_code(S_ROW, S_T0, S_T1, VLANE, srd_ws, sc="", lds=None, S_W=36, xnr=True):
    a = Asm()
    X, XR, WR = 216, 200, 208
    t = [232 + i for i in range(8)]
    ACCV, MEAN, SD, RC, T0, T1, T2, OFF = t
    ST = s(S_T0)
    for i in range(8):
        a("v_lshlrev_b32 %s, 16, %s" % (v(X + 2 * i), v(XR + i)))
        a("v_and_b32 %s, 0xffff0000, %s" % (v(X + 2 * i + 1), v(XR + i)))
    a("v_add_f32 %s, %s, %s" % (v(ACCV), v(X), v(X + 1)))
    for i in range(2, 16): a("v_add_f32 %s, %s, %s" % (v(ACCV), v(ACCV), v(X + i)))
    wave_sum(a, ACCV)
    a("s_nop 1")
    a("v_readlane_b32 %s, %s, 63" % (ST, v(ACCV)))
    a("v_mov_b32 %s, 0x%08x" % (v(MEAN), f32bits(1.0 / 576)))
    a("s_nop 1")
    a("v_mul_f32 %s, %s, %s" % (v(MEAN), ST, v(MEAN)))
    a("v_sub_f32 %s, %s, %s" % (v(T0), v(X), v(MEAN)))
    a("v_mul_f32 %s, %s, %s" % (v(ACCV), v(T0), v(T0)))
    for i in range(1, 16):
        a("v_sub_f32 %s, %s, %s" % (v(T0), v(X + i), v(MEAN)))
        a("v_fmac_f32 %s, %s, %s" % (v(ACCV), v(T0), v(T0)))
    a("v_cmp_gt_u32 vcc, 36, %s" % v(VLANE))
    a("s_nop 1")
    a("v_cndmask_b32 %s, 0, %s, vcc" % (v(ACCV), v(ACCV)))
    wave_sum(a, ACCV)
    a("s_nop 1")
    a("v_readlane_b32 %s, %s, 63" % (ST, v(ACCV)))
    a("v_mov_b32 %s, 0x%08x" % (v(SD), f32bits(1.0 / 576)))
    a("s_nop 1")
    a("v_mul_f32 %s, %s, %s" % (v(SD), ST, v(SD)))
    a("v_cvt_pk_bf16_f32 %s, %s, %s" % (v(T0), v(MEAN), v(SD)))
    a("v_lshlrev_b32 %s, 16, %s" % (v(MEAN), v(T0)))
    a("v_and_b32 %s, 0xffff0000, %s" % (v(SD), v(T0)))
    a("v_add_f32 %s, 0x%08x, %s" % (v(SD), f32bits(1e-5), v(SD)))
    a("v_cvt_pk_bf16_f32 %s, %s, %s" % (v(SD), v(SD), v(SD)))
    a("v_lshlrev_b32 %s, 16, %s" % (v(SD), v(SD)))
    a("v_sqrt_f32 %s, %s" % (v(SD), v(SD)))
    a("s_nop 0")
    a("v_cvt_pk_bf16_f32 %s, %s, %s" % (v(SD), v(SD), v(SD)))
    a("v_lshlrev_b32 %s, 16, %s" % (v(SD), v(SD)))
    a("v_rcp_f32 %s, %s" % (v(RC), v(SD)))
    a("v_mov_b32 %s, 0" % v(ACCV))
    for i in range(8):
        x0, x1 = X + 2 * i, X + 2 * i + 1
        a("v_sub_f32 %s, %s, %s" % (v(x0), v(x0), v(MEAN)))
        a("v_sub_f32 %s, %s, %s" % (v(x1), v(x1), v(MEAN)))
        a("v_cvt_pk_bf16_f32 %s, %s, %s" % (v(T0), v(x0), v(x1)))
        a("v_lshlrev_b32 %s, 16, %s" % (v(x0), v(T0)))
        a("v_and_b32 %s, 0xffff0000, %s" % (v(x1), v(T0)))
        for x in (x0, x1):
            a("v_mul_f32 %s, %s, %s" % (v(T1), v(x), v(RC)))
            a("v_fma_f32 %s, -%s, %s, %s" % (v(T2), v(T1), v(SD), v(x)))
            a("v_fma_f32 %s, %s, %s, %s" % (v(x), v(T2), v(RC), v(T1)))
        a("v_cvt_pk_bf16_f32 %s, %s, %s" % (v(XR + i), v(x0), v(x1)))
        a("v_lshlrev_b32 %s, 16, %s" % (v(x0), v(XR + i)))
        a("v_and_b32 %s, 0xffff0000, %s" % (v(x1), v(XR + i)))
        a("v_lshlrev_b32 %s, 16, %s" % (v(T0), v(WR + i)))
        a("v_and_b32 %s, 0xffff0000, %s" % (v(T1), v(WR + i)))
        a("v_fmac_f32 %s, %s, %s" % (v(ACCV), v(x0), v(T0)))
        a("v_fmac_f32 %s, %s, %s" % (v(ACCV), v(x1), v(T1)))
    if lds is None:
        a("s_lshr_b32 %s, %s, 5" % (ST, s(S_ROW)))
        a("s_mul_i32 %s, %s, %d" % (ST, ST, 36 * 1024))
        a("s_and_b32 %s, %s, 31" % (s(S_T1), s(S_ROW)))
        a("s_lshl_b32 %s, %s, 4" % (s(S_T1), s(S_T1)))
        a("s_add_u32 %s, %s, %s" % (ST, ST, s(S_T1)))
        if WS_XNF: a("s_add_u32 %s, %s, 0x%x" % (ST, ST, WS_XNF))
        a("v_lshlrev_b32 %s, 10, %s" % (v(OFF), v(VLANE)))
        a("v_mov_b32 %s, 0x40000000" % v(T0))
        a("v_cndmask_b32 %s, %s, %s, vcc" % (v(OFF), v(T0), v(OFF)))
        a("buffer_store_dwordx4 %s, %s, %s, %s offen%s" % (v(XR, 4), v(OFF), s(srd_ws, 4), ST, sc))
        a("buffer_store_dwordx4 %s, %s, %s, %s offen offset:512%s" % (v(XR + 4, 4), v(OFF), s(srd_ws, 4), ST, sc))
    else:
        a("s_lshl_b32 %s, %s, 4" % (ST, s(S_W)))
        a("s_add_u32 %s, %s, %d" % (ST, ST, lds))
        a("v_min_u32 %s, 36, %s" % (v(OFF), v(VLANE)))
        a("v_lshl_add_u32 %s, %s, 8, %s" % (v(OFF), v(OFF), ST))
        a("v_mov_b32 %s, 0x40000000" % v(T0))
        a("ds_write_b128 %s, %s" % (v(OFF), v(XR, 4)))
        a("ds_write_b128 %s, %s offset:128" % (v(OFF), v(XR + 4, 4)))
    if xnr:
        a("s_mul_i32 %s, %s, 1152" % (s(S_T1), s(S_ROW)))
        a("s_add_u32 %s, %s, 0x%x" % (s(S_T1), s(S_T1), WS_XNR))
        a("v_lshlrev_b32 %s, 5, %s" % (v(OFF), v(VLANE)))
        a("v_cndmask_b32 %s, %s, %s, vcc" % (v(OFF), v(T0), v(OFF)))
        a("buffer_store_dwordx4 %s, %s, %s, %s offen%s" % (v(XR, 4), v(OFF), s(srd_ws, 4), s(S_T1), sc if lds is None else ""))
        a("buffer_store_dwordx4 %s, %s, %s, %s offen offset:16%s" % (v(XR + 4, 4), v(OFF), s(srd_ws, 4), s(S_T1), sc if lds is None else ""))
    wave_sum(a, ACCV)
    a("s_nop 1")
    a("v_cvt_pk_bf16_f32 %s, %s, %s" % (v(ACCV), v(ACCV), v(ACCV)))
    a("v_and_b32 %s, 0xffff, %s" % (v(ACCV), v(ACCV)))
    a("v_xor_b32 %s, 0xffff, %s" % (v(T1), v(ACCV)))
    a("v_or_b32 %s, 0x8000, %s" % (v(T2), v(ACCV)))
    a("v_cmp_lt_u32 vcc, 0x7fff, %s" % v(ACCV))
    a("s_sub_u32 %s, 2047, %s" % (s(S_T1), s(S_ROW)))
    a("s_nop 0")
    a("v_cndmask_b32 %s, %s, %s, vcc" % (v(ACCV), v(T2), v(T1)))
    a("v_lshlrev_b32 %s, 16, %s" % (v(ACCV), v(ACCV)))
    a("v_or_b32 %s, %s, %s" % (v(ACCV), s(S_T1), v(ACCV)))
    if lds is None:
        a("v_cmp_eq_u32 vcc, 63, %s" % v(VLANE))
        a("s_lshl_b32 %s, %s, 2" % (ST, s(S_ROW)))
        a("s_add_u32 %s, %s, 0x%x" % (ST, ST, WS_RKEY))
        a("v_cndmask_b32 %s, %s, 0, vcc" % (v(OFF), v(T0))) if False else None
        a("v_mov_b32 %s, 0" % v(T1))
        a("v_cndmask_b32 %s, %s, %s, vcc" % (v(OFF), v(T0), v(T1)))
        a("buffer_store_dword %s, %s, %s, %s offen%s" % (v(ACCV), v(OFF), s(srd_ws, 4), ST, sc))
    else:
        a("v_cmp_eq_u32 vcc, 63, %s" % v(VLANE))
        a("s_lshl_b32 %s, %s, 2" % (ST, s(S_W)))
        a("s_add_u32 %s, %s, %d" % (ST, ST, lds + 9728))
        a("v_mov_b32 %s, %s" % (v(T1), ST))
        a("v_mov_b32 %s, %d" % (v(T2), lds + 9792))
        a("v_cndmask_b32 %s, %s, %s, vcc" % (v(OFF), v(T2), v(T1)))
        a("ds_write_b32 %s, %s" % (v(OFF), v(ACCV)))
    return [l.strip() for l in a.lines]

PF = [(KA_CKV, 2048 * 1024), (KA_WUK, 512 * 8192), (KA_WUV, 512 * 8192), (KA_WQ, 576 * 8192), (KA_WO, 4096 * 1152),
      (KA_WG, 576 * 9216), (KA_WU, 576 * 9216), (KA_WD, 4608 * 1152)]

def gen_k1(a, name="k1_kernel", NS=5, stamps=False, pf=True, stsc=""):
    st = Stamps(a, stamps)
    NIT = 16
    SIG_IT = 12
    VARR, VAOF = 195, 196
    STG = 32768
    ACC = 0
    BUF = [128, 152]
    VWIN = [[176, 177, 178, 179], [180, 181, 182, 183], [184, 185, 186, 187]]
    VDA, VDW0, VDW1, VST, VLANE, VPF, VPFD = 188, 189, 190, 191, 192, 193, 194
    S_W, S_TYPE, S_MT, S_HP = 36, 37, 38, 39
    S_KA0, S_KA1, S_KW = 40, 41, 42
    S_M0A, S_M0W = 43, 44
    S_T0, S_T1, S_T2, S_ROW, S_L0, S_L1, S_PFO = 46, 47, 48, 49, 50, 51, 45
    S_PTR = 52
    kernel_begin(a, name)
    a("s_cmp_ge_u32 s2, 256")
    a("s_cbranch_scc1 %s_end" % name)
    a("s_load_dwordx4 s[4:7], s[0:1], 0")
    a("s_load_dwordx4 s[8:11], s[0:1], %d" % KA_WUK)
    a("s_load_dwordx2 s[12:13], s[0:1], %d" % KA_WR)
    a("s_load_dwordx2 s[14:15], s[0:1], %d" % KA_WS)
    a("s_load_dwordx2 s[52:53], s[0:1], %d" % KA_WQ)
    a("s_load_dwordx2 s[54:55], s[0:1], %d" % KA_WO)
    a("s_load_dwordx4 s[56:59], s[0:1], %d" % KA_WG)
    a("s_load_dwordx2 s[60:61], s[0:1], %d" % KA_WD)
    a("s_load_dwordx2 s[64:65], s[0:1], %d" % KA_DBG)
    st()
    a("v_lshrrev_b32 v1, 6, v0")
    a("v_and_b32 v2, 63, v0")
    a("v_readfirstlane_b32 %s, v1" % s(S_W))
    a("v_mov_b32 %s, v2" % v(VLANE))
    a("s_and_b32 %s, s2, 7" % s(S_T0))
    a("s_lshr_b32 %s, s2, 3" % s(S_T1))
    a("s_bfe_u32 %s, %s, 0x10001" % (s(S_TYPE), s(S_T1)))
    a("s_and_b32 %s, %s, 1" % (s(S_T2), s(S_T1)))
    a("s_lshl_b32 %s, %s, 1" % (s(S_HP), s(S_T0)))
    a("s_add_u32 %s, %s, %s" % (s(S_HP), s(S_HP), s(S_T2)))
    a("s_lshr_b32 %s, %s, 2" % (s(S_MT), s(S_T1)))
    a("v_lshrrev_b32 v4, 2, v2")
    a("v_lshlrev_b32 v4, 10, v4")
    a("v_and_b32 v5, 3, v2")
    a("v_lshrrev_b32 v6, 4, v2")
    a("v_xor_b32 v5, v5, v6")
    a("v_lshl_add_u32 v4, v5, 4, v4")
    a("s_lshl_b32 %s, %s, 18" % (s(S_T0), s(S_MT)))
    a("s_lshl_b32 %s, %s, 15" % (s(S_T1), s(S_W)))
    a("s_add_u32 %s, %s, %s" % (s(S_T0), s(S_T0), s(S_T1)))
    a("v_add_u32 %s, %s, v4" % (v(VDA), s(S_T0)))
    a("v_lshrrev_b32 v4, 5, v2")
    a("v_bfe_u32 v5, v2, 2, 3")
    a("v_and_b32 v6, 3, v2")
    a("s_lshl_b32 %s, %s, 9" % (s(S_T0), s(S_HP)))
    a("s_add_u32 %s, %s, %s" % (s(S_T0), s(S_T0), s(S_T1)))
    for e, vd in ((0, VDW0), (1, VDW1)):
        a("v_add_u32 v7, %d, v4" % (2 * e))
        a("v_xor_b32 v24, v5, v7")
        a("v_lshl_add_u32 v24, v24, 2, v6")
        a("v_lshlrev_b32 v24, 4, v24")
        a("v_lshl_add_u32 v24, v7, 13, v24")
        a("v_add_u32 %s, %s, v24" % (v(vd), s(S_T0)))
    a("s_lshl_b32 %s, %s, 11" % (s(S_M0A), s(S_W)))
    a("s_add_u32 %s, %s, 16384" % (s(S_M0W), s(S_M0A)))
    a("s_mov_b32 %s, 0" % s(S_KA0))
    a("s_mov_b32 %s, 16384" % s(S_KA1))
    a("s_mov_b32 %s, 0" % s(S_KW))
    a("s_lshl_b32 %s, s2, 3" % s(S_ROW))
    a("s_add_u32 %s, %s, %s" % (s(S_ROW), s(S_ROW), s(S_W)))
    a("s_cmp_eq_u32 %s, 0" % s(S_TYPE))
    a("s_waitcnt lgkmcnt(0)")
    a("s_mov_b32 s16, s6"); a("s_mov_b32 s17, s7"); a("s_mov_b32 s18, 0x%x" % (2048 * 1024)); a("s_mov_b32 s19, 0x20000")
    a("s_cselect_b32 s20, s8, s10"); a("s_cselect_b32 s21, s9, s11"); a("s_mov_b32 s22, 0x%x" % (512 * 8192)); a("s_mov_b32 s23, 0x20000")

    def dma(stage):
        base = (stage % NS) * STG
        g = []
        g.append(["s_add_u32 m0, %s, %d" % (s(S_M0A), base), "s_nop 0",
                  "buffer_load_dwordx4 %s, s[16:19], %s offen lds" % (v(VDA), s(S_KA0))])
        g.append(["s_add_u32 m0, %s, %d" % (s(S_M0A), base + 1024), "s_add_u32 %s, %s, 64" % (s(S_KA0), s(S_KA0)),
                  "buffer_load_dwordx4 %s, s[16:19], %s offen lds" % (v(VDA), s(S_KA1))])
        g.append(["s_add_u32 m0, %s, %d" % (s(S_M0W), base), "s_add_u32 %s, %s, 64" % (s(S_KA1), s(S_KA1)),
                  "buffer_load_dwordx4 %s, s[20:23], %s offen lds" % (v(VDW0), s(S_KW))])
        g.append(["s_add_u32 m0, %s, %d" % (s(S_M0W), base + 1024), "s_nop 0",
                  "buffer_load_dwordx4 %s, s[20:23], %s offen lds" % (v(VDW1), s(S_KW)),
                  "s_add_u32 %s, %s, %d" % (s(S_KW), s(S_KW), 32 * 8192)])
        return g
    ptr = {KA_CKV: 6, KA_WUK: 8, KA_WUV: 10, KA_WQ: 52, KA_WO: 54, KA_WG: 56, KA_WU: 58, KA_WD: 60}
    def pf_item(k):
        ka, size = PF[k]
        return ["s_mov_b32 s32, %s" % s(ptr[ka]), "s_mov_b32 s33, %s" % s(ptr[ka] + 1), "s_mov_b32 s34, 0x%x" % size,
                "s_mul_i32 %s, %s, %d" % (s(S_PFO), s(S_ROW), size // 2048),
                "buffer_load_dword %s, %s, s[32:35], %s offen" % (v(VPFD), v(VPF), s(S_PFO))]
    vm0 = VM()
    def put(g):
        for l in g: a(l)
    for sg in range(2):
        for g in dma(sg): put(g); vm0.issue(sg)
    a("s_mov_b32 s24, s14"); a("s_mov_b32 s25, s15"); a("s_mov_b32 s26, 0x%x" % WS_BYTES); a("s_mov_b32 s27, 0x20000")
    a("s_mov_b32 s28, s4"); a("s_mov_b32 s29, s5"); a("s_mov_b32 s30, 0x%x" % (2048 * 1152)); a("s_mov_b32 s31, 0x20000")
    a("s_mov_b32 s32, s12"); a("s_mov_b32 s33, s13"); a("s_mov_b32 s34, 1152"); a("s_mov_b32 s35, 0x20000")
    a("s_mul_i32 %s, %s, 1152" % (s(S_T0), s(S_ROW)))
    a("v_lshlrev_b32 v3, 5, v2")
    a("v_mov_b32 v4, 0x40000000")
    a("v_cmp_gt_u32 vcc, 36, v2")
    a("v_lshlrev_b32 %s, 6, v2" % v(VPF))
    a("v_lshlrev_b32 %s, 4, v2" % v(VST))
    a("v_cndmask_b32 v3, v4, v3, vcc")
    a("buffer_load_dwordx4 v[200:203], v3, s[28:31], %s offen" % s(S_T0))
    a("buffer_load_dwordx4 v[204:207], v3, s[28:31], %s offen offset:16" % s(S_T0))
    a("buffer_load_dwordx4 v[208:211], v3, s[32:35], 0 offen")
    a("buffer_load_dwordx4 v[212:215], v3, s[32:35], 0 offen offset:16")
    for _ in range(4): vm0.issue("ln")
    a("v_and_b32 v4, 31, v2")
    a("v_lshlrev_b32 v4, 6, v4")
    a("v_lshrrev_b32 v5, 5, v2")
    a("v_bfe_u32 v6, v2, 2, 2")
    a("v_xor_b32 v5, v5, v6")
    a("s_and_b32 %s, %s, 1" % (s(S_T0), s(S_W)))
    a("s_lshl_b32 %s, %s, 13" % (s(S_T0), s(S_T0)))
    a("v_add_u32 v4, %s, v4" % s(S_T0))
    a("v_lshl_add_u32 %s, v5, 4, v4" % v(VWIN[0][0]))
    a("v_xor_b32 v5, 2, v5")
    a("v_lshl_add_u32 %s, v5, 4, v4" % v(VWIN[0][1]))
    a("v_bfe_u32 v4, v2, 2, 2")
    a("v_lshrrev_b32 v5, 5, v2")
    a("v_lshl_add_u32 v5, v5, 3, v4")
    a("v_lshlrev_b32 v5, 9, v5")
    a("v_bfe_u32 v6, v2, 4, 1")
    a("v_lshl_add_u32 v5, v6, 5, v5")
    a("v_and_b32 v6, 3, v2")
    a("v_lshl_add_u32 v5, v6, 3, v5")
    a("v_add_u32 v5, 16384, v5")
    a("s_lshr_b32 %s, %s, 1" % (s(S_T0), s(S_W)))
    a("s_lshl_b32 %s, %s, 1" % (s(S_T0), s(S_T0)))
    for nb in range(2):
        a("s_add_u32 %s, %s, %d" % (s(S_T1), s(S_T0), nb))
        a("v_xor_b32 v6, %s, v4" % s(S_T1))
        a("v_lshl_add_u32 %s, v6, 6, v5" % v(VWIN[0][2 + nb]))
    for wdw in (1, 2):
        for k in range(4):
            a("v_add_u32 %s, 0x%x, %s" % (v(VWIN[wdw][k]), 65536 * wdw, v(VWIN[0][k])))

    def reads(it, ks, buf):
        base = (it % NS) * STG
        wdw, off = base // 65536, base % 65536
        B = BUF[buf]
        r = []
        for mb in range(4):
            r.append("ds_read_b128 %s, %s offset:%d" % (v(B + 4 * mb, 4), v(VWIN[wdw][ks]), off + mb * 2048))
        for nb in range(2):
            for h in range(2):
                r.append("ds_read_b64_tr_b16 %s, %s offset:%d" % (v(B + 16 + 4 * nb + 2 * h, 2), v(VWIN[wdw][2 + nb]), off + ks * 8192 + h * 2048))
        return [r[4], r[5], r[0], r[6], r[7], r[1], r[2], r[3]]
    def mfmas(buf, typ, first):
        B = BUF[buf]
        m = []
        for mb in range(4):
            for nb in range(2):
                d = ACC + (mb * 2 + nb) * 16
                af, wf = v(B + 4 * mb, 4), v(B + 16 + 4 * nb, 4)
                c = "0" if first else v(d, 16)
                if typ == 0: m.append("v_mfma_f32_32x32x16_bf16 %s, %s, %s, %s" % (v(d, 16), wf, af, c))
                else:        m.append("v_mfma_f32_32x32x16_bf16 %s, %s, %s, %s" % (v(d, 16), af, wf, c))
        return m

    st()
    a("s_waitcnt vmcnt(%d)" % vm0.need(0))
    a("s_barrier")
    st()
    for l in reads(0, 0, 0): a(l)
    a("s_cmp_eq_u32 %s, 0" % s(S_TYPE))
    a("s_cbranch_scc0 %s_vtype" % name)
    for typ in range(2):
        if typ == 1: a.label("%s_vtype" % name)
        vm = VM(); vm.q = list(vm0.q)
        pend = [(sg, g) for sg in range(2, NS) for g in dma(sg)]
        pfl = [("pf", pf_item(3))] if pf else []
        ln = ln_code(S_ROW, S_L0, S_L1, VLANE, 24, stsc)
        for gk in range(2 * NIT):
            it, ks = gk // 2, gk % 2
            a("s_waitcnt lgkmcnt(0)")
            mm = mfmas(ks, typ, gk == 0)
            rd = reads((gk + 1) // 2, (gk + 1) % 2, 1 - ks) if gk + 1 < 2 * NIT else []
            for i in range(8):
                a(mm[i])
                if ks == 1 and i == 0 and it + 1 < NIT:
                    a("s_waitcnt vmcnt(%d)" % vm.need(it + 1))
                    a("s_barrier")
                    if it + NS < NIT: pend += [(it + NS, g) for g in dma(it + NS)]
                    if pfl and it >= 13: pend.append(pfl.pop(0))
                if i < 4:
                    for l in rd[2 * i:2 * i + 2]: a(l)
                elif pend and (i != 5 or it < 2):
                    sg, g = pend.pop(0); put(g); vm.issue(sg)
                if gk == 4 and i == 0: a("s_waitcnt vmcnt(%d)" % vm.need("ln"))
                if gk >= 4:
                    for _ in range(1 if i < 4 else 2):
                        if ln:
                            l = ln.pop(0); a(l)
                            if l.startswith("buffer_"): vm.issue("lnst")
        assert not pend and not ln and not pfl, (len(pend), len(ln))
        if typ == 0: a("s_branch %s_epi" % name)
    a.label("%s_epi" % name)
    st()
    a("s_lshr_b32 %s, %s, 2" % (s(S_T0), s(S_W)))
    a("s_lshl_b32 %s, %s, 1" % (s(S_T1), s(S_HP)))
    a("s_add_u32 %s, %s, %s" % (s(S_T0), s(S_T0), s(S_T1)))
    a("s_lshl_b32 %s, %s, 6" % (s(S_T0), s(S_T0)))
    a("s_lshl_b32 %s, %s, 3" % (s(S_T1), s(S_MT)))
    a("s_add_u32 %s, %s, %s" % (s(S_T0), s(S_T0), s(S_T1)))
    a("s_and_b32 %s, %s, 1" % (s(S_T1), s(S_W)))
    a("s_lshl_b32 %s, %s, 2" % (s(S_T1), s(S_T1)))
    a("s_add_u32 %s, %s, %s" % (s(S_T0), s(S_T0), s(S_T1)))
    a("s_lshl_b32 %s, %s, 14" % (s(S_T0), s(S_T0)))
    a("s_lshl_b32 %s, %s, 13" % (s(S_T1), s(S_TYPE)))
    a("s_add_u32 %s, %s, %s" % (s(S_T0), s(S_T0), s(S_T1)))
    a("s_bfe_u32 %s, %s, 0x10001" % (s(S_T1), s(S_W)))
    a("s_lshl_b32 %s, %s, 12" % (s(S_T1), s(S_T1)))
    a("s_add_u32 %s, %s, %s" % (s(S_T0), s(S_T0), s(S_T1)))
    a("s_add_u32 %s, %s, 0x%x" % (s(S_T0), s(S_T0), WS_KV))
    a("s_mov_b32 %s, 0x%08x" % (s(S_T1), f32bits(math.log2(math.e) / math.sqrt(128.0))))
    a("s_cmp_eq_u32 %s, 0" % s(S_TYPE))
    a("s_cselect_b32 %s, %s, 1.0" % (s(S_T1), s(S_T1)))
    for mb in range(4):
        for nb in range(2):
            d = ACC + (mb * 2 + nb) * 16
            o = 128 + ((mb * 2 + nb) % 4) * 8
            for i in range(16):
                a("v_mul_f32 %s, %s, %s" % (v(d + i), s(S_T1), v(d + i)))
            for i in range(8):
                a("v_cvt_pk_bf16_f32 %s, %s, %s" % (v(o + i), v(d + 2 * i), v(d + 2 * i + 1)))
            a("buffer_store_dwordx4 %s, %s, s[24:27], %s offen offset:%d%s" % (v(o, 4), v(VST), s(S_T0), nb * 2048, stsc))
            a("buffer_store_dwordx4 %s, %s, s[24:27], %s offen offset:%d%s" % (v(o + 4, 4), v(VST), s(S_T0), nb * 2048 + 1024, stsc))
        a("s_add_u32 %s, %s, 16384" % (s(S_T0), s(S_T0)))
    st()
    st.dump(24, S_ROW, S_T1)
    a.label("%s_end" % name)
    a("s_endpgm")
    return dict(name=name, grid=256, block=512, lds=NS * STG, vgpr=240)


S_KVO, S_SCL = 68, 69
S_NONCE, S_FB = 87, 67
def phase1(a, name, st, check_fn, NS=4, first_part=None, early=False, xnr=True):
    NIT, STG, ACC = 16, 32768, 0
    SP = NS * STG
    PUB_IT, SIG_IT, CHK_IT = (4, 6, 9) if early else (8, 11, 14)
    VL16 = 243
    BUF = [128, 152]
    VWIN = [[176, 177, 178, 179], [180, 181, 182, 183], [184, 185, 186, 187]]
    VDA, VDW0, VDW1, VTID, VLANE, VPF, VPFD, VARR, VAOF = 188, 189, 190, 191, 192, 193, 194, 195, 196
    S_W = 36
    fl2 = [(None, ["buffer_load_dword %s, %s, s[12:15], %s offen offset:0 sc1" % (v(200 + k), v(184 + k), s(S_FB))]) for k in range(4)]
    S_TYPE, S_MT, S_HP, S_KA0, S_KA1, S_KW, S_M0A, S_M0W, S_ROW, S_L0, S_L1 = range(76, 87)
    S_T0, S_T1, S_T2 = 47, 48, 49
    a("v_and_b32 v2, 63, v0")
    a("v_mov_b32 %s, v2" % v(VLANE))
    a("v_mov_b32 %s, v0" % v(VTID))
    a("s_and_b32 %s, s2, 7" % s(S_T0))
    a("s_lshr_b32 %s, s2, 3" % s(S_T1))
    a("s_bfe_u32 %s, %s, 0x10001" % (s(S_TYPE), s(S_T1)))
    a("s_and_b32 %s, %s, 1" % (s(S_T2), s(S_T1)))
    a("s_lshl_b32 %s, %s, 1" % (s(S_HP), s(S_T0)))
    a("s_add_u32 %s, %s, %s" % (s(S_HP), s(S_HP), s(S_T2)))
    a("s_lshr_b32 %s, %s, 2" % (s(S_MT), s(S_T1)))
    a("v_lshrrev_b32 v4, 2, v2")
    a("v_lshlrev_b32 v4, 10, v4")
    a("v_and_b32 v5, 3, v2")
    a("v_lshrrev_b32 v6, 4, v2")
    a("v_xor_b32 v5, v5, v6")
    a("v_lshl_add_u32 v4, v5, 4, v4")
    a("s_lshl_b32 %s, %s, 18" % (s(S_T0), s(S_MT)))
    a("s_lshl_b32 %s, %s, 15" % (s(S_T1), s(S_W)))
    a("s_add_u32 %s, %s, %s" % (s(S_T0), s(S_T0), s(S_T1)))
    a("v_add_u32 %s, %s, v4" % (v(VDA), s(S_T0)))
    a("v_lshrrev_b32 v4, 5, v2")
    a("v_bfe_u32 v5, v2, 2, 3")
    a("v_and_b32 v6, 3, v2")
    a("s_lshl_b32 %s, %s, 9" % (s(S_T0), s(S_HP)))
    a("s_add_u32 %s, %s, %s" % (s(S_T0), s(S_T0), s(S_T1)))
    for e, vd in ((0, VDW0), (1, VDW1)):
        a("v_add_u32 v7, %d, v4" % (2 * e))
        a("v_xor_b32 v24, v5, v7")
        a("v_lshl_add_u32 v24, v24, 2, v6")
        a("v_lshlrev_b32 v24, 4, v24")
        a("v_lshl_add_u32 v24, v7, 13, v24")
        a("v_add_u32 %s, %s, v24" % (v(vd), s(S_T0)))
    a("s_lshl_b32 %s, %s, 11" % (s(S_M0A), s(S_W)))
    a("s_add_u32 %s, %s, 16384" % (s(S_M0W), s(S_M0A)))
    a("s_mov_b32 %s, 0" % s(S_KA0))
    a("s_mov_b32 %s, 16384" % s(S_KA1))
    a("s_mov_b32 %s, 0" % s(S_KW))
    a("s_lshl_b32 %s, s2, 3" % s(S_ROW))
    a("s_add_u32 %s, %s, %s" % (s(S_ROW), s(S_ROW), s(S_W)))
    a("s_cmp_eq_u32 %s, 0" % s(S_TYPE))
    a("s_waitcnt lgkmcnt(0)")
    a("s_mov_b32 s16, s56"); a("s_mov_b32 s17, s57"); a("s_mov_b32 s18, 0x%x" % (2048 * 1152)); a("s_mov_b32 s19, 0x20000")
    a("s_mov_b32 s56, s58"); a("s_mov_b32 s57, s59"); a("s_mov_b32 s58, 0x%x" % (2048 * 1024)); a("s_mov_b32 s59, 0x20000")
    a("s_cselect_b32 s60, s60, s62"); a("s_cselect_b32 s61, s61, s63"); a("s_mov_b32 s62, 0x%x" % (512 * 8192)); a("s_mov_b32 s63, 0x20000")
    def dma(stage):
        base = (stage % NS) * STG
        g = []
        g.append(["s_add_u32 m0, %s, %d" % (s(S_M0A), base), "s_nop 0",
                  "buffer_load_dwordx4 %s, s[56:59], %s offen lds" % (v(VDA), s(S_KA0))])
        g.append(["s_add_u32 m0, %s, %d" % (s(S_M0A), base + 1024), "s_add_u32 %s, %s, 64" % (s(S_KA0), s(S_KA0)),
                  "buffer_load_dwordx4 %s, s[56:59], %s offen lds" % (v(VDA), s(S_KA1))])
        g.append(["s_add_u32 m0, %s, %d" % (s(S_M0W), base), "s_add_u32 %s, %s, 64" % (s(S_KA1), s(S_KA1)),
                  "buffer_load_dwordx4 %s, s[60:63], %s offen lds" % (v(VDW0), s(S_KW))])
        g.append(["s_add_u32 m0, %s, %d" % (s(S_M0W), base + 1024), "s_nop 0",
                  "buffer_load_dwordx4 %s, s[60:63], %s offen lds" % (v(VDW1), s(S_KW)),
                  "s_add_u32 %s, %s, %d" % (s(S_KW), s(S_KW), 32 * 8192)])
        return g
    vm0 = VM()
    def put(g):
        for l in g: a(l)
    for sg in range(2):
        for g in dma(sg): put(g); vm0.issue(sg)
    a("s_mov_b32 s20, s64"); a("s_mov_b32 s21, s65"); a("s_mov_b32 s22, 1152"); a("s_mov_b32 s23, 0x20000")
    a("s_mul_i32 %s, %s, 1152" % (s(S_T0), s(S_ROW)))
    a("v_lshlrev_b32 v3, 5, v2")
    a("v_mov_b32 v4, 0x40000000")
    a("v_cmp_gt_u32 vcc, 36, v2")
    a("v_lshlrev_b32 %s, 6, v2" % v(VPF))
    a("s_memrealtime s[64:65]")
    a("v_cndmask_b32 v3, v4, v3, vcc")
    a("v_cmp_eq_u32 vcc, 0, v0")
    a("buffer_load_dwordx4 v[200:203], v3, s[16:19], %s offen" % s(S_T0))
    a("buffer_load_dwordx4 v[204:207], v3, s[16:19], %s offen offset:16" % s(S_T0))
    a("buffer_load_dwordx4 v[208:211], v3, s[20:23], 0 offen")
    a("buffer_load_dwordx4 v[212:215], v3, s[20:23], 0 offen offset:16")
    a("v_mov_b32 v5, 0")
    a("v_cndmask_b32 %s, v4, v5, vcc" % v(VAOF))
    for _ in range(4): vm0.issue("ln")
    a("s_mov_b32 s74, 256"); a("s_mov_b32 s75, 0x20000")
    a("s_waitcnt lgkmcnt(0)")
    a("s_or_b32 s64, s64, 1")
    a("v_mov_b32 v198, s64")
    a("v_mov_b32 v199, 0")
    a("v_mov_b32 v197, s64")
    a("buffer_atomic_cmpswap v[198:199], %s, s[72:75], 0 offen sc0 sc1" % v(VAOF))
    vm0.issue("tag")
    a("v_and_b32 v4, 31, v2")
    a("v_lshlrev_b32 v4, 6, v4")
    a("v_lshrrev_b32 v5, 5, v2")
    a("v_bfe_u32 v6, v2, 2, 2")
    a("v_xor_b32 v5, v5, v6")
    a("s_and_b32 %s, %s, 1" % (s(S_T0), s(S_W)))
    a("s_lshl_b32 %s, %s, 13" % (s(S_T0), s(S_T0)))
    a("v_add_u32 v4, %s, v4" % s(S_T0))
    a("v_lshl_add_u32 %s, v5, 4, v4" % v(VWIN[0][0]))
    a("v_xor_b32 v5, 2, v5")
    a("v_lshl_add_u32 %s, v5, 4, v4" % v(VWIN[0][1]))
    a("v_bfe_u32 v4, v2, 2, 2")
    a("v_lshrrev_b32 v5, 5, v2")
    a("v_lshl_add_u32 v5, v5, 3, v4")
    a("v_lshlrev_b32 v5, 9, v5")
    a("v_bfe_u32 v6, v2, 4, 1")
    a("v_lshl_add_u32 v5, v6, 5, v5")
    a("v_and_b32 v6, 3, v2")
    a("v_lshl_add_u32 v5, v6, 3, v5")
    a("v_add_u32 v5, 16384, v5")
    a("s_lshr_b32 %s, %s, 1" % (s(S_T0), s(S_W)))
    a("s_lshl_b32 %s, %s, 1" % (s(S_T0), s(S_T0)))
    for nb in range(2):
        a("s_add_u32 %s, %s, %d" % (s(S_T1), s(S_T0), nb))
        a("v_xor_b32 v6, %s, v4" % s(S_T1))
        a("v_lshl_add_u32 %s, v6, 6, v5" % v(VWIN[0][2 + nb]))
    for wdw in (1,):
        for k in range(4):
            a("v_add_u32 %s, 0x%x, %s" % (v(VWIN[wdw][k]), 65536 * wdw, v(VWIN[0][k])))
    K = s(S_KVO)
    a("s_lshr_b32 %s, %s, 2" % (K, s(S_W)))
    a("s_lshl_b32 %s, %s, 1" % (s(S_T1), s(S_HP)))
    a("s_add_u32 %s, %s, %s" % (K, K, s(S_T1)))
    a("s_lshl_b32 %s, %s, 6" % (K, K))
    a("s_lshl_b32 %s, %s, 3" % (s(S_T1), s(S_MT)))
    a("s_add_u32 %s, %s, %s" % (K, K, s(S_T1)))
    a("s_and_b32 %s, %s, 1" % (s(S_T1), s(S_W)))
    a("s_lshl_b32 %s, %s, 2" % (s(S_T1), s(S_T1)))
    a("s_add_u32 %s, %s, %s" % (K, K, s(S_T1)))
    a("s_lshl_b32 %s, %s, 14" % (K, K))
    a("s_lshl_b32 %s, %s, 13" % (s(S_T1), s(S_TYPE)))
    a("s_add_u32 %s, %s, %s" % (K, K, s(S_T1)))
    a("s_bfe_u32 %s, %s, 0x10001" % (s(S_T1), s(S_W)))
    a("s_lshl_b32 %s, %s, 12" % (s(S_T1), s(S_T1)))
    a("s_add_u32 %s, %s, %s" % (K, K, s(S_T1)))
    a("s_add_u32 %s, %s, 0x%x" % (K, K, WS_KV))
    a("s_mov_b32 %s, 0x%08x" % (s(S_SCL), f32bits(math.log2(math.e) / math.sqrt(128.0))))
    a("s_cmp_eq_u32 %s, 0" % s(S_TYPE))
    a("s_cselect_b32 %s, %s, 1.0" % (s(S_SCL), s(S_SCL)))
    a("s_lshl_b32 s66, %s, 4" % s(S_HP))
    a("s_lshl_b32 s67, %s, 1" % s(S_MT))
    a("s_add_u32 s66, s66, s67")
    a("s_add_u32 s66, s66, %s" % s(S_TYPE))
    a("s_lshl_b32 s66, s66, 6")
    a("s_add_u32 s66, s66, 0x%x" % (WS_FLAG + 16384))
    a("s_mov_b32 %s, 0x%x" % (s(S_FB), WS_FLAG))
    a("s_cmp_eq_u32 %s, 4" % s(S_W))
    a("s_cselect_b32 %s, 0, 0x40000000" % s(S_T1))
    a("v_add_u32 v184, %s, %s" % (s(S_T1), v(VPF)))
    for k in range(1, 4): a("v_add_u32 %s, %d, v184" % (v(184 + k), 4096 * k))
    if first_part: first_part()

    def reads(it, ks, buf):
        base = (it % NS) * STG
        wdw, off = base // 65536, base % 65536
        B = BUF[buf]
        r = []
        for mb in range(4):
            r.append("ds_read_b128 %s, %s offset:%d" % (v(B + 4 * mb, 4), v(VWIN[wdw][ks]), off + mb * 2048))
        for nb in range(2):
            for h in range(2):
                r.append("ds_read_b64_tr_b16 %s, %s offset:%d" % (v(B + 16 + 4 * nb + 2 * h, 2), v(VWIN[wdw][2 + nb]), off + ks * 8192 + h * 2048))
        return [r[4], r[5], r[0], r[6], r[7], r[1], r[2], r[3]]
    def mfmas(buf, typ, first):
        B = BUF[buf]
        m = []
        for mb in range(4):
            for nb in range(2):
                d = ACC + (mb * 2 + nb) * 16
                af, wf = v(B + 4 * mb, 4), v(B + 16 + 4 * nb, 4)
                c = "0" if first else v(d, 16)
                if typ == 0: m.append("v_mfma_f32_32x32x16_bf16 %s, %s, %s, %s" % (v(d, 16), wf, af, c))
                else:        m.append("v_mfma_f32_32x32x16_bf16 %s, %s, %s, %s" % (v(d, 16), af, wf, c))
        return m
    a("s_waitcnt vmcnt(%d)" % vm0.need(0))
    a("s_barrier")
    if xnr: st()
    for l in reads(0, 0, 0): a(l)
    a("s_cmp_eq_u32 %s, 0" % s(S_TYPE))
    a("s_cbranch_scc0 %s_vtype" % name)
    for typ in range(2):
        if typ == 1: a.label("%s_vtype" % name)
        vm = VM(); vm.q = list(vm0.q)
        pend = [(sg, g) for sg in range(2, NS) for g in dma(sg)]
        pfq = [("pf", ["buffer_load_dword %s, v185, s[8:11], s64 offen" % v(VPFD)])]
        pfx = [("pf", ["buffer_load_dword %s, v186, s[12:15], s65 offen" % v(VPFD)]),
               ("pf", ["buffer_load_dword %s, v187, s[12:15], s65 offen" % v(VPFD)])]
        pfs = ["v_lshrrev_b32 v185, 1, %s" % v(VLANE), "v_lshlrev_b32 v185, 13, v185", "v_and_b32 v186, 1, %s" % v(VLANE),
               "v_lshl_add_u32 v185, v186, 7, v185", "v_mov_b32 v187, 0x40000000", "v_cmp_gt_u32 vcc, 18, %s" % v(VLANE),
               "s_mul_i32 s64, s38, 72", "s_mul_i32 s65, %s, 9" % s(S_W), "v_cndmask_b32 v185, v187, v185, vcc",
               "s_add_u32 s64, s64, s65", "s_lshl_b32 s64, s64, 13", "s_lshl_b32 s65, s37, 8", "s_add_u32 s64, s64, s65",
               "v_lshlrev_b32 v186, 7, %s" % v(VLANE), "v_cmp_gt_u32 vcc, 8, %s" % v(VLANE), "v_add_u32 v232, 8192, v186",
               "s_lshr_b32 s65, s2, 3", "s_lshl_b32 s65, s65, 3", "v_cndmask_b32 v187, v187, v232, vcc",
               "s_add_u32 s65, s65, %s" % s(S_W), "s_mul_i32 s65, s65, 9216", "s_add_u32 s65, s65, 0x%x" % WS_XNF]
        ln = ln_code(S_ROW, S_L0, S_L1, VLANE, 12, lds=SP, xnr=xnr)
        tagw = ["v_cmp_eq_u32 s[64:65], 0, v198", "v_mov_b32 v199, %d" % (SP + 9856), "v_add_u32 v199, v199, %s" % v(VAOF),
                "v_cndmask_b32 v198, v198, v197, s[64:65]", "v_min_u32 v199, %d, v199" % (SP + 9860), "ds_write_b32 v199, v198"]
        pub = ["s_lshl_b32 %s, %s, 10" % (s(S_L0), s(S_W)),
               "v_add_u32 v232, %s, %s" % (s(S_L0), v(VL16)),
               "v_add_u32 v232, %d, v232" % SP,
               "ds_read_b128 v[200:203], v232",
               "v_mov_b32 v233, %d" % (SP + 8192),
               "v_add_u32 v233, v233, %s" % v(VL16),
               "ds_read_b128 v[204:207], v233",
               "v_mov_b32 v234, %d" % (SP + 9856),
               "ds_read_b32 v235, v234",
               "v_lshrrev_b32 v234, 2, %s" % v(VL16),
               "v_add_u32 v236, %d, v234" % (SP + 9728),
               "ds_read_b32 v236, v236",
               "v_lshrrev_b32 v232, 3, %s" % v(VLANE),
               "v_lshlrev_b32 v232, 9, v232",
               "v_and_b32 v233, 7, %s" % v(VLANE),
               "v_lshl_add_u32 v232, v233, 4, v232",
               "s_lshr_b32 %s, s2, 2" % s(S_L0),
               "s_mul_i32 %s, %s, 36864" % (s(S_L0), s(S_L0)),
               "s_and_b32 %s, s2, 3" % s(S_L1),
               "s_lshl_b32 %s, %s, 7" % (s(S_L1), s(S_L1)),
               "s_add_u32 %s, %s, %s" % (s(S_L0), s(S_L0), s(S_L1)),
               "s_add_u32 %s, %s, 0x%x" % (s(S_L0), s(S_L0), WS_XNF),
               "s_lshl_b32 %s, %s, 12" % (s(S_L1), s(S_W)),
               "s_add_u32 %s, %s, %s" % (s(S_L1), s(S_L1), s(S_L0)),
               "s_add_u32 %s, %s, 32768" % (s(S_L0), s(S_L0)),
               "v_mov_b32 v237, 0x40000000",
               "v_cmp_gt_u32 vcc, 64, %s" % v(VTID),
               "s_waitcnt lgkmcnt(0)",
               "buffer_store_dwordx4 v[200:203], v232, s[12:15], %s offen sc1" % s(S_L1),
               "v_cndmask_b32 v233, v237, v232, vcc",
               "v_readfirstlane_b32 %s, v235" % s(S_NONCE),
               "buffer_store_dwordx4 v[204:207], v233, s[12:15], %s offen sc1" % s(S_L0),
               "v_cmp_gt_u32 vcc, 8, %s" % v(VTID),
               "s_lshl_b32 %s, s2, 5" % s(S_L0),
               "s_add_u32 %s, %s, 0x%x" % (s(S_L0), s(S_L0), WS_RKEY),
               "v_cndmask_b32 v233, v237, v234, vcc",
               "buffer_store_dword v236, v233, s[12:15], %s offen sc1" % s(S_L0),
               "v_mov_b32 %s, %s" % (v(VARR), s(S_NONCE)),
               "s_lshl_b32 %s, s2, 6" % s(S_L0),
               "s_add_u32 %s, %s, 0x%x" % (s(S_L0), s(S_L0), WS_FLAG)]
        fl = [("fl", g) for _, g in fl2]
        for gk in range(2 * NIT):
            it, ks = gk // 2, gk % 2
            a("s_waitcnt lgkmcnt(0)")
            mm = mfmas(ks, typ, gk == 0)
            rd = reads((gk + 1) // 2, (gk + 1) % 2, 1 - ks) if gk + 1 < 2 * NIT else []
            for i in range(8):
                a(mm[i])
                if ks == 1 and i == 0 and it + 1 < NIT:
                    n = vm.need(it + 1)
                    if it == PUB_IT: assert not ln
                    if it == SIG_IT:
                        assert not ln
                        n = min(n, vm.need("lnst"))
                    if it == CHK_IT:
                        a("s_cmp_eq_u32 %s, 4" % s(S_W))
                        a("s_cbranch_scc0 %s_lnc%d" % (name, typ))
                        a("s_waitcnt vmcnt(%d)" % vm.need("fl"))
                        check_fn("ln%d" % typ, [200, 201, 202, 203], [g[0] for _, g in fl2])
                        a.label("%s_lnc%d" % (name, typ))
                    a("s_waitcnt vmcnt(%d)" % n)
                    a("s_barrier")
                    if it == PUB_IT: ln += pub
                    if it == SIG_IT:
                        a("buffer_store_dword %s, %s, s[12:15], %s offen sc1" % (v(VARR), v(VAOF), s(S_L0)))
                        vm.issue("arr")
                    if it + NS < NIT: pend += [(it + NS, g) for g in dma(it + NS)]
                    if it == CHK_IT - 1: pend += fl
                    if early:
                        if it == CHK_IT: ln += pfs
                        if it == CHK_IT + 1: pend += pfq + pfx
                    elif it == 12:
                        pend.append(("pf", ["s_mul_i32 %s, %s, %d" % (s(S_T2), s(S_ROW), 576 * 8192 // 2048),
                                            "buffer_load_dword %s, %s, s[8:11], %s offen" % (v(VPFD), v(VPF), s(S_T2))]))
                if gk == 6 and i == 0:
                    a("s_waitcnt vmcnt(%d)" % vm.need("tag"))
                    put(tagw)
                if i < 4:
                    for l in rd[2 * i:2 * i + 2]: a(l)
                elif pend:
                    sg, g = pend.pop(0); put(g); vm.issue(sg)
                g0 = 2 if early else 4
                if gk == g0 and i == 0: a("s_waitcnt vmcnt(%d)" % vm.need("ln"))
                if gk >= g0:
                    for _ in range((5 if i < 4 else 7) if early else (3 if i < 4 else 4)):
                        if ln:
                            l = ln.pop(0); a(l)
                            if l.startswith("buffer_"): vm.issue("lnst")
        assert not pend and not ln, (len(pend), len(ln))
        if typ == 0: a("s_branch %s_epi" % name)
    a.label("%s_epi" % name)
    st()

def kv_convert(a):
    for j in range(8):
        d = 16 * j
        for i in range(8):
            a("v_mul_f32 %s, %s, %s" % (v(d + 2 * i), s(S_SCL), v(d + 2 * i)))
            a("v_mul_f32 %s, %s, %s" % (v(d + 2 * i + 1), s(S_SCL), v(d + 2 * i + 1)))
            a("v_cvt_pk_bf16_f32 %s, %s, %s" % (v(8 * j + i), v(d + 2 * i), v(d + 2 * i + 1)))

def kv_store_items(VL16, sc=" sc1"):
    it = []
    for c in range(16):
        mb, nb, sx = c // 4, (c // 2) % 2, c % 2
        g = ["buffer_store_dwordx4 %s, %s, s[12:15], %s offen offset:%d%s" % (v(4 * c, 4), v(VL16), s(S_KVO), nb * 2048 + sx * 1024, sc)]
        if c % 4 == 3: g.append("s_add_u32 %s, %s, 16384" % (s(S_KVO), s(S_KVO)))
        it.append(g)
    return it
```

```python
from asmlib import *
import struct, math
def f32bits(x): return struct.unpack("<I", struct.pack("<f", x))[0]

class VM:
    def __init__(self): self.q = []
    def issue(self, tag): self.q.append(tag)
    def need(self, tag):
        idx = max(i for i, t in enumerate(self.q) if t == tag)
        return len(self.q) - 1 - idx

O, S, NEGM, P, Q, FR, T = 0, [64, 80], 96, [112, 120], 128, 160, 192
QACC = 64
VL, VTS, VRB, VL16, VLQ, VDW, VNINF, VTMP = 240, 241, 242, 243, 244, 245, 246, 247
VWB = [248, 249, 250, 251]
VTM2, VTM3 = 252, 253
NXN = 12
XN = lambda k: 192 + 4 * (k % NXN)
S_W, S_H, S_I, S_QB, S_N, S_CNT, S_SLOT, S_SRC, S_DST, S_JL, S_J = 36, 37, 38, 39, 40, 41, 42, 43, 44, 45, 46
S_T0, S_T1, S_T2, S_RET = 47, 48, 49, 50
S_TH = 52
S_U0, S_SRC4, S_XN = 53, 54, 55
S_PF, VPF = 32, 255
S_P0 = 34
SLOT = 32768
THRESH = 65536.0

def gen_k2(a, name="k2_kernel", stamps=False, pfs=2048, fused=False, st_span=96, sig_u=4, kvsc=" sc1", dmasc=True, kvf_pos=134, exp='', mega=False):
    import km, k1, k3f
    L = lambda x: "%s_%s" % (name, x)
    nst = [0]
    def stamp():
        if stamps and fused:
            a("s_memrealtime %s" % s(88 + 2 * nst[0], 2)); nst[0] += 1
        elif stamps:
            a("s_memtime %s" % s(70 + 2 * nst[0], 2)); a("s_memrealtime %s" % s(86 + 2 * nst[0], 2)); nst[0] += 1
    kernel_begin(a, name)
    a("s_cmp_ge_u32 s2, 256")
    a("s_cbranch_scc1 %s" % L("end"))
    a("s_load_dwordx2 s[4:5], s[0:1], %d" % KA_WQ)
    a("s_load_dwordx2 s[6:7], s[0:1], %d" % KA_WS)
    a("s_load_dwordx2 s[24:25], s[0:1], %d" % KA_WO)
    a("s_load_dwordx4 s[28:31], s[0:1], %d" % KA_WG)
    a("s_load_dwordx2 s[26:27], s[0:1], %d" % KA_WD)
    ROT = 0
    if fused:
        a("s_load_dwordx4 s[56:59], s[0:1], 0")
        a("s_load_dwordx4 s[60:63], s[0:1], %d" % KA_WUK)
        a("s_load_dwordx2 s[64:65], s[0:1], %d" % KA_WR)
        a("s_load_dwordx2 s[72:73], s[0:1], %d" % KA_DBG)
    def check_fn(tag, regs, reload):
        lb = L("chk_" + tag)
        a("s_mov_b32 s35, 0x40000")
        a.label(lb)
        for r in regs: a("v_xor_b32 %s, s87, %s" % (v(r), v(r)))
        for r in regs[1:]: a("v_or_b32 %s, %s, %s" % (v(regs[0]), v(regs[0]), v(r)))
        a("v_cmp_ne_u32 vcc, 0, %s" % v(regs[0]))
        a("s_cbranch_vccz %s_ok" % lb)
        a("s_sub_u32 s35, s35, 1")
        a("s_cbranch_scc1 %s_ok" % lb)
        a("s_sleep 4")
        for l in reload: a(l)
        a("s_waitcnt vmcnt(0)")
        a("s_branch %s" % lb)
        a.label(lb + "_ok")
    LSC = " sc1" if (fused and exp != "nosc") else ""
    stamp()
    a("v_lshrrev_b32 v1, 6, v0")
    a("v_and_b32 v2, 63, v0")
    a("v_readfirstlane_b32 %s, v1" % s(S_W))
    mark0 = len(a.lines)
    a("s_and_b32 %s, s2, 7" % s(S_T0))
    a("s_lshr_b32 %s, s2, 3" % s(S_T1))
    a("s_and_b32 %s, %s, 3" % (s(S_T2), s(S_T1)))
    a("s_lshl_b32 %s, %s, 2" % (s(S_H), s(S_T0)))
    a("s_add_u32 %s, %s, %s" % (s(S_H), s(S_H), s(S_T2)))
    a("s_lshr_b32 %s, %s, 2" % (s(S_I), s(S_T1)))
    a("s_lshl_b32 %s, %s, 2" % (s(S_T0), s(S_I)))
    a("s_add_u32 %s, %s, %s" % (s(S_T0), s(S_T0), s(S_W)))
    a("s_sub_u32 %s, 67, %s" % (s(S_T1), s(S_T0)))
    a("s_cmp_lt_u32 %s, 4" % s(S_W))
    a("s_cselect_b32 %s, %s, %s" % (s(S_QB), s(S_T0), s(S_T1)))
    a("s_add_u32 %s, %s, 1" % (s(S_N), s(S_QB)))
    a("s_lshl_b32 %s, %s, 1" % (s(S_T0), s(S_I)))
    a("s_sub_u32 %s, 32, %s" % (s(S_JL), s(S_T0)))
    a("v_lshlrev_b32 %s, 4, v2" % v(VL16))
    a("v_lshrrev_b32 v3, 4, v2")
    a("v_bfe_u32 v4, v2, 2, 2")
    a("v_xor_b32 v4, v4, v3")
    a("v_and_b32 v5, 3, v2")
    a("v_lshl_add_u32 v4, v4, 2, v5")
    a("v_lshlrev_b32 v4, 4, v4")
    a("v_lshl_add_u32 %s, v3, 13, v4" % v(VDW))
    a("s_mul_i32 %s, %s, %d" % (s(S_XN), s(S_QB), 36 * 1024))
    if WS_XNF: a("s_add_u32 %s, %s, 0x%x" % (s(S_XN), s(S_XN), WS_XNF))
    a("s_lshl_b32 %s, %s, 13" % (s(S_DST), s(S_W)))
    a("s_lshl_b32 %s, %s, 18" % (s(S_SRC), s(S_W)))
    a("s_lshl_b32 %s, %s, 8" % (s(S_T0), s(S_H)))
    a("s_add_u32 %s, %s, %s" % (s(S_SRC), s(S_SRC), s(S_T0)))
    a("s_and_b32 %s, %s, 0x7ffff" % (s(S_SRC4), s(S_SRC)))
    a("s_lshl_b32 %s, %s, 20" % (s(S_T0), s(S_H)))
    a("s_add_u32 %s, %s, 0x%x" % (s(S_T0), s(S_T0), WS_KV))
    a("s_cmp_lt_u32 %s, 4" % s(S_W))
    a("s_waitcnt lgkmcnt(0)")
    a("s_mov_b32 s8, s4"); a("s_mov_b32 s9, s5"); a("s_mov_b32 s10, 0x%x" % (576 * 8192)); a("s_mov_b32 s11, 0x20000")
    a("s_mov_b32 s12, s6"); a("s_mov_b32 s13, s7"); a("s_mov_b32 s14, 0x%x" % WS_BYTES); a("s_mov_b32 s15, 0x20000")
    if not fused: a("s_cbranch_scc0 %s" % L("B"))
    setup_lines = a.lines[mark0:]
    if fused: del a.lines[mark0:]

    def xn_load(k):
        g = []
        if k % 4 == 0 and k: g.append("s_add_u32 %s, %s, 4096" % (s(S_XN), s(S_XN)))
        g.append("buffer_load_dwordx4 %s, %s, s[12:15], %s offen offset:%d%s" % (v(XN(k), 4), v(VL16), s(S_XN), (k % 4) * 1024, LSC))
        return g
    def wq_dma(u):
        g = []
        for q in range(8):
            g.append(["s_add_u32 m0, %s, %d" % (s(S_DST), ((u + ROT) % 4) * SLOT + q * 1024),
                      "s_add_u32 %s, %s, %d" % (s(S_T2), s(S_SRC if u < 4 else S_SRC4), (u * 128 + q * 4) * 8192),
                      "buffer_load_dwordx4 %s, s[8:11], %s offen lds" % (v(VDW), s(S_T2))])
        return g
    NV = 10 if pfs else 8
    def kv_dma(pf=bool(pfs)):
        g = []
        for q in range(8):
            pre = []
            if q == 0: pre = ["s_mov_b32 m0, %s" % s(S_DST), "s_max_i32 %s, %s, 0" % (s(S_U0), s(S_SRC)), "s_add_u32 %s, %s, 4096" % (s(S_T2), s(S_U0))]
            if q == 4: pre = ["s_add_u32 m0, %s, 4096" % s(S_DST), "s_add_u32 %s, %s, %d" % (s(S_DST), s(S_DST), SLOT)]
            ins = "buffer_load_dwordx4 %s, s[16:19], %s offen offset:%d%s lds" % (v(VL16), s(S_U0) if q < 4 else s(S_T2), (q % 4) * 1024, LSC if dmasc else "")
            post = []
            if q == 7: post = ["s_add_u32 %s, %s, 32768" % (s(S_SRC), s(S_SRC)), "s_and_b32 %s, %s, 0x1ffff" % (s(S_DST), s(S_DST))]
            g.append(pre + [ins] + post)
        if pf: g.append(["buffer_load_dword v254, %s, s[20:23], %s offen" % (v(VPF), s(S_PF)), "s_add_u32 %s, %s, %d" % (s(S_PF), s(S_PF), pfs)])
        return g
    def emit(gs):
        for g in gs:
            for l in g: a(l)
    def misc_setup(isA):
        a("s_add_u32 s16, s6, %s" % s(S_T0))
        a("s_addc_u32 s17, s7, 0")
        a("s_mov_b32 s18, 0x100000")
        a("s_mov_b32 s19, 0x20000")
        a("s_mov_b32 %s, 0x%08x" % (s(S_TH), f32bits(THRESH)))
        a("v_bfe_u32 v4, v2, 2, 2")
        a("v_lshrrev_b32 v5, 5, v2")
        a("v_lshl_add_u32 v6, v5, 3, v4")
        a("v_lshlrev_b32 v6, 8, v6")
        a("v_bfe_u32 v7, v2, 4, 1")
        a("v_lshl_add_u32 v6, v7, 5, v6")
        a("v_and_b32 v7, 3, v2")
        a("v_lshl_add_u32 v6, v7, 3, v6")
        for db in range(4):
            a("v_xor_b32 v7, %d, v4" % db)
            a("v_lshl_add_u32 %s, v7, 6, v6" % v(VWB[db]))
        a("v_and_b32 v7, 31, v2")
        a("v_lshlrev_b32 v5, 2, v5")
        a("v_sub_u32 %s, v7, v5" % v(VLQ))
        a("v_mov_b32 %s, 0xff800000" % v(VNINF))
        if isA and pfs:
            a("s_cmp_eq_u32 %s, 1" % s(S_W))
            a("s_cselect_b32 s20, s28, s24"); a("s_cselect_b32 s21, s29, s25")
            a("s_cmp_eq_u32 %s, 2" % s(S_W))
            a("s_cselect_b32 s20, s30, s20"); a("s_cselect_b32 s21, s31, s21")
            a("s_cmp_eq_u32 %s, 3" % s(S_W))
            a("s_cselect_b32 s20, s26, s20"); a("s_cselect_b32 s21, s27, s21")
            a("s_cmp_eq_u32 %s, 0" % s(S_W))
            a("s_cselect_b32 s33, 18432, 20736") if False else None
            a("s_mov_b32 s33, 20736")
            a("s_cselect_b32 s33, 18432, s33")
            a("s_mul_i32 %s, s2, s33" % s(S_PF))
            a("s_add_u32 s22, %s, s33" % s(S_PF))
            a("s_mov_b32 s23, 0x20000")
            a("v_lshlrev_b32 v4, 7, v2")
            a("v_mov_b32 v5, 0x40000000")
            a("v_cmp_gt_u32 vcc, %d, v2" % (pfs // 128))
            a("s_nop 1")
            a("v_cndmask_b32 %s, v5, v4, vcc" % v(VPF))

    def mask_block():
        for r in range(16):
            a("v_cmp_le_i32 vcc, %d, %s" % (8 * (r // 4) + r % 4, v(VLQ)))
            a("s_nop 1")
            a("v_cndmask_b32 %s, %s, %s, vcc" % (v(NEGM + r), v(VNINF), v(NEGM + r)))
        a("s_nop 1")

    def qk(p, g, c0=None):
        c = (c0 or v(NEGM, 16)) if g == 0 else v(S[p], 16)
        return "v_mfma_f32_32x32x16_bf16 %s, %s, %s, %s" % (v(S[p], 16), v(FR + 4 * g, 4), v(Q + 4 * g, 4), c)
    def pv(p, g):
        db, st = g % 4, g // 4
        return "v_mfma_f32_32x32x16_bf16 %s, %s, %s, %s" % (v(O + 16 * db, 16), v(FR + 4 * g, 4), v(P[p] + 4 * st, 4), v(O + 16 * db, 16))
    def rd_k(g, off):
        return "ds_read_b128 %s, %s offset:%d" % (v(FR + 4 * g, 4), v(VRB), off + g * 1024)
    def rd_v(g, off):
        return "ds_read_b128 %s, %s offset:%d" % (v(FR + 4 * g, 4), v(VRB), off + (g % 4) * 2048 + (g // 4) * 1024)
    stubs = []
    def sm_gaps(p):
        e = lambda i: v(T + i % 8)
        g = [[] for _ in range(16)]
        cnt = [1, 1, 2, 1, 2, 1, 2, 1, 1, 1, 1, 1, 1] if p == 0 else [2, 1, 2, 1, 1, 1, 2, 1, 1, 1, 1, 1, 1]
        i = 0; done = []
        for gi, c in enumerate(cnt):
            for _ in range(c): g[gi].append("v_exp_f32 %s, %s" % (e(i), v(S[p] + i))); i += 1
            done.append(i)
        for k in range(8):
            gi = next(x for x in range(13) if done[x] >= 2 * k + 2) + 1
            g[gi].append("v_cvt_pk_bf16_f32 %s, %s, %s" % (v(P[p] + k), e(2 * k), e(2 * k + 1)))
        for i in range(1, 16):
            gi = next(x for x in range(13) if done[x] >= i + 1) + 1
            g[gi].append("v_add_f32 %s, %s, %s" % (v(VTS), v(VTS) if i > 1 else e(0), e(i)))
        lb = a.newlabel(L("chk"))
        g[14].append("v_cmp_nge_f32 vcc, %s, %s" % (s(S_TH), v(VTS)))
        g[15] = ["s_cbranch_vccnz %s_slow" % lb, "@" + lb + "_back", "v_add_f32 %s, %s, %s" % (v(VL), v(VL), v(VTS))]
        stubs.append((lb, p))
        return g
    slot_salu = ["s_add_u32 %s, %s, %d" % (s(S_SLOT), s(S_SLOT), SLOT), "s_and_b32 %s, %s, 0x1ffff" % (s(S_SLOT), s(S_SLOT))]
    set_rb = "v_add_u32 %s, %s, %s" % (v(VRB), s(S_SLOT), v(VL16))
    def half(p, isA, dma=None):
        voff = 16384 if p == 0 else 24576
        koff = 0 if p == 0 else 8192
        gaps = sm_gaps(p)
        o = []
        for g in range(16):
            if g % 4 == 0:
                o.append("s_waitcnt vmcnt(%d) lgkmcnt(4)" % NV if (isA and p == 0 and g == 0) else "s_waitcnt lgkmcnt(4)")
            o.append(qk(1 - p, g) if g < 8 else pv(1 - p, g - 8))
            if p == 0 and g == 0: o += ["s_barrier", set_rb]
            rd = rd_v(g, voff) if g < 8 else rd_k(g - 8, koff)
            if g == 15: o += gaps[g][:2] + [rd] + gaps[g][2:]
            else: o += [rd] + gaps[g]
            if p == 1 and g == 11: o += slot_salu
            if dma and 1 <= g <= len(dma): o += dma[g - 1]
        return o
    def put(lst):
        for l in lst:
            if l.startswith("@"): a.label(l[1:])
            else: a(l)
    def half_tail(p):
        voff = 16384 if p == 0 else 24576
        gaps = sm_gaps(p)
        for g in range(8): a(rd_v(g, voff))
        for g in range(8): put(gaps[g])
        for g in range(8, 16):
            if g % 4 == 0: a("s_waitcnt lgkmcnt(%d)" % (12 - g))
            a(pv(1 - p, g - 8))
            put(gaps[g])
    def final_pv(p, voff):
        for g in range(8): a(rd_v(g, voff))
        for g in range(8):
            if g % 2 == 0: a("s_waitcnt lgkmcnt(%d)" % (6 - g))
            a(pv(p, g))

    if fused:
        def first_part():
            a.lines.extend(setup_lines)
            misc_setup(True)
            a("s_lshr_b32 s70, %s, 1" % s(S_H))
            a("s_lshl_b32 s70, s70, 10")
            a("s_add_u32 s70, s70, 0x%x" % (WS_FLAG + 16384))
        k1.phase1(a, name + "_p1", stamp, check_fn, first_part=first_part, xnr=not mega)
        a("s_cmp_lt_u32 %s, 4" % s(S_W))
        a("s_cbranch_scc0 %s" % L("B"))
    for team in "AB":
        isA = team == "A"
        TL = lambda x: L(team + "_" + x)
        if not isA: a.label(L("B"))
        def qphase(w0):
            vm = VM()
            D = 6
            barpos = lambda u: max(32 * u - D, -1)
            items = []
            for k in range(36):
                items.append((4 * (k - NXN) + 3 if k >= NXN else -1, 4 * k - 40, "x%d" % k, xn_load(k)))
            if isA:
                kvsw = []
                for u in range(1, 7):
                    gs = wq_dma(u) if u < 5 else kv_dma(pf=bool(pfs) and u == 6)
                    if u == 5:
                        gs[0] = ["s_mul_i32 %s, %s, 16384" % (s(S_T0), s(S_W)),
                                 "s_add_u32 %s, %s, %d" % (s(S_T1), s(S_T0), (-73728) & 0xffffffff),
                                 "s_cmp_lt_u32 %s, 2" % s(S_W),
                                 "s_cselect_b32 %s, %s, %s" % (s(S_SRC), s(S_T0), s(S_T1)),
                                 "s_add_u32 %s, %s, %d" % (s(S_DST), s(S_DST), SLOT * (1 + ROT))] + gs[0]
                    if fused and u >= 5:
                        kvsw += [("u%d" % u if q < 8 else "pf", g) for q, g in enumerate(gs)]
                        continue
                    for q, g in enumerate(gs):
                        items.append((barpos(u - 2) if u >= 4 else (0 if (fused and u == 3) else -1), 32 * u - 48 + q * 0.01, "u%d" % u if q < 8 else "pf", g))
            if fused:
                for c, g in enumerate(k1.kv_store_items(VL16, kvsc)):
                    pos = c * st_span // 16
                    if exp == "nost": g = ["s_nop 0"]
                    items.append((pos, pos - 60, "kvst", g))
            kvfl = ["v_bfe_u32 %s, %s, 4, 4" % (v(XN(1)), v(VL16)), "v_lshlrev_b32 %s, 6, %s" % (v(XN(1)), v(XN(1))),
                    "buffer_load_dword %s, %s, s[12:15], s70 offen sc1" % (v(XN(0)), v(XN(1)))]
            if fused and isA: items.append((kvf_pos, 1000, "kvf", kvfl))
            extra = []
            if w0:
                for i in range(8):
                    items.append((-1, -30 + i * 0.01, "key", ["s_mov_b32 s58, 0x%x" % (WS_RKEY + (i // 4) * 4096),
                                  "buffer_load_dwordx4 %s, %s, s[12:15], s58 offen offset:%d%s" % (v(Q + 4 * i, 4), v(VL16), (i % 4) * 1024, LSC)]))
                ea = Asm()
                for r in range(8): km.top8_round(ea, r, Q, VTM2, VTM3, 56, 57)
                km.top8_store(ea, VTM2, Q, VL16, 12, 58, sc="ldsonly" if mega else "", lds=4 * SLOT + km.SELL)
                extra = [l.strip() for l in ea.lines]
            items.sort(key=lambda x: x[1])
            if isA:
                for g in wq_dma(0):
                    put(g); vm.issue("u0")
            def pop_item(f):
                for it in items:
                    if it[0] <= f:
                        items.remove(it); put(it[3]); vm.issue(it[2]); return True
                return False
            for _ in range((12 if fused else 4) if isA else (12 if fused else 8)): pop_item(-1)
            if fused: k1.kv_convert(a)
            else: misc_setup(isA)
            def q_read(f):
                ks, db = f // 4, f % 4
                u, kk = ks // 8, ks % 8
                if kk == 0 and db == 0:
                    n = vm.need("u%d" % u) if isA else 63
                    if fused and u == sig_u:
                        assert vm.q.count("kvst") == 16
                        n = min(n, vm.need("kvst"))
                    if n < 63: a("s_waitcnt vmcnt(%d)" % n)
                    a("s_barrier")
                    if fused and u == sig_u and w0:
                        a("v_mov_b32 v254, s87")
                        a("s_mov_b64 exec, 1")
                        a("buffer_store_dword v254, off, s[12:15], s66 sc1")
                        a("s_mov_b64 exec, -1")
                        vm.issue("sig")
                    if u + ROT == 2:
                        for b in VWB: a("v_add_u32 %s, 0x10000, %s" % (v(b), v(b)))
                    if u + ROT == 4:
                        for b in VWB: a("v_subrev_u32 %s, 0x10000, %s" % (v(b), v(b)))
                off = ((u + ROT) % 2) * SLOT + kk * 4096
                for h in range(2):
                    a("ds_read_b64_tr_b16 %s, %s offset:%d" % (v(FR + 4 * (f % 8) + 2 * h, 2), v(VWB[db]), off + h * 1024))
            for f in range(D): q_read(f)
            for f in range(144):
                ks, db = f // 4, f % 4
                if f % 2 == 0:
                    nout = 2 * max(min(f + D, 144) - f - 2, 0)
                    w = "s_waitcnt lgkmcnt(%d)" % nout
                    if db == 0: w = "s_waitcnt vmcnt(%d) lgkmcnt(%d)" % (min(vm.need("x%d" % ks), 63), nout)
                    a(w)
                c = "0" if ks == 0 else v(QACC + 16 * db, 16)
                a("v_mfma_f32_32x32x16_bf16 %s, %s, %s, %s" % (v(QACC + 16 * db, 16), v(FR + 4 * (f % 8), 4), v(XN(ks), 4), c))
                if f + D < 144: q_read(f + D)
                pop_item(f)
                if not fused and 8 <= f < 72: a("v_mov_b32 %s, 0" % v(O + f - 8))
                if fused and 112 <= f:
                    for i in range(2): a("v_mov_b32 %s, 0" % v(O + 2 * (f - 112) + i))
                if extra and f == 32: a("s_waitcnt vmcnt(%d)" % min(vm.need("key"), 63))
                if f >= 32:
                    for _ in range(6):
                        if extra:
                            l = extra.pop(0); a(l)
                            if l.startswith("buffer_"): vm.issue("sel")
                            if l.startswith("ds_"): a("s_waitcnt lgkmcnt(0)")
            assert not items and not extra
            if fused and isA:
                a("s_waitcnt vmcnt(%d)" % vm.need("kvf"))
                check_fn("kv%d" % w0, [XN(0)], kvfl[-1:])
                for tag, g in kvsw: put(g); vm.issue(tag)
            for i in range(32):
                a("v_cvt_pk_bf16_f32 %s, %s, %s" % (v(Q + i), v(QACC + 2 * i), v(QACC + 2 * i + 1))) if i or (fused and isA) else a("s_nop 15\nv_cvt_pk_bf16_f32 %s, %s, %s" % (v(Q), v(QACC), v(QACC + 1)))
            for i in range(8): a("v_mov_b32 %s, 0" % v(P[1] + i))
            for i in range(16): a("v_mov_b32 %s, 0" % v(NEGM + i))
            a("s_waitcnt vmcnt(%d)" % vm.need("u5")) if isA else None
        if isA:
            a("s_cmp_eq_u32 %s, 0" % s(S_W))
            a("s_cbranch_scc0 %s" % TL("q123"))
            qphase(True)
            a("s_branch %s" % TL("qdone"))
            a.label(TL("q123"))
        qphase(False)
        a.label(TL("qdone"))
        stamp() if (isA and not mega) else None
        a("s_barrier")
        a("s_mov_b32 %s, %d" % (s(S_SLOT), (2 + ROT) * SLOT))
        a("v_add_u32 %s, %d, %s" % (v(VRB), (1 + ROT) * SLOT, v(VL16)))
        for g in range(8): a(rd_k(g, 0))
        a("v_mov_b32 %s, 0" % v(VL))
        a("s_lshr_b32 %s, %s, 1" % (s(S_CNT), s(S_N)))
        a("s_cmp_eq_u32 %s, 1" % s(S_N))
        a("s_cbranch_scc0 %s" % TL("nomask0"))
        mask_block()
        a.label(TL("nomask0"))
        dm = kv_dma() if isA else None
        for g in range(8):
            if g % 4 == 0: a("s_waitcnt lgkmcnt(4)")
            a(qk(0, g))
            a(rd_k(g, 8192))
            if dm: put(dm[g])
            if dm and g == 7 and len(dm) > 8: put(dm[8])
        a("s_nop 15")
        a("v_max3_f32 %s, %s, %s, %s" % (v(VTMP), v(S[0]), v(S[0] + 1), v(S[0] + 2)))
        for i in range(3, 15, 2):
            a("v_max3_f32 %s, %s, %s, %s" % (v(VTMP), v(VTMP), v(S[0] + i), v(S[0] + i + 1)))
        a("v_max_f32 %s, %s, %s" % (v(VTMP), v(VTMP), v(S[0] + 15)))
        a("v_mov_b32 %s, %s" % (v(VTM2), v(VTMP)))
        a("s_nop 1")
        a("v_permlane32_swap_b32 %s, %s" % (v(VTMP), v(VTM2)))
        a("s_nop 1")
        a("v_max_f32 %s, %s, %s" % (v(VTMP), v(VTMP), v(VTM2)))
        for i in range(16): a("v_sub_f32 %s, 0, %s" % (v(NEGM + i), v(VTMP)))
        for i in range(16): a("v_sub_f32 %s, %s, %s" % (v(S[0] + i), v(S[0] + i), v(VTMP)))
        stamp() if isA else None
        a("s_mov_b32 %s, %s" % (s(S_J), s(S_CNT)))
        a("s_cmp_eq_u32 %s, 0" % s(S_CNT))
        a("s_cbranch_scc1 %s" % TL("seqO2"))
        a("s_sub_u32 %s, %s, 1" % (s(S_CNT), s(S_CNT)))
        a("s_cmp_eq_u32 %s, 0" % s(S_CNT))
        a("s_cbranch_scc1 %s" % TL("endseq"))
        a("s_branch %s" % TL("h0"))
        def period_split():
            b = half(0, isA, kv_dma() if isA else None) + half(1, isA)
            idx = [i for i, l in enumerate(b) if "mfma" in l]
            b.insert(idx[16 + 13], "s_cmp_lg_u32 %s, 0" % s(S_CNT))
            b.insert(idx[16 + 9] + 1, "s_sub_u32 %s, %s, 1" % (s(S_CNT), s(S_CNT)))
            cut = idx[16 + 13] + 3
            assert "mfma" in b[cut - 1]
            return b[:cut], b[cut:]
        head, tail = period_split()
        a.raw(".p2align 6")
        a.label(TL("rot"))
        put(tail)
        a.label(TL("h0"))
        put(head)
        a("s_cbranch_scc1 %s" % TL("rot"))
        _, tail2 = period_split()
        stubs.pop(-2)
        put(tail2)
        a.label(TL("endseq"))
        a("s_bitcmp1_b32 %s, 0" % s(S_N))
        a("s_cbranch_scc1 %s" % TL("seqO"))
        mask_block()
        put(half(0, isA, kv_dma() if isA else None))
        half_tail(1)
        put(slot_salu)
        if isA: a("s_waitcnt vmcnt(%d)" % NV)
        a("s_barrier")
        a(set_rb)
        if isA: emit(kv_dma())
        final_pv(1, 16384)
        a("s_branch %s" % TL("epi"))
        a.label(TL("seqO"))
        put(half(0, isA, kv_dma() if isA else None))
        mask_block()
        put(half(1, isA))
        a.label(TL("seqO2"))
        if isA: a("s_waitcnt vmcnt(%d)" % NV)
        a("s_barrier")
        a(set_rb)
        if isA: emit(kv_dma())
        half_tail(0)
        final_pv(0, 24576)
        a.label(TL("epi"))
        a("v_mov_b32 %s, %s" % (v(VTM2), v(VL)))
        a("s_nop 1")
        a("v_permlane32_swap_b32 %s, %s" % (v(VL), v(VTM2)))
        a("s_lshl_b32 %s, %s, 5" % (s(S_T0), s(S_QB)))
        a("s_add_u32 %s, %s, %s" % (s(S_T0), s(S_T0), s(S_H)))
        a("v_add_f32 %s, %s, %s" % (v(VL), v(VL), v(VTM2)))
        a("v_rcp_f32 %s, %s" % (v(VL), v(VL)))
        if mega:
            a("s_lshl_b32 s71, %s, 6" % s(S_T0))
            a("s_add_u32 s71, s71, 0x%x" % k3f.F_CTX)
        a("s_lshl_b32 %s, %s, 13" % (s(S_T0), s(S_T0)))
        a("s_add_u32 %s, %s, 0x%x" % (s(S_T0), s(S_T0), WS_CTX))
        a("s_add_u32 %s, %s, 4096" % (s(S_T1), s(S_T0)))
        a("s_nop 7")
        for c in range(8):
            for i in range(8):
                a("v_mul_f32 %s, %s, %s" % (v(O + 8 * c + i), v(O + 8 * c + i), v(VL)))
            for i in range(4):
                a("v_cvt_pk_bf16_f32 %s, %s, %s" % (v(64 + 4 * c + i), v(O + 8 * c + 2 * i), v(O + 8 * c + 2 * i + 1)))
            a("buffer_store_dwordx4 %s, %s, s[12:15], %s offen offset:%d" % (v(64 + 4 * c, 4), v(VL16), s(S_T0) if c < 4 else s(S_T1), (c % 4) * 1024) + (" sc1" if mega else ""))
        stamp() if (isA and not mega) else None
        if mega and not isA:
            a("s_waitcnt vmcnt(0)")
            k3f.set_flag(a, 254, "s71")
            a("s_cmp_eq_u32 %s, 4" % s(S_W))
            a("s_cbranch_scc0 %s" % TL("noE"))
            a("s_barrier")
            a.label(TL("noE"))
            a("s_sub_u32 %s, s2, 192" % s(S_T0))
            a("s_cmp_lt_u32 %s, %d" % (s(S_T0), k3f.NMOE))
            a("s_cbranch_scc1 %s" % L("helper"))
        if mega and isA:
            a("v_lshrrev_b32 v0, 2, %s" % v(VL16))
            a("v_add_u32 v0, %d, v0" % (4 * SLOT + km.SELL))
            a("ds_read_b32 %s, v0" % v(VL))
            a("ds_read_b32 %s, v0 offset:256" % v(VL + 1))
            a("s_waitcnt lgkmcnt(0)")
            for j in range(8): a("v_readlane_b32 %s, %s, %d" % (s(k3f.S_IDX + j), v(VL), j))
        if isA:
            if not mega:
                a("s_cmp_lt_u32 s2, 144")
                a("s_cselect_b32 %s, 11, -1" % s(S_P0))
            a("s_waitcnt vmcnt(%d)" % (NV + 8))
            a("s_branch %s" % TL("ld_in"))
            a.label(TL("ld"))
            if not mega:
                a("s_cmp_eq_u32 %s, %s" % (s(S_J), s(S_P0)))
                a("s_cbranch_scc1 %s" % TL("moe"))
            a("s_waitcnt vmcnt(%d)" % NV)
            def ctx_flag(tag):
                a("s_cmp_eq_u32 s71, 0")
                a("s_cbranch_scc1 %s" % TL(tag))
                a("s_waitcnt vmcnt(%d)" % (NV - 1 if pfs else NV))
                k3f.set_flag(a, 0, "s71")
                a("s_mov_b32 s71, 0")
                a.label(TL(tag))
            if mega: ctx_flag("cf0")
            a.label(TL("ld_in"))
            a("s_barrier")
            a("s_add_u32 %s, %s, 1" % (s(S_J), s(S_J)))
            a("s_add_u32 %s, %s, 2" % (s(S_T0), s(S_J)))
            a("s_cmp_gt_u32 %s, %s" % (s(S_T0), s(S_JL)))
            a("s_cbranch_scc1 %s" % TL("ld_drain"))
            emit(kv_dma())
            a("s_branch %s" % TL("ld"))
            a.label(TL("ld_drain"))
            a("s_cmp_ge_u32 %s, %s" % (s(S_J), s(S_JL)))
            a("s_cbranch_scc1 %s" % TL("done"))
            a("s_waitcnt vmcnt(0)")
            if mega: ctx_flag("cf1")
            a("s_barrier")
            a("s_branch %s" % TL("done"))
            a.label(TL("moe"))
            tv = VM()
            npf = 1 if pfs else 0
            tv.q = [0] * 8 + ["pf"] * npf + [1] * 8 + ["pf"] * npf
            steps = km.moe_steps(a, tv, S_W, S_T0, S_T1, VL16, 4 * SLOT)
            for per, stp in enumerate(steps if not mega else []):
                a("s_waitcnt vmcnt(%d) lgkmcnt(0)" % tv.need(per))
                a("s_barrier")
                emit(kv_dma())
                tv.q += [per + 2] * 8 + ["pf"] * npf
                stp()
            if not mega:
                a("s_add_u32 %s, %s, %d" % (s(S_J), s(S_J), len(steps)))
                a("s_waitcnt vmcnt(%d)" % tv.need(len(steps)))
                a("s_branch %s" % TL("ld_in"))
            a.label(TL("done"))
            if mega:
                stamp()
                a("s_cmp_ge_u32 s2, 192")
                a("s_cbranch_scc1 %s" % L("p3moe"))
                rest = k3f.oproj(a, L, stamp, check_fn)
                a("s_barrier")
                rest()
                a("s_branch %s" % L("p3end"))
                a.label(L("p3moe"))
                a("s_cmp_ge_u32 s2, %d" % (192 + k3f.NMOE))
                a("s_cbranch_scc1 %s" % L("p3end"))
                rest = k3f.moe_main(a, L, check_fn, VL, stamps)
                a("s_barrier")
                rest()
                a.label(L("p3end"))
        if stamps and fused:
            if not isA:
                for i in range(2, 6): a("s_mov_b64 %s, s[90:91]" % s(88 + 2 * i, 2))
            nst[0] = 6
            a("s_waitcnt vmcnt(0)")
            stamp()
            a("s_waitcnt lgkmcnt(0)")
            a("s_lshl_b32 %s, s2, 3" % s(S_T0))
            a("s_add_u32 %s, %s, %s" % (s(S_T0), s(S_T0), s(S_W)))
            a("s_lshl_b32 %s, %s, 6" % (s(S_T0), s(S_T0)))
            a("s_add_u32 %s, %s, 0x%x" % (s(S_T0), s(S_T0), WS_STAMP))
            a("v_mov_b32 v1, 0")
            for i in range(7):
                a("v_mov_b32 v2, %s" % s(88 + 2 * i))
                a("buffer_store_dword v2, v1, s[12:15], %s offen offset:%d" % (s(S_T0), 4 * i))
        elif stamps:
            if not isA:
                nst[0] = 6 - 1
                for i in range(1, 5):
                    a("s_mov_b64 %s, s[70:71]" % s(70 + 2 * i, 2)); a("s_mov_b64 %s, s[86:87]" % s(86 + 2 * i, 2))
            stamp()
            a("s_waitcnt vmcnt(0)")
            stamp()
            a("s_waitcnt lgkmcnt(0)")
            a("s_lshl_b32 %s, s2, 3" % s(S_T0))
            a("s_add_u32 %s, %s, %s" % (s(S_T0), s(S_T0), s(S_W)))
            a("s_lshl_b32 %s, %s, 6" % (s(S_T0), s(S_T0)))
            a("s_add_u32 %s, %s, 0x%x" % (s(S_T0), s(S_T0), WS_STAMP))
            a("v_mov_b32 v1, 0")
            for i in range(nst[0]):
                a("v_mov_b32 v2, %s" % s(70 + 2 * i))
                a("buffer_store_dword v2, v1, s[12:15], %s offen offset:%d" % (s(S_T0), 4 * i))
                a("v_mov_b32 v2, %s" % s(86 + 2 * i))
                a("buffer_store_dword v2, v1, s[12:15], %s offen offset:%d" % (s(S_T0), 32 + 4 * i))
        a("s_endpgm")
    if mega:
        a.label(L("helper"))
        k3f.moe_helper(a, L, stamps)
    for lb, p in stubs:
        a.label(lb + "_slow")
        a("s_call_b64 %s, %s" % (s(S_RET, 2), L("slow%d" % p)))
        a("s_branch %s_back" % lb)
    for p in range(2):
        a.label(L("slow%d" % p))
        C, Nx = S[p], S[1 - p]
        a("s_nop 15")
        a("v_max3_f32 %s, %s, %s, %s" % (v(VTMP), v(C), v(C + 1), v(C + 2)))
        for i in range(3, 15, 2):
            a("v_max3_f32 %s, %s, %s, %s" % (v(VTMP), v(VTMP), v(C + i), v(C + i + 1)))
        a("v_max3_f32 %s, %s, %s, 0" % (v(VTMP), v(VTMP), v(C + 15)))
        a("v_mov_b32 %s, %s" % (v(VTM2), v(VTMP)))
        a("s_nop 1")
        a("v_permlane32_swap_b32 %s, %s" % (v(VTMP), v(VTM2)))
        a("s_nop 1")
        a("v_max_f32 %s, %s, %s" % (v(VTMP), v(VTMP), v(VTM2)))
        a("v_exp_f32 %s, -%s" % (v(VTM2), v(VTMP)))
        for i in range(16):
            a("v_sub_f32 %s, %s, %s" % (v(C + i), v(C + i), v(VTMP)))
            a("v_sub_f32 %s, %s, %s" % (v(Nx + i), v(Nx + i), v(VTMP)))
            a("v_sub_f32 %s, %s, %s" % (v(NEGM + i), v(NEGM + i), v(VTMP)))
        for i in range(64):
            a("v_mul_f32 %s, %s, %s" % (v(O + i), v(O + i), v(VTM2)))
        a("v_mul_f32 %s, %s, %s" % (v(VL), v(VL), v(VTM2)))
        a("v_mov_b32 %s, 0" % v(VTS))
        for k in range(8):
            a("v_exp_f32 %s, %s" % (v(T), v(C + 2 * k)))
            a("v_exp_f32 %s, %s" % (v(T + 1), v(C + 2 * k + 1)))
            a("v_add_f32 %s, %s, %s" % (v(VTS), v(VTS), v(T)))
            a("v_add_f32 %s, %s, %s" % (v(VTS), v(VTS), v(T + 1)))
            a("v_cvt_pk_bf16_f32 %s, %s, %s" % (v(P[p] + k), v(T), v(T + 1)))
        a("s_nop 1")
        a("s_setpc_b64 %s" % s(S_RET, 2))
    a.label(L("end"))
    a("s_endpgm")
    return dict(name=name, grid=256, block=512, lds=5 * SLOT, vgpr=256)
```

```python
from asmlib import *
from k2 import VM, f32bits
import math

F_CTX, F_TILE, F_MOEP, F_YF = WS_FLAG + 0x8000, WS_FLAG + 0x28000, WS_FLAG + 0x2C000, WS_FLAG + 0x2D000
NMOE = 48
S_IDX = 56
S_TAG = 87

def set_flag(a, vtmp, s_off):
    a("v_mov_b32 %s, s%d" % (v(vtmp), S_TAG))
    a("s_mov_b64 exec, 1")
    a("buffer_store_dword %s, off, s[12:15], %s sc1" % (v(vtmp), s_off))
    a("s_mov_b64 exec, -1")

def oproj(a, L, st, check_fn, NS=4):
    STG, NIT = 40960, 16
    ACC, BUF = 0, [96, 116, 152]
    VL16, VWOFF, VRC, VRW = 243, [137, 138, 139], [140, 141], [[142, 143, 144], [145, 146, 147]]
    VLN, VF, VFO = 148, 149, 150
    S_W, S_MT, S_NT, S_KQ, S_C, S_WS, S_WS2, S_MC, S_MW, S_T0, S_T1, S_T2 = 36, 37, 38, 39, 40, 41, 42, 43, 44, 45, 46, 47
    a("s_load_dwordx2 s[16:17], s[0:1], %d" % KA_X)
    a("s_load_dwordx2 s[20:21], s[0:1], %d" % KA_OUT)
    a("v_lshrrev_b32 v2, 4, %s" % v(VL16))
    a("v_mov_b32 %s, v2" % v(VLN))
    a("s_and_b32 %s, s2, 3" % s(S_KQ))
    a("s_lshr_b32 %s, s2, 3" % s(S_T1))
    a("s_mul_i32 %s, %s, 86" % (s(S_T2), s(S_T1)))
    a("s_lshr_b32 %s, %s, 8" % (s(S_T2), s(S_T2)))
    a("s_and_b32 %s, s2, 4" % s(S_MT))
    a("s_lshl_b32 %s, %s, 1" % (s(S_MT), s(S_MT)))
    a("s_add_u32 %s, %s, %s" % (s(S_MT), s(S_MT), s(S_T2)))
    a("s_mul_i32 %s, %s, 3" % (s(S_T2), s(S_T2)))
    a("s_sub_u32 %s, %s, %s" % (s(S_NT), s(S_T1), s(S_T2)))
    for q in range(3):
        a("v_add_u32 v3, %d, v2" % (64 * q))
        a("v_mul_u32_u24 v4, 0xaab, v3")
        a("v_lshrrev_b32 v4, 16, v4")
        a("v_mul_u32_u24 v5, 24, v4")
        a("v_sub_u32 v5, v3, v5")
        a("v_bfe_u32 v6, v4, 1, 1")
        a("v_lshlrev_b32 v6, 2, v6")
        a("v_xor_b32 v5, v5, v6")
        a("v_mul_u32_u24 v4, 1152, v4")
        a("v_lshl_add_u32 v4, v5, 4, v4")
        a("v_subrev_u32 %s, %d, v4" % (v(VWOFF[q]), 1024 * q))
    a("s_lshl_b32 %s, %s, 2" % (s(S_C), s(S_MT)))
    a("s_add_u32 %s, %s, %s" % (s(S_C), s(S_C), s(S_W)))
    a("s_lshl_b32 %s, %s, 18" % (s(S_C), s(S_C)))
    a("s_lshl_b32 %s, %s, 16" % (s(S_T0), s(S_KQ)))
    a("s_add_u32 %s, %s, %s" % (s(S_C), s(S_C), s(S_T0)))
    a("s_add_u32 %s, %s, 0x%x" % (s(S_C), s(S_C), WS_CTX))
    a("s_lshl_b32 %s, %s, 10" % (s(S_WS), s(S_KQ)))
    a("s_lshl_b32 %s, %s, 4" % (s(S_T0), s(S_W)))
    a("s_add_u32 %s, %s, %s" % (s(S_WS), s(S_WS), s(S_T0)))
    a("s_mul_i32 %s, %s, 1152" % (s(S_WS), s(S_WS)))
    a("s_mul_i32 %s, %s, 384" % (s(S_T0), s(S_NT)))
    a("s_add_u32 %s, %s, %s" % (s(S_WS), s(S_WS), s(S_T0)))
    a("s_add_u32 %s, %s, %d" % (s(S_WS2), s(S_WS), 8 * 1152))
    a("s_lshl_b32 %s, %s, 12" % (s(S_MC), s(S_W)))
    a("s_mul_i32 %s, %s, 6144" % (s(S_MW), s(S_W)))
    a("s_add_u32 %s, %s, 16384" % (s(S_MW), s(S_MW)))
    a("s_mov_b32 s8, s24"); a("s_mov_b32 s9, s25"); a("s_mov_b32 s10, 0x%x" % (4096 * 1152)); a("s_mov_b32 s11, 0x20000")
    a("v_and_b32 %s, 7, v2" % v(VFO))
    a("v_lshlrev_b32 %s, 6, %s" % (v(VFO), v(VFO)))
    a("s_lshl_b32 s48, %s, 2" % s(S_MT))
    a("s_add_u32 s48, s48, %s" % s(S_W))
    a("s_lshl_b32 s48, s48, 5")
    a("s_lshl_b32 %s, %s, 3" % (s(S_T0), s(S_KQ)))
    a("s_add_u32 s48, s48, %s" % s(S_T0))
    a("s_lshl_b32 s48, s48, 6")
    a("s_add_u32 s48, s48, 0x%x" % F_CTX)
    def dma_w(it):
        base = (it % NS) * STG
        g = []
        for grp, sw in ((0, S_WS), (1, S_WS2)):
            for q in range(3):
                pre = ["s_add_u32 m0, %s, %d" % (s(S_MW), base + grp * 3072), "s_nop 0"] if q == 0 else []
                post = ["s_add_u32 %s, %s, %d" % (s(sw), s(sw), 64 * 1152)] if q == 2 else []
                g.append(pre + ["buffer_load_dwordx4 %s, s[8:11], %s offen offset:%d lds" % (v(VWOFF[q]), s(sw), q * 1024)] + post)
        return g
    def dma_c(it):
        base = (it % NS) * STG
        g = []
        for q in range(4):
            pre = ["s_add_u32 m0, %s, %d" % (s(S_MC), base), "s_nop 0"] if q == 0 else []
            post = ["s_add_u32 %s, %s, 4096" % (s(S_C), s(S_C))] if q == 3 else []
            g.append(pre + ["buffer_load_dwordx4 %s, s[12:15], %s offen offset:%d sc1 lds" % (v(VL16), s(S_C), q * 1024)] + post)
        return g
    def put(g):
        for l in g: a(l)
    return_hook = {}
    def after_barrier_e():
        vm = VM()
        for it in range(NS):
            for g in dma_w(it): put(g); vm.issue(it)
        fl = ["buffer_load_dword %s, %s, s[12:15], s48 offen sc1" % (v(VF), v(VFO))]
        put(fl)
        a("s_and_b32 %s, %s, 1" % (s(S_T0), s(S_W)))
        a("s_lshl_b32 %s, %s, 13" % (s(S_T0), s(S_T0)))
        a("v_add_u32 %s, %s, %s" % (v(VRC[0]), s(S_T0), v(VL16)))
        a("v_add_u32 %s, %d, %s" % (v(VRC[1]), 2 * STG, v(VRC[0])))
        a("v_bfe_u32 v4, v2, 2, 2")
        a("v_lshrrev_b32 v5, 5, v2")
        a("v_lshl_add_u32 v5, v5, 2, v4")
        a("v_mul_u32_u24 v5, 384, v5")
        a("v_bfe_u32 v6, v2, 4, 1")
        a("v_lshl_add_u32 v5, v6, 5, v5")
        a("v_and_b32 v6, 3, v2")
        a("v_lshl_add_u32 v5, v6, 3, v5")
        a("v_add_u32 v5, 16384, v5")
        a("v_lshrrev_b32 v4, 1, v4")
        a("s_lshr_b32 %s, %s, 1" % (s(S_T0), s(S_W)))
        a("s_mul_i32 %s, %s, 3" % (s(S_T0), s(S_T0)))
        for mb in range(3):
            a("s_add_u32 %s, %s, %d" % (s(S_T1), s(S_T0), mb))
            a("v_xor_b32 v6, %s, v4" % s(S_T1))
            a("v_lshl_add_u32 %s, v6, 6, v5" % v(VRW[0][mb]))
            a("v_add_u32 %s, %d, %s" % (v(VRW[1][mb]), 2 * STG, v(VRW[0][mb])))
        a("s_waitcnt vmcnt(0) lgkmcnt(0)")
        check_fn("ctx", [VF], fl)
        st()
        vm = VM()
        for it in range(2):
            for g in dma_c(it): put(g); vm.issue(it)
        def reads(gk, buf):
            it, ks = gk // 4, gk % 4
            B = BUF[buf]
            r = []
            wdw, base = (it % NS) // 2, ((it % NS) % 2) * STG
            for mb in range(3):
                for h in range(2):
                    r.append("ds_read_b64_tr_b16 %s, %s offset:%d" % (v(B + 8 + 4 * mb + 2 * h, 2), v(VRW[wdw][mb]), base + ks * 6144 + h * 3072))
            for qb in range(2):
                r.append("ds_read_b128 %s, %s offset:%d" % (v(B + 4 * qb, 4), v(VRC[wdw]), base + qb * 4096 + ks * 1024))
            return [r[0], r[1], r[6], r[7], r[2], r[3], r[4], r[5]]
        def mfmas(buf, first):
            B = BUF[buf]
            m = []
            for mb in range(3):
                for qb in range(2):
                    d = ACC + (mb * 2 + qb) * 16
                    m.append("v_mfma_f32_32x32x16_bf16 %s, %s, %s, %s" % (v(d, 16), v(B + 8 + 4 * mb, 4), v(B + 4 * qb, 4), "0" if first else v(d, 16)))
            return m
        pend = [(sg, g) for sg in range(2, NS) for g in dma_c(sg)]
        for _ in range(4):
            sg, g = pend.pop(0); put(g); vm.issue(sg)
        a("s_waitcnt vmcnt(%d)" % vm.need(0))
        a("s_barrier")
        for l in reads(0, 0) + reads(1, 1): a(l)
        NK = NIT * 4
        for gk in range(NK):
            it, ks = gk // 4, gk % 4
            a("s_waitcnt lgkmcnt(%d)" % (8 if gk + 1 < NK else 0))
            mm = mfmas(gk % 3, gk == 0)
            rd = reads(gk + 2, (gk + 2) % 3) if gk + 2 < NK else []
            for i in range(6):
                a(mm[i])
                if ks == 2 and i == 0 and it + 1 < NIT:
                    a("s_waitcnt vmcnt(%d) lgkmcnt(0)" % vm.need(it + 1))
                    a("s_barrier")
                    if it + NS < NIT: pend += [(it + NS, g) for g in dma_c(it + NS) + dma_w(it + NS)]
                for l in rd[2 * i:2 * i + 2]: a(l)
                if pend and (i in (1, 4, 5)):
                    sg, g = pend.pop(0); put(g); vm.issue(sg)
        assert not pend
        st()
        a("s_lshl_b32 %s, %s, 6" % (s(S_T0), s(S_KQ)))
        a("s_lshl_b32 %s, %s, 2" % (s(S_T1), s(S_MT)))
        a("s_add_u32 %s, %s, %s" % (s(S_T0), s(S_T0), s(S_T1)))
        a("s_and_b32 %s, %s, 1" % (s(S_T2), s(S_W)))
        a("s_lshl_b32 %s, %s, 1" % (s(S_T2), s(S_T2)))
        a("s_add_u32 %s, %s, %s" % (s(S_T0), s(S_T0), s(S_T2)))
        a("s_mul_i32 %s, %s, 18" % (s(S_T0), s(S_T0)))
        a("s_mul_i32 %s, %s, 6" % (s(S_T1), s(S_NT)))
        a("s_add_u32 %s, %s, %s" % (s(S_T0), s(S_T0), s(S_T1)))
        a("s_lshr_b32 %s, %s, 1" % (s(S_T1), s(S_W)))
        a("s_mul_i32 %s, %s, 3" % (s(S_T1), s(S_T1)))
        a("s_add_u32 %s, %s, %s" % (s(S_T0), s(S_T0), s(S_T1)))
        a("s_lshl_b32 %s, %s, 11" % (s(S_T0), s(S_T0)))
        a("s_add_u32 %s, %s, 0x%x" % (s(S_T0), s(S_T0), WS_PART))
        a("s_lshl_b32 %s, %s, 12" % (s(S_T1), s(S_T1)))
        a("v_add_u32 v100, %s, %s" % (s(S_T1), v(VL16)))
        a("s_sub_u32 %s, %s, %s" % (s(S_T2), s(S_KQ), s(S_T2)))
        for qb in range(2):
            a("s_cmp_eq_u32 %s, %d" % (s(S_T2), qb))
            a("s_cbranch_scc1 %s" % L("own%d" % qb))
            for mb in range(3):
                d = ACC + (mb * 2 + qb) * 16
                o = 104 + 8 * mb
                for i in range(8): a("v_cvt_pk_bf16_f32 %s, %s, %s" % (v(o + i), v(d + 2 * i), v(d + 2 * i + 1)))
                a("s_add_u32 %s, %s, %d" % (s(S_T1), s(S_T0), (qb * 18 + mb) * 2048))
                for sx in range(2):
                    a("buffer_store_dwordx4 %s, %s, s[12:15], %s offen offset:%d sc1" % (v(o + 4 * sx, 4), v(VL16), s(S_T1), sx * 1024))
            a("s_branch %s" % L("nx%d" % qb))
            a.label(L("own%d" % qb))
            for mb in range(3):
                d = ACC + (mb * 2 + qb) * 16
                for r4 in range(4): a("ds_write_b128 v100, %s offset:%d" % (v(d + 4 * r4, 4), mb * 4096 + r4 * 1024))
            a.label(L("nx%d" % qb))
        S_QB, S_FT = 40, 41
        S_RO, S_PO, S_PD = [42, 43, 44], [48, 49, 50], [51, 52, 53]
        VRO, VQ, VH, YA, RES, PB = 96, 99, 101, 160, 208, 0
        a("s_mov_b32 s18, 0x%x" % (2048 * 1152)); a("s_mov_b32 s19, 0x20000")
        a("s_mov_b32 s22, 0x%x" % (2048 * 1152)); a("s_mov_b32 s23, 0x20000")
        a("s_lshl_b32 %s, %s, 2" % (s(S_QB), s(S_MT)))
        a("s_add_u32 %s, %s, %s" % (s(S_QB), s(S_QB), s(S_KQ)))
        a("s_mul_i32 %s, %s, 3" % (s(S_FT), s(S_MT)))
        a("s_add_u32 %s, %s, %s" % (s(S_FT), s(S_FT), s(S_NT)))
        a("s_lshl_b32 %s, %s, 8" % (s(S_FT), s(S_FT)))
        a("s_add_u32 %s, %s, 0x%x" % (s(S_FT), s(S_FT), F_TILE))
        a("v_and_b32 %s, 31, %s" % (v(VQ), v(VLN)))
        a("v_lshrrev_b32 %s, 5, %s" % (v(VH), v(VLN)))
        a("v_mul_u32_u24 %s, 1152, %s" % (v(VRO), v(VQ)))
        a("v_lshl_add_u32 %s, %s, 4, %s" % (v(VRO), v(VH), v(VRO)))
        a("v_and_b32 %s, 3, %s" % (v(VFO), v(VLN)))
        a("v_lshlrev_b32 %s, 6, %s" % (v(VFO), v(VFO)))
        for i in range(24): a("v_mov_b32 %s, 0" % v(YA + i))
        for t in range(3):
            a("s_mul_i32 %s, %s, 3" % (s(S_T0), s(S_W)))
            a("s_mul_i32 %s, %s, 12" % (s(S_T1), s(S_NT)))
            a("s_add_u32 %s, %s, %s" % (s(S_T0), s(S_T0), s(S_T1)))
            a("s_add_u32 %s, %s, %d" % (s(S_T0), s(S_T0), t))
            a("s_mul_i32 %s, %s, %d" % (s(S_T1), s(S_QB), 32 * 1152))
            a("s_lshl_b32 %s, %s, 5" % (s(S_T2), s(S_T0)))
            a("s_add_u32 %s, %s, %s" % (s(S_RO[t]), s(S_T1), s(S_T2)))
            a("s_mul_i32 %s, %s, 36" % (s(S_T1), s(S_QB)))
            a("s_add_u32 %s, %s, %s" % (s(S_T1), s(S_T1), s(S_T0)))
            a("s_lshl_b32 %s, %s, 10" % (s(S_PO[t]), s(S_T1)))
            a("buffer_load_dwordx4 %s, %s, s[16:19], %s offen" % (v(RES + 8 * t, 4), v(VRO), s(S_RO[t])))
            if WS_XNF: raise Exception("XNF offset assumed 0")
            a("buffer_load_dwordx4 %s, %s, s[12:15], %s offen sc1" % (v(RES + 8 * t + 4, 4), v(VL16), s(S_PO[t])))
        for d in range(3):
            a("s_add_u32 %s, %s, %d" % (s(S_PD[d]), s(S_KQ), d + 1))
            a("s_and_b32 %s, %s, 3" % (s(S_PD[d]), s(S_PD[d])))
            a("s_mul_i32 %s, %s, %d" % (s(S_PD[d]), s(S_PD[d]), 64 * 18 * 2048))
            a("s_add_u32 %s, %s, 0x%x" % (s(S_PD[d]), s(S_PD[d]), WS_PART))
        a("s_mul_i32 %s, %s, 6144" % (s(S_T0), s(S_W)))
        a("v_add_u32 v102, %s, %s" % (s(S_T0), v(VL16)))
        a("s_lshl_b32 %s, %s, 6" % (s(S_T0), s(S_KQ)))
        a("s_add_u32 %s, %s, %s" % (s(S_T0), s(S_T0), s(S_FT)))
        a("s_waitcnt vmcnt(6) lgkmcnt(0)")
        a("s_barrier")
        a("s_cmp_eq_u32 %s, 0" % s(S_W))
        a("s_cbranch_scc0 %s" % L("nosig"))
        set_flag(a, 103, s(S_T0))
        a.label(L("nosig"))
        for t in range(3):
            for r in range(2): a("ds_read_b128 %s, v102 offset:%d" % (v(PB + 32 * t + 4 * r, 4), t * 2048 + r * 1024))
        a("s_lshl_b32 %s, %s, 5" % (s(S_T2), s(S_QB)))
        for j in range(8):
            a("s_sub_u32 %s, %s, %s" % (s(S_T0), s(S_IDX + j), s(S_T2)))
            a("s_cmp_lt_u32 %s, 32" % s(S_T0))
            a("s_cbranch_scc0 %s" % L("m%d" % j))
            a("s_mov_b32 s64, %d" % j)
            a("s_call_b64 s[66:67], %s" % L("addy"))
            a.label(L("m%d" % j))
        fl = ["buffer_load_dword %s, %s, s[12:15], %s offen sc1" % (v(VF), v(VFO), s(S_FT))]
        put(fl)
        a("s_waitcnt vmcnt(0)")
        check_fn("tile", [VF], fl)
        st()
        for t in range(3):
            for d in range(3):
                a("s_add_u32 %s, %s, %s" % (s(S_T0), s(S_PO[t]), s(S_PD[d])))
                a("buffer_load_dwordx4 %s, %s, s[12:15], %s offen sc1" % (v(PB + 32 * t + 8 + 4 * d, 4), v(VL16), s(S_T0)))
        a("s_waitcnt lgkmcnt(0)")
        for t in range(3):
            for i in range(8): a("v_add_f32 %s, %s, %s" % (v(PB + 32 * t + i), v(PB + 32 * t + i), v(YA + 8 * t + i)))
        for t in range(3):
            b = PB + 32 * t
            a("s_waitcnt vmcnt(%d)" % (3 * (2 - t) + t))
            for d in range(3):
                for i in range(4):
                    a("v_lshlrev_b32 v104, 16, %s" % v(b + 8 + 4 * d + i))
                    a("v_and_b32 v105, 0xffff0000, %s" % v(b + 8 + 4 * d + i))
                    a("v_add_f32 %s, %s, v104" % (v(b + 2 * i), v(b + 2 * i)))
                    a("v_add_f32 %s, %s, v105" % (v(b + 2 * i + 1), v(b + 2 * i + 1)))
            a("s_nop 1")
            for i in range(4): a("v_permlane32_swap_b32 %s, %s" % (v(b + i), v(b + 4 + i)))
            for i in range(4):
                for src in (RES + 8 * t, RES + 8 * t + 4):
                    a("v_lshlrev_b32 v104, 16, %s" % v(src + i))
                    a("v_and_b32 v105, 0xffff0000, %s" % v(src + i))
                    a("v_add_f32 %s, %s, v104" % (v(b + 2 * i), v(b + 2 * i)))
                    a("v_add_f32 %s, %s, v105" % (v(b + 2 * i + 1), v(b + 2 * i + 1)))
            for i in range(4): a("v_cvt_pk_bf16_f32 %s, %s, %s" % (v(b + 8 + i), v(b + 2 * i), v(b + 2 * i + 1)))
            a("buffer_store_dwordx4 %s, %s, s[20:23], %s offen" % (v(b + 8, 4), v(VRO), s(S_RO[t])))
        a("s_branch %s" % L("fin"))
        a.label(L("addy"))
        a("v_min_u32 v106, 47, %s" % v(VLN))
        a("v_lshlrev_b32 v106, 6, v106")
        a("s_mov_b32 s65, 0x%x" % F_MOEP)
        fly = ["buffer_load_dword v107, v106, s[12:15], s65 offen sc1"]
        put(fly)
        a("v_readlane_b32 s54, %s, s64" % v(241))
        a("v_mul_u32_u24 v108, 0x1556, %s" % v(VLN))
        a("v_lshrrev_b32 v108, 16, v108")
        a("v_mul_u32_u24 v109, 12, v108")
        a("v_sub_u32 v109, %s, v109" % v(VLN))
        a("v_mul_u32_u24 v110, %d, v108" % (8 * 2304))
        a("v_lshl_add_u32 v110, v109, 4, v110")
        a("v_mov_b32 v109, 0x40000000")
        a("v_cmp_gt_u32 vcc, 4, v108")
        a("s_mul_i32 %s, %s, 192" % (s(S_T1), s(S_W)))
        a("s_mul_i32 s55, %s, 768" % s(S_NT))
        a("v_cndmask_b32 v110, v109, v110, vcc")
        a("s_add_u32 s55, s55, %s" % s(S_T1))
        a("s_mul_i32 %s, s64, 2304" % s(S_T1))
        a("s_add_u32 s55, s55, %s" % s(S_T1))
        a("s_add_u32 s55, s55, 0x%x" % WS_YP)
        a("s_waitcnt vmcnt(0)")
        check_fn("yf", [107], fly)
        NL = NMOE // 4
        YB = 112
        regs = [112 + 4 * i for i in range(6)] + [184 + 4 * i for i in range(6)]
        for it in range(NL):
            a("buffer_load_dwordx4 %s, v110, s[12:15], s55 offen sc1" % v(regs[it], 4))
            a("s_add_u32 s55, s55, %d" % (4 * 8 * 2304))
        a("v_cmp_eq_u32 vcc, %s, %s" % (s(S_T0), v(VQ)))
        a("v_mov_b32 v109, s54")
        a("v_lshlrev_b32 v108, 2, %s" % v(VH))
        a("v_cndmask_b32 v109, 0, v109, vcc")
        a("v_add_u32 v110, 96, %s" % v(VLN)); a("v_lshlrev_b32 v106, 2, %s" % v(VLN))
        for it in range(1, NL):
            if it % 4 == 1: a("s_waitcnt vmcnt(%d)" % max(NL - it - 4, 0))
            for i in range(4): a("v_add_f32 %s, %s, %s" % (v(112 + i), v(112 + i), v(regs[it] + i)))
        for sh in (24, 12):
            a("v_add_u32 v110, %d, v106" % (4 * sh))
            for i in range(4): a("ds_bpermute_b32 %s, v110, %s" % (v(116 + i), v(112 + i)))
            a("s_waitcnt lgkmcnt(0)")
            for i in range(4): a("v_add_f32 %s, %s, %s" % (v(112 + i), v(112 + i), v(116 + i)))
        for q in range(6):
            a("v_add_u32 v110, %d, v108" % (8 * q))
            for i in range(4): a("ds_bpermute_b32 %s, v110, %s" % (v(184 + 4 * q + i), v(112 + i)))
            if q % 3 == 2: a("s_waitcnt lgkmcnt(0)")
        for i in range(24): a("v_fmac_f32 %s, %s, v109" % (v(YA + i), v(184 + i)))
        a("s_setpc_b64 s[66:67]")
        a.label(L("fin"))
    return after_barrier_e

def moe_helper(a, L, stamps=False):
    VL16 = 243
    if stamps:
        a("s_memrealtime s[100:101]")
        a("s_waitcnt lgkmcnt(0)")
        a("s_lshl_b32 s45, s2, 3"); a("s_add_u32 s45, s45, s36"); a("s_lshl_b32 s45, s45, 6"); a("s_add_u32 s45, s45, 0x%x" % WS_STAMP)
        a("v_mov_b32 v1, 0"); a("v_mov_b32 v2, s100")
        a("buffer_store_dword v2, v1, s[12:15], s45 offen offset:24")
    a("s_cmp_eq_u32 s36, 4")
    a("s_cbranch_scc1 %s" % L("hb0"))
    a("s_barrier"); a("s_barrier")
    a("s_cmp_eq_u32 s36, 7")
    a("s_cbranch_scc0 %s" % L("hb0"))
    a("s_barrier")
    a.label(L("hb0"))
    a("s_mov_b32 s8, s26"); a("s_mov_b32 s9, s27"); a("s_mov_b32 s10, 0x%x" % (4608 * 1152)); a("s_mov_b32 s11, 0x20000")
    a("s_sub_u32 s45, s36, 4")
    a("s_mul_i32 s45, s45, 27648")
    a("s_sub_u32 s46, s2, 192")
    a("s_mul_i32 s46, s46, 110592")
    a("s_add_u32 s46, s46, s45")
    for q in range(27):
        if q % 4 == 0: a("s_add_u32 s47, s46, %d" % (q * 1024))
        a("buffer_load_dwordx4 %s, %s, s[8:11], s47 offen offset:%d" % (v(4 * q, 4), v(VL16), (q % 4) * 1024))
    a("v_add_u32 v120, s45, %s" % v(VL16))
    a("s_waitcnt vmcnt(0)")
    a("s_barrier")
    for q in range(27):
        if q and q % 8 == 0: a("s_waitcnt lgkmcnt(4)")
        a("ds_write_b128 v120, %s offset:%d" % (v(4 * q, 4), q * 1024))
    a("s_waitcnt lgkmcnt(0)")
    a("s_barrier")
    a("s_endpgm")

def moe_main(a, L, check_fn, VSEL, stamps=False):
    def stp(i):
        if stamps: a("s_memrealtime %s" % s(88 + 2 * i, 2))
    VL16 = 243
    S_W, S_T0, S_T1, S_G, S_L, S_WG = 36, 45, 46, 41, 43, 44
    GU = [0, 73728]; UP = 36864
    EX, HA = 110592, 147456
    X, ACC, WFR, TMP, H, Y = 32, 72, 168, 184, 192, 72
    a("s_sub_u32 %s, s2, 192" % s(S_WG))
    a("v_lshrrev_b32 v2, 4, %s" % v(VL16))
    a("v_lshrrev_b32 v4, 2, v2")
    a("v_mul_u32_u24 v4, 9216, v4")
    a("v_and_b32 v5, 3, v2")
    a("v_lshl_add_u32 v4, v5, 4, v4")
    a("v_and_b32 v11, 7, v2")
    a("v_lshlrev_b32 v12, 2, v11")
    a("ds_bpermute_b32 v13, v12, %s" % v(VSEL))
    a("s_mul_i32 %s, %s, %d" % (s(S_G), s(S_W), 144 * 9216))
    a("s_mul_i32 %s, %s, 192" % (s(S_T1), s(S_WG)))
    a("s_add_u32 %s, %s, %s" % (s(S_G), s(S_G), s(S_T1)))
    a("s_mul_i32 %s, %s, 9216" % (s(S_L), s(S_W)))
    a("s_mov_b32 s8, s28"); a("s_mov_b32 s9, s29"); a("s_mov_b32 s10, 0x%x" % (576 * 9216)); a("s_mov_b32 s11, 0x20000")
    a("s_mov_b32 s16, s30"); a("s_mov_b32 s17, s31"); a("s_mov_b32 s18, 0x%x" % (576 * 9216)); a("s_mov_b32 s19, 0x20000")
    a("s_waitcnt lgkmcnt(0)")
    a("v_lshrrev_b32 v14, 5, v13")
    a("v_mul_u32_u24 v14, 36864, v14")
    a("v_and_b32 v15, 31, v13")
    a("v_lshl_add_u32 v14, v15, 4, v14")
    a("v_lshrrev_b32 v15, 5, v2")
    a("v_lshl_add_u32 v14, v15, 9, v14")
    a("s_add_u32 %s, %s, 0x%x" % (s(S_T0), s(S_L), WS_XNF))
    for k in range(9):
        a("buffer_load_dwordx4 %s, v14, s[12:15], %s offen sc1" % (v(X + 4 * k, 4), s(S_T0)))
        a("s_add_u32 %s, %s, 1024" % (s(S_T0), s(S_T0)))
    def after_barrier_e():
        def dma_gu(r):
            for q in range(9):
                a("s_add_u32 %s, %s, %d" % (s(S_T0), s(S_G), q * 16 * 9216 + 64 * r))
                for lb, sr in ((0, 8), (UP, 16)):
                    a("s_add_u32 m0, %s, %d" % (s(S_L), GU[r % 2] + lb + q * 1024))
                    a("s_nop 0")
                    a("buffer_load_dwordx4 v4, %s, %s offen lds" % (s(sr, 4), s(S_T0)))
        stp(0)
        dma_gu(0); dma_gu(1)
        a("v_bfe_u32 v16, v2, 2, 2")
        a("v_lshl_add_u32 v17, v15, 3, v16")
        a("v_lshlrev_b32 v17, 6, v17")
        a("v_bfe_u32 v18, v2, 4, 1")
        a("v_lshlrev_b32 v18, 5, v18")
        a("v_and_b32 v19, 3, v2")
        a("v_lshl_add_u32 v18, v19, 3, v18")
        a("v_add3_u32 v17, v17, v18, %s" % s(S_L))
        a("v_add_u32 v22, %d, v17" % GU[1])
        a("v_lshl_add_u32 v19, v15, 2, v16")
        a("v_mul_u32_u24 v19, 1152, v19")
        a("s_lshl_b32 %s, %s, 6" % (s(S_T0), s(S_W)))
        a("v_add3_u32 v19, v19, v18, %s" % s(S_T0))
        a("v_add_u32 v23, %d, v19" % (48 * 1152))
        a("v_lshl_add_u32 v20, v15, 3, v11")
        a("v_lshlrev_b32 v20, 4, v20")
        a("s_add_u32 %s, %s, %d" % (s(S_T0), s(S_L), EX))
        a("v_add_u32 v21, %s, v20" % s(S_T0))
        a("s_mul_i32 %s, %s, 768" % (s(S_T1), s(S_W)))
        a("s_add_u32 %s, %s, %d" % (s(S_T1), s(S_T1), EX))
        a("v_add_u32 v24, %s, v20" % s(S_T1))
        def rnd(r, nvm):
            a("s_waitcnt vmcnt(%d)" % nvm)
            base = "v17" if r % 2 == 0 else "v22"
            G, U = ACC + 16 * r, ACC + 48 + 16 * r
            for k in range(10):
                if k < 9:
                    b = WFR + 8 * (k % 2)
                    for m, lb in enumerate((0, UP)):
                        for h in range(2):
                            a("ds_read_b64_tr_b16 %s, %s offset:%d" % (v(b + 4 * m + 2 * h, 2), base, lb + k * 1024 + h * 256))
                if k:
                    a("s_waitcnt lgkmcnt(%d)" % (4 if k < 9 else 0))
                    b2 = WFR + 8 * ((k - 1) % 2)
                    for m, d in enumerate((G, U)):
                        a("v_mfma_f32_32x32x16_bf16 %s, %s, %s, %s" % (v(d, 16), v(b2 + 4 * m, 4), v(X + 4 * (k - 1), 4), "0" if k == 1 else v(d, 16)))
        rnd(0, 18)
        stp(1)
        dma_gu(2)
        rnd(1, 18)
        rnd(2, 0)
        stp(2)
        a("v_and_b32 v26, 31, v2")
        a("v_cmp_gt_u32 vcc, 8, v26")
        a("s_nop 15")
        a("s_mov_b64 exec, vcc")
        for q in range(24):
            if q and q % 8 == 0: a("s_waitcnt lgkmcnt(4)")
            a("ds_write_b128 v21, %s offset:%d" % (v(ACC + 4 * q, 4), q * 256))
        a("s_mov_b64 exec, -1")
        a("s_waitcnt lgkmcnt(0)")
        a("s_barrier")
        for w in range(4):
            for gu in range(2):
                for j in range(3):
                    a("ds_read_b128 %s, v24 offset:%d" % (v(ACC + 24 * w + 12 * gu + 4 * j, 4), w * 9216 + gu * 3072 + j * 256))
            if w == 1: a("s_waitcnt lgkmcnt(3)")
        a("s_waitcnt lgkmcnt(0)")
        for e in range(72):
            w_, r_ = e // 24 + 1, e % 24
            a("v_add_f32 %s, %s, %s" % (v(ACC + r_), v(ACC + r_), v(ACC + 24 * w_ + r_)))
        G, U = ACC, ACC + 12
        for i in range(6):
            a("v_cvt_pk_bf16_f32 v26, %s, %s" % (v(G + 2 * i), v(G + 2 * i + 1)))
            a("v_cvt_pk_bf16_f32 v27, %s, %s" % (v(U + 2 * i), v(U + 2 * i + 1)))
            a("v_lshlrev_b32 v28, 16, v26")
            a("v_and_b32 v29, 0xffff0000, v26")
            a("v_mul_f32 v30, 0x%08x, v28" % f32bits(-math.log2(math.e)))
            a("v_mul_f32 v31, 0x%08x, v29" % f32bits(-math.log2(math.e)))
            a("v_exp_f32 v30, v30")
            a("v_exp_f32 v31, v31")
            a("v_add_f32 v30, 1.0, v30")
            a("v_add_f32 v31, 1.0, v31")
            a("v_rcp_f32 v30, v30")
            a("v_rcp_f32 v31, v31")
            a("v_mul_f32 v28, v28, v30")
            a("v_mul_f32 v29, v29, v31")
            a("v_cvt_pk_bf16_f32 v26, v28, v29")
            a("v_lshlrev_b32 v30, 16, v27")
            a("v_and_b32 v31, 0xffff0000, v27")
            a("v_lshlrev_b32 v28, 16, v26")
            a("v_and_b32 v29, 0xffff0000, v26")
            a("v_mul_f32 v28, v28, v30")
            a("v_mul_f32 v29, v29, v31")
            a("v_cvt_pk_bf16_f32 %s, v28, v29" % v(TMP + i))
        a("s_mul_i32 %s, %s, 3" % (s(S_T0), s(S_W)))
        for j in range(3):
            a("s_add_u32 %s, %s, %d" % (s(S_T1), s(S_T0), j))
            a("s_lshr_b32 s47, %s, 1" % s(S_T1))
            a("s_lshl_b32 s47, s47, 8")
            a("s_and_b32 %s, %s, 1" % (s(S_T1), s(S_T1)))
            a("s_lshl_b32 %s, %s, 3" % (s(S_T1), s(S_T1)))
            a("s_add_u32 s47, s47, %s" % s(S_T1))
            a("s_add_u32 s47, s47, %d" % HA)
            a("v_add_u32 v26, s47, v20")
            a("ds_write_b64 v26, %s" % v(TMP + 2 * j, 2))
        a("v_add_u32 v26, %d, v20" % HA)
        a("s_waitcnt lgkmcnt(0)")
        a("s_barrier")
        stp(3)
        for k in range(6): a("ds_read_b128 %s, v26 offset:%d" % (v(H + 4 * k, 4), k * 256))
        seq = [(j, k) for j in range(5) for k in range(6)]
        def rdw(n):
            j, k = seq[n]
            b = WFR + 4 * (n % 4)
            for h in range(2):
                a("ds_read_b64_tr_b16 %s, %s offset:%d" % (v(b + 2 * h, 2), "v19" if k < 3 else "v23", j * 256 + ((k % 3) * 16 + h * 8) * 1152))
        for n in range(3): rdw(n)
        for n, (j, k) in enumerate(seq):
            a("s_waitcnt lgkmcnt(%d)" % (2 * min(2, len(seq) - 1 - n)))
            d = Y + 16 * j
            a("v_mfma_f32_32x32x16_bf16 %s, %s, %s, %s" % (v(d, 16), v(WFR + 4 * (n % 4), 4), v(H + 4 * k, 4), "0" if k == 0 else v(d, 16)))
            if n + 3 < len(seq): rdw(n + 3)
        YL = 112640
        a("v_and_b32 v24, 31, v2")
        a("v_mul_u32_u24 v25, 2320, v24")
        a("v_lshl_add_u32 v25, v15, 4, v25")
        a("s_lshl_b32 %s, %s, 7" % (s(S_T1), s(S_W)))
        a("s_add_u32 %s, %s, %d" % (s(S_T1), s(S_T1), YL))
        a("v_add_u32 v25, %s, v25" % s(S_T1))
        a("v_cmp_gt_u32 vcc, 8, v24")
        a("s_nop 7")
        a("s_mov_b64 exec, vcc")
        for j in range(5):
            if j == 4:
                a("s_cmp_lt_u32 %s, 2" % s(S_W))
                a("s_cbranch_scc0 %s" % L("mw"))
            for r4 in range(4):
                a("ds_write_b128 v25, %s offset:%d" % (v(Y + 16 * j + 4 * r4, 4), j * 512 + r4 * 32))
            if j == 2: a("s_waitcnt lgkmcnt(4)")
        a.label(L("mw"))
        a("s_mov_b64 exec, -1")
        a("s_mul_i32 %s, %s, 4640" % (s(S_T1), s(S_W)))
        a("s_add_u32 %s, %s, %d" % (s(S_T1), s(S_T1), YL))
        a("v_add_u32 v25, %s, %s" % (s(S_T1), v(VL16)))
        a("v_mov_b32 v26, 0x40000000")
        a("v_cmp_gt_u32 vcc, 16, v2")
        a("s_mul_i32 %s, %s, %d" % (s(S_T0), s(S_WG), 8 * 2304))
        a("s_mul_i32 %s, %s, 4608" % (s(S_T1), s(S_W)))
        a("v_cndmask_b32 v26, v26, %s, vcc" % v(VL16))
        a("s_add_u32 %s, %s, %s" % (s(S_T0), s(S_T0), s(S_T1)))
        a("s_add_u32 %s, %s, 0x%x" % (s(S_T0), s(S_T0), WS_YP))
        a("s_add_u32 %s, %s, 2304" % (s(S_T1), s(S_T0)))
        a("s_waitcnt lgkmcnt(0)")
        a("s_barrier")
        for t in range(2):
            for c in range(3): a("ds_read_b128 %s, v25 offset:%d" % (v(32 + 12 * t + 4 * c, 4), t * 2320 + c * 1024))
        for t in range(2):
            for c in range(3):
                a("s_waitcnt lgkmcnt(%d)" % (5 - 3 * t - c))
                a("buffer_store_dwordx4 %s, %s, s[12:15], %s offen offset:%d sc1" % (v(32 + 12 * t + 4 * c, 4), v(VL16) if c < 2 else "v26", s(S_T0 if t == 0 else S_T1), c * 1024))
        a("s_lshl_b32 %s, %s, 6" % (s(S_T0), s(S_WG)))
        a("s_add_u32 %s, %s, 0x%x" % (s(S_T0), s(S_T0), F_MOEP))
        a("s_waitcnt vmcnt(0)")
        a("s_barrier")
        a("s_cmp_eq_u32 %s, 0" % s(S_W))
        a("s_cbranch_scc0 %s" % L("mend"))
        set_flag(a, 5, s(S_T0))
        stp(4)
        a.label(L("mend"))
    return after_barrier_e
```

```python
import sys
from asmlib import *
import k1, k2, k3, km
def build(parts, out, header=""):
    body = Asm(); infos = []
    for p in parts:
        infos.append(p(body))
    hdr = Asm()
    for i in infos:
        if len(infos) == 1 and i["name"].startswith("parallel_sum"):
            hdr.raw("; @launch grid=(%d,1,1) block=(%d,1,1) lds=%d" % (i["grid"], i["block"], i["lds"]))
        else:
            hdr.raw("; @launch kernel=%s grid=(%d,1,1) block=(%d,1,1) lds=%d" % (i["name"], i["grid"], i["block"], i["lds"]))
    hdr.raw('.amdgcn_target "amdgcn-amd-amdhsa--gfx950"')
    for i in infos:
        kernel_desc(body, i["name"], i["vgpr"])
    open(out, "w").write(header + hdr.text() + body.text())
if __name__ == "__main__":
    ref = open("parallel_sum__compressed_kv_cla__moe_arch_mod__prompt.s.ref").read().split("\n")
    header = "\n".join(l for l in ref[:16] if l.startswith(";") and "@launch" not in l and "Override" not in l and "grid=ceil" not in l) + "\n"
    out = sys.argv[1] if len(sys.argv) > 1 else "full.s"
    build([lambda a: k2.gen_k2(a, name='parallel_sum__compressed_kv_cla__moe_arch_mod__prompt_kernel', fused=True, mega=True)], out, header)
```
